```python
import torch

def _softmax(x, axis=-1):
    return torch.softmax(x, dim=axis)
def _gelu(x):
    return torch.nn.functional.gelu(x, approximate="tanh")
def _silu(x):
    return torch.nn.functional.silu(x)
def _sigmoid(x):
    return torch.sigmoid(x)
def _layernorm(x, axis=-1, eps=1e-5):
    m = x.mean(dim=axis, keepdim=True)
    v = x.var(dim=axis, keepdim=True, unbiased=False)
    return (x - m) / torch.sqrt(v + eps)
def _scatter_add(tgt, idx, src, axis=0):
    return tgt.clone().index_add_(axis, idx, src)
def _segment_sum(src, seg, n):
    out = torch.zeros((n,) + src.shape[1:], dtype=src.dtype)
    return out.index_add_(0, seg, src)
def _pad(x, pw):
    flat = tuple(v for pair in reversed(pw) for v in pair)
    return torch.nn.functional.pad(x, flat)

kernel_name = 'standalone__edge_featured_mpnn_egc__graph'

def setup_inputs():

    _w = (lambda a: (lambda t: t.to(torch.bfloat16) if t.is_floating_point() else t)(torch.as_tensor(a)))
    N, deg, D, De = 12500, 64, 64, max(16, 1)
    E = N * deg
    return {
        "x": _w((lambda *s: torch.randn(*s, dtype=torch.bfloat16) * 0.2)(N, D)),
        "e_attr": _w((lambda *s: torch.randn(*s, dtype=torch.bfloat16) * 0.2)(E, De)),
        "src": _w((lambda lo, hi, *s: torch.randint(lo, hi, s))(0, N, E).to(torch.int64)),
        "dst": _w((lambda lo, hi, *s: torch.randint(lo, hi, s))(0, N, E).to(torch.int64)),
        "u_w": _w((lambda *s: torch.randn(*s, dtype=torch.bfloat16) * 0.05)(D, D)),
        "v_w": _w((lambda *s: torch.randn(*s, dtype=torch.bfloat16) * 0.05)(D, D)),
        "g_w": _w((lambda *s: torch.randn(*s, dtype=torch.bfloat16) * 0.2)(2 * D + De, D)),
    }

def reference(x, e_attr, src, dst, u_w, v_w, g_w):
    N, D = x.shape
    g_in = torch.concatenate([x[dst], x[src], e_attr], axis=-1)
    eta = _sigmoid(g_in @ g_w)
    hv = x @ v_w
    msg = eta * hv[src]
    agg = _segment_sum(msg, dst, N)
    return _silu(x @ u_w + agg)
```

```python
import sys, struct

N = 12500; E = 800000
NCH = 250; CH = 3200
NB = 1024; MUL = 5369
SLOTN = 11
CAP = 960
NLOG2E = 0xBFB8AA3B

REC_OFF = 0
T_OFF = 0x1900000
ENT_OFF = 0x2100000
AP_OFF = 0x2500000
HU_OFF = 0x2900000
WF_OFF = 0x2B00000
WS_SIZE = 0x3000000

OPT = dict(p1_store="", p1_tstore="", p1_ld="nt")
for a in sys.argv[2:]:
    k, v = a.split("=")
    OPT[k] = v


class A:
    def __init__(self):
        self.l = []

    def __call__(self, s):
        for x in s.strip().split("\n"):
            self.l.append("    " + x.strip())

    def lab(self, s):
        self.l.append(s + ":")

    def srd(self, d, lo, hi, nrec, add=None):
        if add is None:
            self(f"s_mov_b32 s{d}, s{lo}\ns_mov_b32 s{d+1}, s{hi}")
        else:
            self(f"s_add_u32 s{d}, s{lo}, {add}\ns_addc_u32 s{d+1}, s{hi}, 0")
        self(f"s_mov_b32 s{d+2}, {nrec}\ns_mov_b32 s{d+3}, 0x20000")

    def wave_scan(self, v, full=True):
        for sh in (1, 2, 4, 8):
            self("s_nop 1")
            self(f"v_add_u32_dpp v{v}, v{v}, v{v} row_shr:{sh} row_mask:0xf bank_mask:0xf bound_ctrl:0")
        if full:
            self("s_nop 1")
            self(f"v_add_u32_dpp v{v}, v{v}, v{v} row_bcast:15 row_mask:0xa bank_mask:0xf")
            self("s_nop 1")
            self(f"v_add_u32_dpp v{v}, v{v}, v{v} row_bcast:31 row_mask:0xc bank_mask:0xf")

    def text(self):
        return "\n".join(self.l) + "\n"


P1_HIST = 0; P1_WT = 4096; P1_ENT = 4224; P1_TL = 17024; P1_STAGE = 49792
P1_LDS = P1_STAGE + CH * 32


def gen_p1():
    a = A()
    ST = OPT["p1_store"]; TST = OPT["p1_tstore"]; LD = OPT["p1_ld"]
    a.lab("p1_kernel")
    a(f"""
    s_cmp_ge_u32 s2, {NCH}
    s_cbranch_scc1 P1_END
    s_load_dwordx16 s[16:31], s[0:1], 0
    s_load_dwordx4 s[32:35], s[0:1], 64
    v_and_b32 v1, 63, v0
    v_lshrrev_b32 v5, 6, v0
    v_lshlrev_b32 v2, 4, v0
    v_lshlrev_b32 v3, 2, v0
    v_readfirstlane_b32 s3, v5
    v_lshlrev_b32 v4, 4, v1
    v_mov_b32 v6, 0
    v_lshlrev_b32 v7, 5, v0
    v_add_u32 v7, {P1_TL}, v7
    ds_write_b32 v3, v6 offset:{P1_HIST}
    ds_write2_b32 v7, v6, v6 offset0:1 offset1:2
    s_mul_i32 s4, s2, {CH*4}
    s_mul_i32 s5, s2, {CH*32}
    v_and_b32 v24, 31, v1
    v_lshrrev_b32 v25, 5, v1
    s_waitcnt lgkmcnt(0)
    """)
    a.srd(44, 22, 23, CH * 4, "s4")
    a.srd(40, 20, 21, CH * 4, "s4")
    a(f"""
    buffer_load_dwordx4 v[8:11], v2, s[44:47], 0 offen {LD}
    buffer_load_dwordx4 v[12:15], v2, s[40:43], 0 offen {LD}
    """)
    a.srd(36, 18, 19, CH * 32, "s5")
    a.srd(48, 34, 35, WS_SIZE)
    a.srd(52, 16, 17, N * 128)
    a.srd(56, 28, 29, 8128)
    a.srd(60, 34, 35, 0)
    a(f"""
    v_lshlrev_b32 v26, 10, v25
    v_lshl_add_u32 v26, v24, 1, v26
    v_add_u32 v27, 0x1000, v26
    s_mov_b32 s14, {NLOG2E}
    s_cmp_lt_u32 s3, 11
    s_cbranch_scc1 P1_DMA
    s_cmp_eq_u32 s3, 11
    s_cbranch_scc1 P1_FRAGLD
    """)
    a(f"""
    s_and_b32 s6, s3, 1
    s_lshl_b32 s6, s6, 6
    s_cmp_ge_u32 s3, 14
    s_cselect_b32 s56, s24, s28
    s_cselect_b32 s57, s25, s29
    s_add_u32 s56, s56, s6
    s_addc_u32 s57, s57, 0
    s_mul_i32 s7, s2, {50*128}
    v_lshlrev_b32 v28, 7, v24
    v_lshl_add_u32 v28, v25, 4, v28
    v_add_u32 v28, s7, v28
    v_add_u32 v29, 0x1000, v28
    """)
    for t in range(4):
        for jj in range(8):
            vo = 26 if t < 2 else 27
            a(f"buffer_load_ushort v{40+t*8+jj}, v{vo}, s[56:59], 0 offen offset:{(16*(t%2)+jj)*128}")
    for r in range(2):
        for t in range(4):
            b = 72 + r * 16 + t * 4
            a(f"buffer_load_dwordx4 v[{b}:{b+3}], v{28+r}, s[52:55], 0 offen offset:{t*32}")
    a("s_branch P1_DMA")
    a.lab("P1_FRAGLD")
    a(f"""
    s_cmp_ge_u32 s2, 18
    s_cbranch_scc1 P1_DMA
    s_and_b32 s6, s2, 3
    s_lshl_b32 s6, s6, 11
    s_lshr_b32 s7, s2, 2
    s_and_b32 s7, s7, 1
    s_lshl_b32 s7, s7, 6
    s_add_u32 s6, s6, s7
    s_add_u32 s7, s6, 8192
    s_cmp_ge_u32 s2, 8
    s_cselect_b32 s56, s26, s28
    s_cselect_b32 s57, s27, s29
    s_cselect_b32 s6, s6, s7
    s_cselect_b32 s14, 1.0, s14
    s_cmp_lt_u32 s2, 16
    s_cbranch_scc1 P1_FRAGLD2
    s_mov_b32 s56, s28
    s_mov_b32 s57, s29
    s_mov_b32 s14, {NLOG2E}
    s_and_b32 s6, s2, 1
    s_lshl_b32 s6, s6, 6
    s_add_u32 s6, s6, 16384
    """)
    a.lab("P1_FRAGLD2")
    a(f"""
    s_add_u32 s56, s56, s6
    s_addc_u32 s57, s57, 0
    s_mov_b32 s58, {2048-64}
    """)
    for jj in range(8):
        a(f"buffer_load_ushort v{40+jj}, v26, s[56:59], 0 offen offset:{jj*128}")
    a.lab("P1_DMA")
    a("s_lshl_b32 s6, s3, 10")
    for k in range(7):
        if k == 6:
            a("s_cmp_ge_u32 s3, 4\ns_cbranch_scc1 P1_DMA_DONE")
        a(f"""
        s_add_u32 s7, s6, {k*16384}
        s_add_u32 m0, s7, {P1_STAGE}
        s_nop 0
        buffer_load_dwordx4 v4, s[36:39], s7 offen {LD} lds
        """)
    a.lab("P1_DMA_DONE")
    a(f"""
    s_barrier
    v_cmp_gt_u32 vcc, {CH//4}, v0
    s_mov_b64 s[8:9], vcc
    v_mov_b32 v30, 1
    s_waitcnt vmcnt(6)
    s_mov_b64 exec, s[8:9]
    s_cbranch_execz P1_H_DONE
    """)
    for e in range(4):
        a(f"""
        v_mul_u32_u24 v{16+e}, {MUL}, v{8+e}
        v_lshrrev_b32 v{16+e}, 16, v{16+e}
        v_lshlrev_b32 v{16+e}, 2, v{16+e}
        ds_add_rtn_u32 v{20+e}, v{16+e}, v30 offset:{P1_HIST}
        """)
    a("s_waitcnt lgkmcnt(0)")
    a.lab("P1_H_DONE")
    a(f"""
    s_mov_b64 exec, -1
    s_barrier
    ds_read_b32 v31, v3 offset:{P1_HIST}
    s_waitcnt lgkmcnt(0)
    v_mov_b32 v32, v31
    """)
    a.wave_scan(32)
    a(f"""
    s_nop 0
    v_readlane_b32 s6, v32, 63
    s_lshl_b32 s7, s3, 2
    v_mov_b32 v34, s7
    s_nop 0
    v_mov_b32 v33, s6
    ds_write_b32 v34, v33 offset:{P1_WT}
    s_waitcnt lgkmcnt(0)
    s_barrier
    v_and_b32 v34, 15, v1
    v_lshlrev_b32 v35, 2, v34
    ds_read_b32 v33, v35 offset:{P1_WT}
    v_cmp_gt_u32 vcc, s3, v34
    s_waitcnt lgkmcnt(0)
    s_nop 0
    v_cndmask_b32 v33, 0, v33, vcc
    """)
    a.wave_scan(33, full=False)
    a(f"""
    s_nop 0
    v_readlane_b32 s6, v33, 15
    v_sub_u32 v32, v32, v31
    s_nop 0
    v_add_u32 v32, s6, v32
    v_lshl_or_b32 v33, v31, 16, v32
    ds_write_b32 v3, v32 offset:{P1_HIST}
    ds_write_b32 v7, v33
    s_waitcnt lgkmcnt(0)
    s_barrier
    s_mov_b64 exec, s[8:9]
    s_cbranch_execz P1_S_DONE
    """)
    for e in range(4):
        a(f"ds_read_b32 v{32+e}, v{16+e} offset:{P1_HIST}")
    for e in range(4):
        a(f"""
        v_and_b32 v{8+e}, 15, v{8+e}
        v_lshl_or_b32 v{36+e}, v{8+e}, 14, v{12+e}
        v_add_u32 v31, {e}, v3
        v_lshl_or_b32 v{36+e}, v31, 18, v{36+e}
        """)
    a("s_waitcnt lgkmcnt(0)")
    for e in range(4):
        a(f"""
        v_add_lshl_u32 v{32+e}, v{32+e}, v{20+e}, 2
        ds_write_b32 v{32+e}, v{36+e} offset:{P1_ENT}
        """)
    for e in range(4):
        a(f"""
        v_lshlrev_b32 v{16+e}, 3, v{16+e}
        v_lshl_add_u32 v{32+e}, v{20+e}, 1, v{16+e}
        v_lshrrev_b32 v31, 3, v{20+e}
        v_lshl_add_u32 v{16+e}, v31, 2, v{16+e}
        v_and_b32 v31, 7, v{20+e}
        v_lshlrev_b32 v31, 2, v31
        v_lshlrev_b32 v{8+e}, v31, v{8+e}
        """)
    for e in range(4):
        a(f"""
        v_cmp_gt_u32 vcc, {SLOTN}, v{20+e}
        s_and_b64 exec, s[8:9], vcc
        ds_write_b16 v{32+e}, v{12+e} offset:{P1_TL+10}
        ds_or_b32 v{16+e}, v{8+e} offset:{P1_TL+4}
        s_mov_b64 exec, s[8:9]
        """)
    a("s_waitcnt lgkmcnt(0)")
    a.lab("P1_S_DONE")
    a(f"""
    s_mov_b64 exec, -1
    s_barrier
    ds_read_b128 v[8:11], v2 offset:{P1_TL}
    ds_read_b128 v[12:15], v2 offset:{P1_TL+16384}
    ds_read_b128 v[16:19], v2 offset:{P1_ENT}
    s_and_b32 s6, s2, 7
    s_lshl_b32 s6, s6, 5
    s_lshr_b32 s7, s2, 3
    s_add_u32 s6, s6, s7
    s_lshl_b32 s6, s6, 5
    s_add_u32 s6, s6, {T_OFF}
    s_add_u32 s7, s6, {512*8192}
    s_add_u32 s10, s4, {ENT_OFF}
    v_lshrrev_b32 v20, 1, v0
    v_and_b32 v21, 1, v0
    v_lshlrev_b32 v21, 4, v21
    v_lshl_or_b32 v22, v20, 13, v21
    v_lshlrev_b32 v20, 2, v20
    s_waitcnt lgkmcnt(2)
    buffer_store_dwordx4 v[8:11], v22, s[48:51], s6 offen {TST}
    s_waitcnt lgkmcnt(1)
    buffer_store_dwordx4 v[12:15], v22, s[48:51], s7 offen {TST}
    s_waitcnt lgkmcnt(0)
    s_mov_b64 exec, s[8:9]
    s_cbranch_execz P1_E_DONE
    buffer_store_dwordx4 v[16:19], v2, s[48:51], s10 offen {ST}
    """)
    a.lab("P1_E_DONE")
    a("s_mov_b64 exec, -1")
    for i in range(7):
        a(f"ds_read_b32 v{30+i}, v20 offset:{P1_ENT+i*2048}")
    a(f"""
    s_cmp_lt_u32 s3, 11
    s_cbranch_scc1 P1_OUT
    s_cmp_eq_u32 s3, 11
    s_cbranch_scc1 P1_FRAG
    """)
    for q in range(16):
        a(f"v_lshl_or_b32 v{40+q}, v{40+2*q+1}, 16, v{40+2*q}")
    a("s_nop 1")
    for r in range(2):
        d = 104 if r == 0 else 56
        for t in range(4):
            c = "0" if t == 0 else f"v[{d}:{d+15}]"
            a(f"v_mfma_f32_32x32x16_bf16 v[{d}:{d+15}], v[{72+r*16+t*4}:{72+r*16+t*4+3}], v[{40+t*4}:{40+t*4+3}], {c}")
    a(f"""
    s_and_b32 s6, s3, 1
    s_cmp_ge_u32 s3, 14
    s_cbranch_scc1 P1_HU
    s_mul_i32 s7, s2, {50*256}
    s_add_u32 s7, s7, {AP_OFF}
    s_lshl_b32 s6, s6, 2
    s_add_u32 s60, s34, s7
    s_addc_u32 s61, s35, 0
    s_mov_b32 s62, {50*256}
    v_lshlrev_b32 v28, 3, v24
    v_lshl_add_u32 v28, v25, 10, v28
    v_add_u32 v28, s6, v28
    s_nop 7
    s_nop 7
    """)
    for r in range(2):
        d = 104 if r == 0 else 56
        for i in range(16):
            a(f"v_mul_f32 v{d+i}, {NLOG2E:#x}, v{d+i}")
        for i in range(16):
            row = 32 * r + 8 * (i // 4) + (i % 4)
            if row >= 50:
                continue
            off = row * 256
            a(f"s_mov_b32 s7, {off}")
            a(f"buffer_store_dword v{d+i}, v28, s[60:63], s7 offen")
    a("s_branch P1_OUT")
    a.lab("P1_HU")
    a(f"""
    s_mul_i32 s7, s2, {50*128}
    s_add_u32 s7, s7, {HU_OFF}
    s_lshl_b32 s6, s6, 6
    s_add_u32 s60, s34, s7
    s_addc_u32 s61, s35, 0
    s_mov_b32 s62, {50*128}
    v_lshlrev_b32 v28, 1, v24
    v_lshl_add_u32 v28, v25, 9, v28
    v_add_u32 v28, s6, v28
    s_nop 7
    s_nop 7
    """)
    for r in range(2):
        d = 104 if r == 0 else 56
        for i in range(16):
            a(f"v_cvt_pk_bf16_f32 v{d+i}, v{d+i}, v{d+i}")
        for i in range(16):
            row = 32 * r + 8 * (i // 4) + (i % 4)
            if row >= 50:
                continue
            off = row * 128
            a(f"s_mov_b32 s7, {off}")
            a(f"buffer_store_short v{d+i}, v28, s[60:63], s7 offen")
    a("s_branch P1_OUT")
    a.lab("P1_FRAG")
    a("s_cmp_ge_u32 s2, 18\ns_cbranch_scc1 P1_OUT")
    for jj in range(8):
        a(f"v_lshlrev_b32 v{40+jj}, 16, v{40+jj}")
    for jj in range(8):
        a(f"v_mul_f32 v{40+jj}, s14, v{40+jj}")
    for q in range(4):
        a(f"v_cvt_pk_bf16_f32 v{48+q}, v{40+2*q}, v{40+2*q+1}")
    a(f"""
    s_lshl_b32 s6, s2, 10
    s_add_u32 s6, s6, {WF_OFF}
    buffer_store_dwordx4 v[48:51], v4, s[48:51], s6 offen
    """)
    a.lab("P1_OUT")
    a("s_waitcnt lgkmcnt(0)")
    for i in range(7):
        a(f"""
        v_lshrrev_b32 v{30+i}, 18, v{30+i}
        v_lshl_or_b32 v{30+i}, v{30+i}, 5, v21
        """)
    a(f"""
    s_add_u32 s6, s5, {REC_OFF}
    s_waitcnt vmcnt(0)
    s_barrier
    """)
    for i in range(6):
        a(f"ds_read_b128 v[{64+4*i}:{64+4*i+3}], v{30+i} offset:{P1_STAGE}")
    a("s_cmp_ge_u32 s3, 4\ns_cbranch_scc1 P1_O2")
    a(f"""
    ds_read_b128 v[88:91], v36 offset:{P1_STAGE}
    s_add_u32 s7, s6, {6*16384}
    s_waitcnt lgkmcnt(0)
    buffer_store_dwordx4 v[88:91], v2, s[48:51], s7 offen {ST}
    """)
    a.lab("P1_O2")
    for i in range(6):
        a(f"""
        s_add_u32 s7, s6, {i*16384}
        s_waitcnt lgkmcnt({5-i})
        buffer_store_dwordx4 v[{64+4*i}:{64+4*i+3}], v2, s[48:51], s7 offen {ST}
        """)
    a.lab("P1_END")
    a("s_endpgm")
    return a.text()


L_SRC = 0; L_POS = 4096; L_GT = 8192; L_EA = 9216; L_AGG = 13312; L_MISC = 17408
L_NCNT = L_MISC; L_WT = L_MISC + 64; L_FLAG = L_MISC + 96
L_STAGE = L_MISC + 128
L_ZROW = CAP * 32
L_XB = L_STAGE + CAP * 32 + 32
L_FLAT = L_XB; L_PREF = L_XB + 8192; L_GB = L_XB + 8192 + 2048
P2_LDS = L_XB + 32768
assert P2_LDS <= 81920, P2_LDS
SENT = 0x40000000

VW = 0
V_W = 184
V_Z0 = 64; V_H0 = 80; V_Z1 = 96; V_H1 = 112
V_XA = 128; V_EA = 144
V_G = 148; V_GR = 152; V_EV = 156
V_SL = 164
V_ACC = 168
V_XR = 172
V_PS = 176
V_AS = 177; V_AP = 178; V_AG = 179
V_K0 = 180; V_N8 = 181; V_H16 = 182


def wfrag(f):
    return f"v[{V_W+4*f}:{V_W+4*f+3}]"


def gen_body(a, par, safe, tag):
    def mf_list(u, Z, H):
        l = []
        l.append(f"v_mfma_f32_32x32x16_bf16 v[{Z}:{Z+15}], v[{V_EA}:{V_EA+3}], {wfrag(16+u)}, 0")
        for t in range(4):
            l.append(f"v_mfma_f32_32x32x16_bf16 v[{Z}:{Z+15}], v[{V_XA+4*t}:{V_XA+4*t+3}], {wfrag(u*4+t)}, v[{Z}:{Z+15}]")
        for t in range(4):
            c = "0" if t == 0 else f"v[{H}:{H+15}]"
            l.append(f"v_mfma_f32_32x32x16_bf16 v[{H}:{H+15}], v[{V_XA+4*t}:{V_XA+4*t+3}], {wfrag(8+u*4+t)}, {c}")
        return l

    def valu_group(g, u, Z, H):
        ev = V_EV + 2 * g + u
        l = []
        r = [Z + 4 * g + k for k in range(4)]
        h = [H + 4 * g + k for k in range(4)]
        if safe:
            l += [f"v_add_f32 v{x}, v{ev}, v{x}" for x in r]
        l += [f"v_exp_f32 v{x}, v{x}" for x in r]
        if safe:
            l += [f"v_add_f32 v{x}, 1.0, v{x}" for x in r]
        else:
            l += [f"v_fma_f32 v{x}, v{x}, v{ev}, 1.0" for x in r]
        l += [f"v_rcp_f32 v{x}, v{x}" for x in r]
        acc = V_ACC + g
        l.append(f"v_mul_f32 v{acc}, v{r[0]}, v{h[0]}")
        l += [f"v_fmac_f32 v{acc}, v{r[k]}, v{h[k]}" for k in (1, 2, 3)]
        l.append(f"ds_add_f32 v{V_G+g}, v{acc} offset:{L_AGG+4*u}")
        return l

    def weave(valu, ins):
        for i, x in enumerate(valu):
            for y in ins.get(i, []):
                a(y)
            a(x)
        for y in ins.get(len(valu), []):
            a(y)

    gl = 21 if safe else 17
    valu = []
    for g in range(4):
        valu += valu_group(g, 0, V_Z0, V_H0)
    mf = mf_list(1, V_Z1, V_H1)
    ins = {}
    step = 5
    for k, m in enumerate(mf):
        ins.setdefault(k * step, []).append(m)
    npar = 1 - par
    ins.setdefault(0, []).insert(0, "s_waitcnt lgkmcnt(2)")
    ins.setdefault(2, []).append(f"ds_read_b32 v{V_PS}, v{V_AP} offset:{L_POS+512*(1+par)}")
    p = 9 * step
    ins.setdefault(p - 3, []).append("s_waitcnt lgkmcnt(2)")
    ins.setdefault(p - 2, []).append(f"v_add_u32 v{V_PS}, v{V_PS}, v{V_H16}")
    l = ["s_waitcnt vmcnt(4)"]
    l.append(f"ds_read_b128 v[{V_EA}:{V_EA+3}], v{V_PS} offset:{L_STAGE}")
    for t in range(4):
        l.append(f"ds_read_b128 v[{V_XA+4*t}:{V_XA+4*t+3}], v{V_XR+t} offset:{npar*4096}")
    l.append(f"ds_read_b128 v[{V_SL}:{V_SL+3}], v{V_AS} offset:{L_SRC+512*(3+par)}")
    l.append(f"ds_read_b128 v[{V_GR}:{V_GR+3}], v{V_AG} offset:{L_GT+128*(1+par)}")
    ins.setdefault(p, []).extend(l)
    weave(valu, ins)
    valu = []
    for g in range(4):
        valu += valu_group(g, 1, V_Z1, V_H1)
    mf = mf_list(0, V_Z0, V_H0)
    ins = {}
    first = 4
    step = 6
    for k, m in enumerate(mf):
        ins.setdefault(first + k * step, []).append(m)
    ins.setdefault(first, []).insert(0, "s_waitcnt lgkmcnt(0)")
    for j in range(4):
        ins.setdefault(first + 2 + 2 * j, []).extend([
            f"s_add_u32 m0, s20, {npar*4096+j*1024}",
            f"v_xor_b32 v{V_SL+j}, v{V_SL+j}, v{V_K0}",
            f"buffer_load_dwordx4 v{V_SL+j}, s[36:39], 0 offen lds"])
    for g in range(4):
        ins.setdefault(gl * (g + 1), []).extend([
            f"v_add_u32 v{V_G+g}, v{V_GR+g}, v{V_N8}",
            f"ds_read_b64 v[{V_EV+2*g}:{V_EV+2*g+1}], v{V_G+g} offset:{L_EA}"])
    weave(valu, ins)


def gen_main(a, safe, tag):
    a(f"""
    ds_read_b128 v[{V_SL}:{V_SL+3}], v{V_AS} offset:{L_SRC}
    ds_read_b128 v[{V_GR}:{V_GR+3}], v{V_AS} offset:{L_SRC+512}
    ds_read_b128 v[{V_ACC}:{V_ACC+3}], v{V_AS} offset:{L_SRC+1024}
    ds_read_b32 v{V_PS}, v{V_AP} offset:{L_POS}
    ds_read_b128 v[{V_G}:{V_G+3}], v{V_AG} offset:{L_GT}
    s_waitcnt lgkmcnt(3)
    """)
    for b, vb in ((0, V_SL), (1, V_GR)):
        for j in range(4):
            a(f"""
            s_add_u32 m0, s20, {b*4096+j*1024}
            v_xor_b32 v{vb+j}, v{vb+j}, v{V_K0}
            buffer_load_dwordx4 v{vb+j}, s[36:39], 0 offen lds
            """)
    a(f"""
    s_waitcnt lgkmcnt(0)
    v_add_u32 v{V_PS}, v{V_PS}, v{V_H16}
    ds_read_b128 v[{V_EA}:{V_EA+3}], v{V_PS} offset:{L_STAGE}
    """)
    for g in range(4):
        a(f"""
        v_add_u32 v{V_G+g}, v{V_G+g}, v{V_N8}
        ds_read_b64 v[{V_EV+2*g}:{V_EV+2*g+1}], v{V_G+g} offset:{L_EA}
        """)
    a("s_waitcnt vmcnt(4)")
    for t in range(4):
        a(f"ds_read_b128 v[{V_XA+4*t}:{V_XA+4*t+3}], v{V_XR+t}")
    a("s_waitcnt lgkmcnt(0)")
    for j in range(4):
        a(f"""
        s_add_u32 m0, s20, {j*1024}
        v_xor_b32 v{V_ACC+j}, v{V_ACC+j}, v{V_K0}
        buffer_load_dwordx4 v{V_ACC+j}, s[36:39], 0 offen lds
        """)
    Z, H, u = V_Z0, V_H0, 0
    a(f"v_mfma_f32_32x32x16_bf16 v[{Z}:{Z+15}], v[{V_EA}:{V_EA+3}], {wfrag(16+u)}, 0")
    for t in range(4):
        a(f"v_mfma_f32_32x32x16_bf16 v[{Z}:{Z+15}], v[{V_XA+4*t}:{V_XA+4*t+3}], {wfrag(u*4+t)}, v[{Z}:{Z+15}]")
    for t in range(4):
        c = "0" if t == 0 else f"v[{H}:{H+15}]"
        a(f"v_mfma_f32_32x32x16_bf16 v[{H}:{H+15}], v[{V_XA+4*t}:{V_XA+4*t+3}], {wfrag(8+u*4+t)}, {c}")
    a("s_nop 7\ns_nop 7")
    a.lab(f"P2_LOOP{tag}")
    gen_body(a, 0, safe, tag)
    a(f"""
    s_sub_u32 s21, s21, 1
    s_cmp_eq_u32 s21, 0
    s_cbranch_scc1 P2_MAIN_DONE
    """)
    gen_body(a, 1, safe, tag)
    a(f"""
    v_add_u32 v{V_AS}, 0x400, v{V_AS}
    v_add_u32 v{V_AP}, 0x400, v{V_AP}
    v_add_u32 v{V_AG}, 0x100, v{V_AG}
    s_sub_u32 s21, s21, 1
    s_cmp_lg_u32 s21, 0
    s_cbranch_scc1 P2_LOOP{tag}
    s_branch P2_MAIN_DONE
    """)


def gen_p2():
    a = A()
    MAG = -(-(1 << 44) // MUL)
    a.lab("p2_kernel")
    a(f"""
    s_cmp_ge_u32 s2, {NB}
    s_cbranch_scc1 P2_END
    s_load_dwordx2 s[16:17], s[0:1], 0
    s_load_dwordx2 s[18:19], s[0:1], 56
    s_load_dwordx2 s[34:35], s[0:1], 72
    s_and_b32 s4, s2, 7
    s_lshl_b32 s4, s4, 7
    s_lshr_b32 s5, s2, 3
    s_add_u32 s4, s4, s5
    v_and_b32 v1, 63, v0
    v_lshrrev_b32 v5, 6, v0
    v_lshlrev_b32 v2, 5, v0
    v_lshlrev_b32 v3, 4, v0
    v_readfirstlane_b32 s3, v5
    v_lshlrev_b32 v4, 2, v0
    s_lshl_b32 s5, s4, 16
    s_add_u32 s5, s5, {MUL-1}
    s_mov_b32 s7, {MAG}
    s_mul_hi_u32 s6, s5, s7
    s_lshr_b32 s6, s6, 12
    s_add_u32 s5, s5, 0x10000
    s_mul_hi_u32 s7, s5, s7
    s_lshr_b32 s7, s7, 12
    s_min_u32 s7, s7, {N}
    s_lshl_b32 s8, s4, 13
    s_add_u32 s8, s8, {T_OFF}
    s_waitcnt lgkmcnt(0)
    """)
    a.srd(40, 34, 35, WS_SIZE)
    a(f"""
    buffer_load_dwordx4 v[8:11], v2, s[40:43], s8 offen
    buffer_load_dwordx4 v[12:15], v2, s[40:43], s8 offen offset:16
    """)
    a.srd(36, 16, 17, N * 128)
    a.srd(44, 18, 19, N * 128)
    a.srd(48, 34, 35, N * 256, AP_OFF)
    a.srd(52, 34, 35, N * 128, HU_OFF)
    a(f"""
    v_lshrrev_b32 v6, 4, v0
    v_subrev_u32 v6, s6, v6
    v_and_b32 v6, 15, v6
    v_add_u32 v6, s6, v6
    v_cmp_gt_u32 vcc, s7, v6
    v_mov_b32 v16, 0x100000
    v_and_b32 v7, 15, v0
    v_cndmask_b32 v6, v16, v6, vcc
    v_lshlrev_b32 v16, 8, v6
    v_lshl_add_u32 v16, v7, 4, v16
    v_lshlrev_b32 v6, 7, v6
    v_lshl_add_u32 v6, v7, 2, v6
    buffer_load_dwordx4 v[20:23], v16, s[48:51], 0 offen
    buffer_load_dword v24, v6, s[52:55], 0 offen
    buffer_load_dword v25, v6, s[52:55], 0 offen offset:64
    v_lshlrev_b32 v17, 4, v1
    s_mov_b32 s9, {WF_OFF}
    """)
    for f in range(18):
        if f and f % 4 == 0:
            a(f"s_add_u32 s9, s9, 4096")
        a(f"buffer_load_dwordx4 {wfrag(f)}, v17, s[40:43], s9 offen offset:{(f%4)*1024}")
    a(f"""
    s_lshl_b32 s20, s3, 13
    s_add_u32 s20, s20, {L_XB}
    v_and_b32 v26, 31, v1
    v_lshrrev_b32 v27, 5, v1
    v_lshlrev_b32 v{V_N8}, 3, v26
    v_lshlrev_b32 v{V_H16}, 4, v27
    v_and_b32 v28, 7, v1
    v_lshlrev_b32 v29, 2, v27
    v_xor_b32 v28, v28, v29
    v_lshlrev_b32 v{V_K0}, 4, v28
    v_and_b32 v28, 3, v26
    v_lshrrev_b32 v29, 2, v26
    v_lshl_add_u32 v29, v28, 3, v29
    v_lshlrev_b32 v29, 7, v29
    v_add_u32 v29, s20, v29
    v_lshrrev_b32 v30, 4, v26
    v_lshl_add_u32 v28, v30, 2, v28
    v_xor_b32 v28, v28, v27
    """)
    for t in range(4):
        a(f"""
        v_xor_b32 v30, {2*t}, v28
        v_lshl_add_u32 v{V_XR+t}, v30, 4, v29
        """)
    a(f"""
    v_mov_b32 v28, 0
    v_mov_b32 v29, 0
    v_mov_b32 v30, 0
    v_mov_b32 v31, 0
    ds_write_b128 v3, v[28:31] offset:{L_AGG}
    v_and_b32 v32, 0x1c, v4
    ds_write_b32 v32, v28 offset:{L_STAGE+L_ZROW}
    ds_write_b32 v28, v28 offset:{L_FLAG}
    s_sub_u32 s22, s6, 1
    s_and_b32 s22, s22, 15
    s_lshl_b32 s22, s22, 8
    s_mov_b32 s23, 0
    """)
    a(f"""
    v_and_b32 v32, 31, v0
    v_lshrrev_b32 v33, 5, v0
    v_lshl_add_u32 v32, v32, 3, v33
    v_cmp_gt_u32 vcc, {NCH}, v32
    v_mul_u32_u24 v19, {CH}, v32
    s_waitcnt vmcnt(21)
    v_lshrrev_b32 v17, 16, v8
    v_and_b32 v33, 0xffff, v8
    v_cndmask_b32 v17, 0, v17, vcc
    v_add_u32 v19, v19, v33
    v_cmp_lt_u32 vcc, {SLOTN}, v17
    v_mov_b32 v33, 0x100000
    s_nop 0
    v_cndmask_b32 v33, 0, v33, vcc
    v_add_u32 v18, v17, v33
    """)
    a.wave_scan(18)
    a(f"""
    s_nop 0
    v_readlane_b32 s10, v18, 63
    s_lshl_b32 s11, s3, 2
    v_mov_b32 v34, s11
    s_nop 0
    v_mov_b32 v33, s10
    ds_write_b32 v34, v33 offset:{L_WT}
    """)
    a.lab("P2_ROUND")
    a(f"""
    v_mov_b32 v28, {SENT}
    v_mov_b32 v29, {SENT}
    v_mov_b32 v30, {SENT}
    v_mov_b32 v31, {SENT}
    ds_write_b128 v3, v[28:31] offset:{L_SRC}
    v_mov_b32 v32, {L_ZROW}
    v_mov_b32 v33, {L_ZROW}
    v_mov_b32 v34, {L_ZROW}
    v_mov_b32 v35, {L_ZROW}
    ds_write_b128 v3, v[32:35] offset:{L_POS}
    v_mov_b32 v36, s22
    ds_write_b32 v4, v36 offset:{L_GT}
    v_mov_b32 v37, 0
    v_and_b32 v38, 0x3c, v4
    ds_write_b32 v38, v37 offset:{L_NCNT}
    s_cmp_lg_u32 s23, 0
    s_cbranch_scc1 P2_SLOW
    s_waitcnt lgkmcnt(0)
    s_barrier
    ds_read_b128 v[28:31], v37 offset:{L_WT}
    s_waitcnt lgkmcnt(0)
    v_readfirstlane_b32 s10, v28
    v_readfirstlane_b32 s11, v29
    v_readfirstlane_b32 s12, v30
    v_readfirstlane_b32 s13, v31
    s_add_u32 s11, s11, s10
    s_add_u32 s12, s12, s11
    s_add_u32 s13, s13, s12
    s_cmp_eq_u32 s3, 1
    s_cselect_b32 s14, s10, 0
    s_cmp_eq_u32 s3, 2
    s_cselect_b32 s14, s11, s14
    s_cmp_eq_u32 s3, 3
    s_cselect_b32 s14, s12, s14
    v_add_u32 v18, s14, v18
    v_and_b32 v18, 0xfffff, v18
    v_sub_u32 v18, v18, v17
    s_and_b32 s24, s13, 0xfffff
    s_cmp_gt_u32 s13, {CAP}
    s_cbranch_scc1 P2_SLOW
    s_mov_b32 s25, s24
    """)
    a(f"""
    v_lshlrev_b32 v32, 3, v18
    v_lshlrev_b32 v35, 5, v19
    """)
    for j in range(SLOTN):
        byte = 10 + 2 * j
        w = 8 + byte // 4
        sh = (byte % 4) * 8
        nw = 9 + (j >> 3)
        a(f"v_cmpx_lt_u32 vcc, {j}, v17")
        if j >= 3:
            a("s_cbranch_execz P2_FLAT_DONE")
        a(f"""
        v_bfe_u32 v33, v{w}, {sh}, 14
        v_bfe_u32 v34, v{nw}, {4*(j&7)}, 4
        v_lshl_or_b32 v{36+2*(j&1)}, v33, 7, v34
        v_add_u32 v{37+2*(j&1)}, {32*j}, v35
        ds_write_b64 v32, v[{36+2*(j&1)}:{37+2*(j&1)}] offset:{L_FLAT+8*j}
        """)
    a("s_branch P2_FLAT_DONE")
    a.lab("P2_SLOW")
    a(f"""
    ds_write_b32 v4, v18 offset:{L_PREF}
    ds_write_b32 v4, v19 offset:{L_GB}
    s_sub_u32 s25, s24, s23
    s_min_u32 s25, s25, {CAP}
    s_waitcnt lgkmcnt(0)
    s_barrier
    s_mov_b32 s26, 0
    """)
    a.lab("P2_SLOW_L")
    a(f"""
    v_add_u32 v28, s26, v0
    v_cmp_gt_u32 vcc, s25, v28
    s_and_saveexec_b64 s[10:11], vcc
    s_cbranch_execz P2_SLOW_N
    v_add_u32 v29, s23, v28
    v_mov_b32 v30, 0
    """)
    for bit in (128, 64, 32, 16, 8, 4, 2, 1):
        a(f"""
        v_add_u32 v31, {bit*4}, v30
        ds_read_b32 v32, v31 offset:{L_PREF}
        s_waitcnt lgkmcnt(0)
        v_cmp_le_u32 vcc, v32, v29
        s_nop 1
        v_cndmask_b32 v30, v30, v31, vcc
        """)
    a(f"""
    ds_read_b32 v32, v30 offset:{L_PREF}
    ds_read_b32 v33, v30 offset:{L_GB}
    s_waitcnt lgkmcnt(0)
    v_sub_u32 v32, v29, v32
    v_add_u32 v33, v33, v32
    v_lshlrev_b32 v32, 2, v33
    s_mov_b32 s12, {ENT_OFF}
    buffer_load_dword v34, v32, s[40:43], s12 offen
    v_lshlrev_b32 v37, 5, v33
    s_waitcnt vmcnt(0)
    v_bfe_u32 v35, v34, 0, 14
    v_bfe_u32 v34, v34, 14, 4
    v_lshl_or_b32 v36, v35, 7, v34
    v_lshlrev_b32 v28, 3, v28
    ds_write_b64 v28, v[36:37] offset:{L_FLAT}
    """)
    a.lab("P2_SLOW_N")
    a(f"""
    s_mov_b64 exec, -1
    s_add_u32 s26, s26, 256
    s_cmp_lt_u32 s26, 1024
    s_cbranch_scc1 P2_SLOW_L
    """)
    a.lab("P2_FLAT_DONE")
    a(f"""
    s_mov_b64 exec, -1
    s_waitcnt lgkmcnt(0)
    s_barrier
    """)
    a(f"""
    v_lshrrev_b32 v28, 1, v0
    v_lshlrev_b32 v29, 3, v28
    v_lshlrev_b32 v30, 3, v0
    """)
    for k in range(8):
        a(f"ds_read_b32 v{40+k}, v29 offset:{L_FLAT+4+k*1024}")
    for r in range(4):
        a(f"ds_read_b32 v{48+r}, v30 offset:{L_FLAT+r*2048}")
    a(f"""
    v_and_b32 v31, 1, v0
    v_lshlrev_b32 v31, 4, v31
    s_lshl_b32 s10, s3, 10
    s_add_u32 s10, s10, {L_STAGE}
    s_lshl_b32 s11, s3, 5
    v_mov_b32 v32, 1
    """)
    for k in range(8):
        a(f"""
        s_add_u32 s12, s11, {k*128}
        s_cmp_ge_u32 s12, s25
        s_cbranch_scc1 P2_DMA_DONE
        v_add_u32 v33, {k*128}, v28
        v_cmp_gt_u32 vcc, s25, v33
        s_add_u32 m0, s10, {k*4096}
        s_waitcnt lgkmcnt({11-k})
        v_add_u32 v{40+k}, v{40+k}, v31
        s_mov_b64 exec, vcc
        buffer_load_dwordx4 v{40+k}, s[40:43], 0 offen lds
        s_mov_b64 exec, -1
        """)
    a.lab("P2_DMA_DONE")
    a("s_waitcnt lgkmcnt(0)")
    for r in range(4):
        a(f"""
        v_add_u32 v33, {r*256}, v0
        v_cmp_gt_u32 s[{26+2*r}:{27+2*r}], s25, v33
        v_and_b32 v{52+r}, 15, v{48+r}
        v_lshlrev_b32 v{52+r}, 2, v{52+r}
        s_mov_b64 exec, s[{26+2*r}:{27+2*r}]
        ds_add_rtn_u32 v{56+r}, v{52+r}, v32 offset:{L_NCNT}
        s_mov_b64 exec, -1
        """)
    a(f"""
    s_cmp_lg_u32 s23, 0
    s_cbranch_scc1 P2_EA_DONE
    s_waitcnt vmcnt(20)
    v_max3_f32 v33, abs(v20), abs(v21), abs(v22)
    v_mov_b32 v34, 0x42700000
    v_cmp_u_f32 s[10:11], v20, v21
    v_max_f32 v33, abs(v23), v33
    v_cmp_u_f32 s[12:13], v22, v23
    v_cmp_lt_f32 vcc, v34, v33
    s_or_b64 s[10:11], s[10:11], s[12:13]
    s_or_b64 vcc, vcc, s[10:11]
    s_cbranch_vccz P2_EA_OK
    v_mov_b32 v34, 0
    ds_write_b32 v34, v32 offset:{L_FLAG}
    """)
    a.lab("P2_EA_OK")
    a.lab("P2_EA_DONE")
    a(f"""
    s_waitcnt lgkmcnt(0)
    s_barrier
    v_and_b32 v33, 15, v1
    v_lshlrev_b32 v33, 2, v33
    ds_read_b32 v34, v33 offset:{L_NCNT}
    v_mov_b32 v35, 0
    ds_read_b32 v36, v35 offset:{L_FLAG}
    s_waitcnt lgkmcnt(0)
    v_add_u32 v34, 3, v34
    v_and_b32 v34, -4, v34
    v_mov_b32 v35, v34
    v_readfirstlane_b32 s15, v36
    """)
    a.wave_scan(35, full=False)
    a(f"""
    s_nop 0
    v_readlane_b32 s12, v35, 15
    v_sub_u32 v35, v35, v34
    """)
    for r in range(4):
        a(f"ds_bpermute_b32 v{60+r}, v{52+r}, v35")
    a(f"""
    s_cmp_lg_u32 s23, 0
    s_cbranch_scc1 P2_EA2_DONE
    s_cmp_lg_u32 s15, 0
    s_cbranch_scc1 P2_EA2_W
    v_exp_f32 v20, v20
    v_exp_f32 v21, v21
    v_exp_f32 v22, v22
    v_exp_f32 v23, v23
    s_nop 0
    """)
    a.lab("P2_EA2_W")
    a(f"ds_write_b128 v3, v[20:23] offset:{L_EA}")
    a.lab("P2_EA2_DONE")
    a(f"""
    s_add_u32 s12, s12, 31
    s_lshr_b32 s12, s12, 5
    s_add_u32 s21, s12, 3
    s_sub_u32 s21, s21, s3
    s_lshr_b32 s21, s21, 2
    s_waitcnt lgkmcnt(0)
    """)
    for r in range(4):
        sl = 60 + r
        a(f"""
        s_mov_b64 exec, s[{26+2*r}:{27+2*r}]
        v_add_u32 v{sl}, v{sl}, v{56+r}
        v_and_b32 v33, 3, v{sl}
        v_and_b32 v34, 0xffffff80, v{48+r}
        v_lshl_or_b32 v34, v33, 4, v34
        v_lshlrev_b32 v33, 2, v{sl}
        ds_write_b32 v33, v34 offset:{L_SRC}
        v_add_u32 v35, {r*256*32}, v2
        ds_write_b32 v33, v35 offset:{L_POS}
        v_and_b32 v36, 0xffffffe0, v{sl}
        v_and_b32 v37, 4, v{sl}
        v_lshl_or_b32 v36, v37, 2, v36
        v_bfe_u32 v37, v{sl}, 3, 2
        v_lshl_or_b32 v36, v37, 2, v36
        v_lshlrev_b32 v37, 6, v{52+r}
        ds_write_b32 v36, v37 offset:{L_GT}
        """)
    a(f"""
    s_mov_b64 exec, -1
    s_lshl_b32 s10, s3, 7
    v_lshrrev_b32 v33, 3, v1
    v_lshlrev_b32 v33, 4, v33
    v_add_u32 v{V_AS}, s10, v33
    v_and_b32 v33, 31, v1
    v_lshlrev_b32 v33, 2, v33
    v_add_u32 v{V_AP}, s10, v33
    s_lshl_b32 s10, s3, 5
    v_add_u32 v{V_AG}, s10, v{V_H16}
    s_waitcnt vmcnt(0) lgkmcnt(0)
    s_barrier
    s_cmp_eq_u32 s21, 0
    s_cbranch_scc1 P2_MAIN_DONE
    s_cmp_lg_u32 s15, 0
    s_cbranch_scc1 P2_SAFE
    """)
    gen_main(a, False, "F")
    a.lab("P2_SAFE")
    gen_main(a, True, "S")
    a.lab("P2_MAIN_DONE")
    a(f"""
    s_waitcnt vmcnt(0) lgkmcnt(0)
    s_barrier
    s_add_u32 s23, s23, {CAP}
    s_cmp_lt_u32 s23, s24
    s_cbranch_scc1 P2_ROUND
    ds_read_b128 v[28:31], v3 offset:{L_AGG}
    v_lshlrev_b32 v32, 16, v24
    v_and_b32 v34, 0xffff0000, v24
    v_lshlrev_b32 v33, 16, v25
    v_and_b32 v35, 0xffff0000, v25
    s_waitcnt lgkmcnt(0)
    v_cvt_pk_bf16_f32 v36, v28, v30
    v_cvt_pk_bf16_f32 v37, v29, v31
    v_lshlrev_b32 v28, 16, v36
    v_and_b32 v30, 0xffff0000, v36
    v_lshlrev_b32 v29, 16, v37
    v_and_b32 v31, 0xffff0000, v37
    v_add_f32 v28, v28, v32
    v_add_f32 v29, v29, v33
    v_add_f32 v30, v30, v34
    v_add_f32 v31, v31, v35
    v_cvt_pk_bf16_f32 v36, v28, v30
    v_cvt_pk_bf16_f32 v37, v29, v31
    v_lshlrev_b32 v28, 16, v36
    v_and_b32 v30, 0xffff0000, v36
    v_lshlrev_b32 v29, 16, v37
    v_and_b32 v31, 0xffff0000, v37
    """)
    for k in range(4):
        a(f"v_mul_f32 v{32+k}, {NLOG2E:#x}, v{28+k}")
    for k in range(4):
        a(f"v_exp_f32 v{32+k}, v{32+k}")
    for k in range(4):
        a(f"v_add_f32 v{32+k}, 1.0, v{32+k}")
    for k in range(4):
        a(f"v_rcp_f32 v{32+k}, v{32+k}")
    for k in range(4):
        a(f"v_mul_f32 v{28+k}, v{28+k}, v{32+k}")
    a(f"""
    v_cvt_pk_bf16_f32 v36, v28, v30
    v_cvt_pk_bf16_f32 v37, v29, v31
    buffer_store_dword v36, v6, s[44:47], 0 offen
    buffer_store_dword v37, v6, s[44:47], 0 offen offset:64
    """)
    a.lab("P2_END")
    a("s_endpgm")
    return a.text()


HEAD = open("standalone__edge_featured_mpnn_egc__graph.s.ref").read().split("; Override launch")[0]


def kd(name, vgpr, sgpr):
    acc = (vgpr + 3) // 4 * 4
    return f""".amdhsa_kernel {name}
  .amdhsa_next_free_vgpr {vgpr}
  .amdhsa_next_free_sgpr {sgpr}
  .amdhsa_accum_offset {acc}
  .amdhsa_group_segment_fixed_size 0
  .amdhsa_kernarg_size 80
  .amdhsa_user_sgpr_count 2
  .amdhsa_user_sgpr_kernarg_segment_ptr 1
  .amdhsa_system_sgpr_workgroup_id_x 1
.end_amdhsa_kernel
"""


def main():
    out = HEAD
    out += f"; @launch kernel=p1_kernel grid=({NCH},1,1) block=(1024,1,1) lds={P1_LDS}\n"
    out += f"; @launch kernel=p2_kernel grid=({NB},1,1) block=(256,1,1) lds={P2_LDS}\n"
    out += '.amdgcn_target "amdgcn-amd-amdhsa--gfx950"\n.text\n'
    out += ".globl p1_kernel\n.p2align 8\n.type p1_kernel,@function\n" + gen_p1()
    out += ".globl p2_kernel\n.p2align 8\n.type p2_kernel,@function\n" + gen_p2()
    out += '.section .rodata,"a"\n.p2align 6\n' + kd("p1_kernel", 120, 72) + ".p2align 6\n" + kd("p2_kernel", 256, 72)
    open(sys.argv[1], "w").write(out)


main()
```

```python
import sys, struct

N = 12500; E = 800000
NCH = 250; CH = 3200
NB = 1024; MUL = 5369
SLOTN = 11
CAP = 960
NLOG2E = 0xBFB8AA3B

REC_OFF = 0
T_OFF = 0x1900000
ENT_OFF = 0x2100000
AP_OFF = 0x2500000
HU_OFF = 0x2900000
WF_OFF = 0x2B00000
WS_SIZE = 0x3000000
DBG1_OFF = 0x2C00000
DBG2_OFF = 0x2D00000

OPT = dict(p1_store="", p1_tstore="", p1_ld="nt", abl="", stamp="", prio_hi="0", prio_lo="0", prio_pro="3", xpf="1", ws_base="0", p1_sched="[[],[0,1,2],[3,4],[5,6]]")
for a in sys.argv[2:]:
    k, v = a.split("=")
    OPT[k] = v


class A:
    def __init__(self):
        self.l = []

    def __call__(self, s):
        for x in s.strip().split("\n"):
            self.l.append("    " + x.strip())

    def lab(self, s):
        self.l.append(s + ":")

    def srd(self, d, lo, hi, nrec, add=None):
        if add is None:
            self(f"s_mov_b32 s{d}, s{lo}\ns_mov_b32 s{d+1}, s{hi}")
        else:
            self(f"s_add_u32 s{d}, s{lo}, {add}\ns_addc_u32 s{d+1}, s{hi}, 0")
        self(f"s_mov_b32 s{d+2}, {nrec}\ns_mov_b32 s{d+3}, 0x20000")

    def wave_scan(self, v, full=True):
        for sh in (1, 2, 4, 8):
            self("s_nop 1")
            self(f"v_add_u32_dpp v{v}, v{v}, v{v} row_shr:{sh} row_mask:0xf bank_mask:0xf bound_ctrl:0")
        if full:
            self("s_nop 1")
            self(f"v_add_u32_dpp v{v}, v{v}, v{v} row_bcast:15 row_mask:0xa bank_mask:0xf")
            self("s_nop 1")
            self(f"v_add_u32_dpp v{v}, v{v}, v{v} row_bcast:31 row_mask:0xc bank_mask:0xf")

    def stamp(self, k):
        if OPT["stamp"]:
            self(f"s_memrealtime s[{64+2*k}:{65+2*k}]")

    def stamp_flush(self, n, srd, nw, base):
        if not OPT["stamp"]:
            return
        self(f"""
        s_waitcnt lgkmcnt(0)
        s_mov_b64 exec, -1
        s_mul_i32 s10, s2, {nw}
        s_add_u32 s10, s10, s3
        s_lshl_b32 s10, s10, 6
        s_add_u32 s10, s10, {base}
        v_mov_b32 v1, 0
        """)
        for k in range(n):
            self(f"v_mov_b32 v2, s{64+2*k}\nbuffer_store_dword v2, v1, s[{srd}:{srd+3}], s10 offen offset:{4*k}\ns_nop 1")

    def text(self):
        return "\n".join(self.l) + "\n"


P1_HIST = 0; P1_WT = 4096; P1_ENT = 4224; P1_TL = 17024; P1_STAGE = 49792
P1_LDS = P1_STAGE + CH * 32


def gen_p1():
    a = A()
    ST = OPT["p1_store"]; TST = OPT["p1_tstore"]; LD = OPT["p1_ld"]
    a.lab("p1_kernel")
    a(f"""
    s_cmp_ge_u32 s2, {NCH}
    s_cbranch_scc1 P1_END
    """)
    a.stamp(0)
    a(f"""
    s_load_dwordx16 s[16:31], s[0:1], 0
    s_load_dwordx4 s[32:35], s[0:1], 64
    v_and_b32 v1, 63, v0
    v_lshrrev_b32 v5, 6, v0
    v_lshlrev_b32 v2, 4, v0
    v_lshlrev_b32 v3, 2, v0
    v_readfirstlane_b32 s3, v5
    v_lshlrev_b32 v4, 4, v1
    v_mov_b32 v6, 0
    v_lshlrev_b32 v7, 5, v0
    v_add_u32 v7, {P1_TL}, v7
    ds_write_b32 v3, v6 offset:{P1_HIST}
    ds_write2_b32 v7, v6, v6 offset0:1 offset1:2
    s_mul_i32 s4, s2, {CH*4}
    s_mul_i32 s5, s2, {CH*32}
    v_and_b32 v24, 31, v1
    v_lshrrev_b32 v25, 5, v1
    s_waitcnt lgkmcnt(0)
    s_add_u32 s34, s34, {OPT["ws_base"]}
    s_addc_u32 s35, s35, 0
    """)
    a.srd(44, 22, 23, CH * 4, "s4")
    a.srd(40, 20, 21, CH * 4, "s4")
    a(f"""
    buffer_load_dwordx4 v[8:11], v2, s[44:47], 0 offen {LD}
    buffer_load_dwordx4 v[12:15], v2, s[40:43], 0 offen {LD}
    """)
    a.srd(36, 18, 19, CH * 32, "s5")
    a.srd(48, 34, 35, WS_SIZE)
    a.srd(52, 16, 17, N * 128)
    a.srd(56, 28, 29, 8128)
    a.srd(60, 34, 35, 0)
    a(f"""
    v_lshlrev_b32 v26, 10, v25
    v_lshl_add_u32 v26, v24, 1, v26
    v_add_u32 v27, 0x1000, v26
    s_mov_b32 s14, {NLOG2E}
    s_cmp_lt_u32 s3, 11
    s_cbranch_scc1 P1_DMA
    s_cmp_eq_u32 s3, 11
    s_cbranch_scc1 P1_FRAGLD
    """)
    a(f"""
    s_and_b32 s6, s3, 1
    s_lshl_b32 s6, s6, 6
    s_cmp_ge_u32 s3, 14
    s_cselect_b32 s56, s24, s28
    s_cselect_b32 s57, s25, s29
    s_add_u32 s56, s56, s6
    s_addc_u32 s57, s57, 0
    s_mul_i32 s7, s2, {50*128}
    v_lshlrev_b32 v28, 7, v24
    v_lshl_add_u32 v28, v25, 4, v28
    v_add_u32 v28, s7, v28
    v_add_u32 v29, 0x1000, v28
    """)
    for t in range(4):
        for jj in range(8):
            vo = 26 if t < 2 else 27
            a(f"buffer_load_ushort v{40+t*8+jj}, v{vo}, s[56:59], 0 offen offset:{(16*(t%2)+jj)*128}")
    for r in range(2):
        for t in range(4):
            b = 72 + r * 16 + t * 4
            a(f"buffer_load_dwordx4 v[{b}:{b+3}], v{28+r}, s[52:55], 0 offen offset:{t*32}")
    a("s_branch P1_DMA")
    a.lab("P1_FRAGLD")
    a(f"""
    s_cmp_ge_u32 s2, 18
    s_cbranch_scc1 P1_DMA
    s_and_b32 s6, s2, 3
    s_lshl_b32 s6, s6, 11
    s_lshr_b32 s7, s2, 2
    s_and_b32 s7, s7, 1
    s_lshl_b32 s7, s7, 6
    s_add_u32 s6, s6, s7
    s_add_u32 s7, s6, 8192
    s_cmp_ge_u32 s2, 8
    s_cselect_b32 s56, s26, s28
    s_cselect_b32 s57, s27, s29
    s_cselect_b32 s6, s6, s7
    s_cselect_b32 s14, 1.0, s14
    s_cmp_lt_u32 s2, 16
    s_cbranch_scc1 P1_FRAGLD2
    s_mov_b32 s56, s28
    s_mov_b32 s57, s29
    s_mov_b32 s14, {NLOG2E}
    s_and_b32 s6, s2, 1
    s_lshl_b32 s6, s6, 6
    s_add_u32 s6, s6, 16384
    """)
    a.lab("P1_FRAGLD2")
    a(f"""
    s_add_u32 s56, s56, s6
    s_addc_u32 s57, s57, 0
    s_mov_b32 s58, {2048-64}
    """)
    for jj in range(8):
        a(f"buffer_load_ushort v{40+jj}, v26, s[56:59], 0 offen offset:{jj*128}")
    a.lab("P1_DMA")
    a("s_lshl_b32 s15, s3, 10")

    def dma(ks):
        for k in ks:
            if k == 6:
                a("s_cmp_ge_u32 s3, 4\ns_cbranch_scc1 P1_DMA_DONE")
            a(f"""
            s_add_u32 s7, s15, {k*16384}
            s_add_u32 m0, s7, {P1_STAGE}
            s_nop 0
            buffer_load_dwordx4 v4, s[36:39], s7 offen {LD} lds
            """)
            if k == 6:
                a.lab("P1_DMA_DONE")
    sched = eval(OPT["p1_sched"])
    dma(sched[0])
    a(f"""
    s_barrier
    v_cmp_gt_u32 vcc, {CH//4}, v0
    s_mov_b64 s[8:9], vcc
    v_mov_b32 v30, 1
    s_waitcnt vmcnt({len(sched[0])})
    """)
    a.stamp(1)
    a(f"""
    s_mov_b64 exec, s[8:9]
    s_cbranch_execz P1_H_DONE
    """)
    for e in range(4):
        a(f"""
        v_mul_u32_u24 v{16+e}, {MUL}, v{8+e}
        v_lshrrev_b32 v{16+e}, 16, v{16+e}
        v_lshlrev_b32 v{16+e}, 2, v{16+e}
        ds_add_rtn_u32 v{20+e}, v{16+e}, v30 offset:{P1_HIST}
        """)
    a("s_waitcnt lgkmcnt(0)")
    a.lab("P1_H_DONE")
    a("s_mov_b64 exec, -1")
    dma(sched[1])
    a.stamp(8)
    a(f"""
    s_barrier
    """)
    a.stamp(9)
    a(f"""
    ds_read_b32 v31, v3 offset:{P1_HIST}
    s_waitcnt lgkmcnt(0)
    v_mov_b32 v32, v31
    """)
    a.wave_scan(32)
    a(f"""
    s_nop 0
    v_readlane_b32 s6, v32, 63
    s_lshl_b32 s7, s3, 2
    v_mov_b32 v34, s7
    s_nop 0
    v_mov_b32 v33, s6
    ds_write_b32 v34, v33 offset:{P1_WT}
    s_waitcnt lgkmcnt(0)
    s_barrier
    v_and_b32 v34, 15, v1
    v_lshlrev_b32 v35, 2, v34
    ds_read_b32 v33, v35 offset:{P1_WT}
    v_cmp_gt_u32 vcc, s3, v34
    s_waitcnt lgkmcnt(0)
    s_nop 0
    v_cndmask_b32 v33, 0, v33, vcc
    """)
    a.wave_scan(33, full=False)
    a(f"""
    s_nop 0
    v_readlane_b32 s6, v33, 15
    v_sub_u32 v32, v32, v31
    s_nop 0
    v_add_u32 v32, s6, v32
    v_lshl_or_b32 v33, v31, 16, v32
    ds_write_b32 v3, v32 offset:{P1_HIST}
    ds_write_b32 v7, v33
    """)
    dma(sched[2])
    a(f"""
    s_waitcnt lgkmcnt(0)
    s_barrier
    """)
    a.stamp(10)
    a(f"""
    s_mov_b64 exec, s[8:9]
    s_cbranch_execz P1_S_DONE
    """)
    for e in range(4):
        a(f"ds_read_b32 v{32+e}, v{16+e} offset:{P1_HIST}")
    for e in range(4):
        a(f"""
        v_and_b32 v{8+e}, 15, v{8+e}
        v_lshl_or_b32 v{36+e}, v{8+e}, 14, v{12+e}
        v_add_u32 v31, {e}, v3
        v_lshl_or_b32 v{36+e}, v31, 18, v{36+e}
        """)
    a("s_waitcnt lgkmcnt(0)")
    for e in range(4):
        a(f"""
        v_add_lshl_u32 v{32+e}, v{32+e}, v{20+e}, 2
        ds_write_b32 v{32+e}, v{36+e} offset:{P1_ENT}
        """)
    for e in range(4):
        a(f"""
        v_lshlrev_b32 v{16+e}, 3, v{16+e}
        v_lshl_add_u32 v{32+e}, v{20+e}, 1, v{16+e}
        v_lshrrev_b32 v31, 3, v{20+e}
        v_lshl_add_u32 v{16+e}, v31, 2, v{16+e}
        v_and_b32 v31, 7, v{20+e}
        v_lshlrev_b32 v31, 2, v31
        v_lshlrev_b32 v{8+e}, v31, v{8+e}
        """)
    for e in range(4):
        a(f"""
        v_cmp_gt_u32 vcc, {SLOTN}, v{20+e}
        s_and_b64 exec, s[8:9], vcc
        ds_write_b16 v{32+e}, v{12+e} offset:{P1_TL+10}
        ds_or_b32 v{16+e}, v{8+e} offset:{P1_TL+4}
        s_mov_b64 exec, s[8:9]
        """)
    a("s_waitcnt lgkmcnt(0)")
    a.lab("P1_S_DONE")
    a("s_mov_b64 exec, -1")
    dma(sched[3])
    a.stamp(11)
    a(f"""
    s_barrier
    """)
    a.stamp(2)
    a(f"""
    ds_read_b128 v[8:11], v2 offset:{P1_TL}
    ds_read_b128 v[12:15], v2 offset:{P1_TL+16384}
    ds_read_b128 v[16:19], v2 offset:{P1_ENT}
    s_and_b32 s6, s2, 7
    s_lshl_b32 s6, s6, 5
    s_lshr_b32 s7, s2, 3
    s_add_u32 s6, s6, s7
    s_lshl_b32 s6, s6, 5
    s_add_u32 s6, s6, {T_OFF}
    s_add_u32 s7, s6, {512*8192}
    s_add_u32 s10, s4, {ENT_OFF}
    v_lshrrev_b32 v20, 1, v0
    v_and_b32 v21, 1, v0
    v_lshlrev_b32 v21, 4, v21
    v_lshl_or_b32 v22, v20, 13, v21
    v_lshlrev_b32 v20, 2, v20
    s_waitcnt lgkmcnt(2)
    buffer_store_dwordx4 v[8:11], v22, s[48:51], s6 offen {TST}
    s_waitcnt lgkmcnt(1)
    buffer_store_dwordx4 v[12:15], v22, s[48:51], s7 offen {TST}
    s_waitcnt lgkmcnt(0)
    s_mov_b64 exec, s[8:9]
    s_cbranch_execz P1_E_DONE
    buffer_store_dwordx4 v[16:19], v2, s[48:51], s10 offen {ST}
    """)
    a.lab("P1_E_DONE")
    a("s_mov_b64 exec, -1")
    for i in range(7):
        a(f"ds_read_b32 v{30+i}, v20 offset:{P1_ENT+i*2048}")
    a(f"""
    s_cmp_lt_u32 s3, 11
    s_cbranch_scc1 P1_OUT
    s_cmp_eq_u32 s3, 11
    s_cbranch_scc1 P1_FRAG
    """)
    for q in range(16):
        a(f"v_lshl_or_b32 v{40+q}, v{40+2*q+1}, 16, v{40+2*q}")
    a("s_nop 1")
    for r in range(2):
        d = 104 if r == 0 else 56
        for t in range(4):
            c = "0" if t == 0 else f"v[{d}:{d+15}]"
            a(f"v_mfma_f32_32x32x16_bf16 v[{d}:{d+15}], v[{72+r*16+t*4}:{72+r*16+t*4+3}], v[{40+t*4}:{40+t*4+3}], {c}")
    a(f"""
    s_and_b32 s6, s3, 1
    s_cmp_ge_u32 s3, 14
    s_cbranch_scc1 P1_HU
    s_mul_i32 s7, s2, {50*256}
    s_add_u32 s7, s7, {AP_OFF}
    s_lshl_b32 s6, s6, 2
    s_add_u32 s60, s34, s7
    s_addc_u32 s61, s35, 0
    s_mov_b32 s62, {50*256}
    v_lshlrev_b32 v28, 3, v24
    v_lshl_add_u32 v28, v25, 10, v28
    v_add_u32 v28, s6, v28
    s_nop 7
    s_nop 7
    """)
    for r in range(2):
        d = 104 if r == 0 else 56
        for i in range(16):
            a(f"v_mul_f32 v{d+i}, {NLOG2E:#x}, v{d+i}")
        for i in range(16):
            row = 32 * r + 8 * (i // 4) + (i % 4)
            if row >= 50:
                continue
            off = row * 256
            a(f"s_mov_b32 s7, {off}")
            a(f"buffer_store_dword v{d+i}, v28, s[60:63], s7 offen")
    a("s_branch P1_OUT")
    a.lab("P1_HU")
    a(f"""
    s_mul_i32 s7, s2, {50*128}
    s_add_u32 s7, s7, {HU_OFF}
    s_lshl_b32 s6, s6, 6
    s_add_u32 s60, s34, s7
    s_addc_u32 s61, s35, 0
    s_mov_b32 s62, {50*128}
    v_lshlrev_b32 v28, 1, v24
    v_lshl_add_u32 v28, v25, 9, v28
    v_add_u32 v28, s6, v28
    s_nop 7
    s_nop 7
    """)
    for r in range(2):
        d = 104 if r == 0 else 56
        for i in range(16):
            a(f"v_cvt_pk_bf16_f32 v{d+i}, v{d+i}, v{d+i}")
        for i in range(16):
            row = 32 * r + 8 * (i // 4) + (i % 4)
            if row >= 50:
                continue
            off = row * 128
            a(f"s_mov_b32 s7, {off}")
            a(f"buffer_store_short v{d+i}, v28, s[60:63], s7 offen")
    a("s_branch P1_OUT")
    a.lab("P1_FRAG")
    a("s_cmp_ge_u32 s2, 18\ns_cbranch_scc1 P1_OUT")
    for jj in range(8):
        a(f"v_lshlrev_b32 v{40+jj}, 16, v{40+jj}")
    for jj in range(8):
        a(f"v_mul_f32 v{40+jj}, s14, v{40+jj}")
    for q in range(4):
        a(f"v_cvt_pk_bf16_f32 v{48+q}, v{40+2*q}, v{40+2*q+1}")
    a(f"""
    s_lshl_b32 s6, s2, 10
    s_add_u32 s6, s6, {WF_OFF}
    buffer_store_dwordx4 v[48:51], v4, s[48:51], s6 offen
    """)
    a.lab("P1_OUT")
    a("s_waitcnt lgkmcnt(0)")
    for i in range(7):
        a(f"""
        v_lshrrev_b32 v{30+i}, 18, v{30+i}
        v_lshl_or_b32 v{30+i}, v{30+i}, 5, v21
        """)
    a(f"""
    s_add_u32 s6, s5, {REC_OFF}
    """)
    a.stamp(3)
    a("s_waitcnt vmcnt(0)")
    a.stamp(4)
    a("s_barrier")
    a.stamp(5)
    for i in range(6):
        a(f"ds_read_b128 v[{64+4*i}:{64+4*i+3}], v{30+i} offset:{P1_STAGE}")
    a("s_cmp_ge_u32 s3, 4\ns_cbranch_scc1 P1_O2")
    a(f"""
    ds_read_b128 v[88:91], v36 offset:{P1_STAGE}
    s_add_u32 s7, s6, {6*16384}
    s_waitcnt lgkmcnt(0)
    buffer_store_dwordx4 v[88:91], v2, s[48:51], s7 offen {ST}
    """)
    a.lab("P1_O2")
    for i in range(6):
        a(f"""
        s_add_u32 s7, s6, {i*16384}
        s_waitcnt lgkmcnt({5-i})
        buffer_store_dwordx4 v[{64+4*i}:{64+4*i+3}], v2, s[48:51], s7 offen {ST}
        """)
    a.stamp(6)
    if OPT["stamp"]:
        a("s_waitcnt vmcnt(0)")
    a.stamp(7)
    a.stamp_flush(12, 48, 16, DBG1_OFF)
    a.lab("P1_END")
    a("s_endpgm")
    return a.text()


L_SRC = 0; L_POS = 4096; L_GT = 6144; L_GM = 7168; L_EA = 8192; L_ACC = 12288; L_MISC = 18176
L_NCNT = L_MISC; L_WT = L_MISC + 64; L_FLAG = L_MISC + 96
L_STAGE = L_MISC + 128
L_ZROW = CAP * 32
L_XB = L_STAGE + CAP * 32 + 32
L_FLAT = L_XB; L_PREF = L_XB + 8192; L_GB = L_XB + 8192 + 2048
P2_LDS = L_XB + 32768
assert P2_LDS <= 81920, P2_LDS
SENT = 0x40000000

V_W = 184
V_Z0 = 64; V_H0 = 80; V_Z1 = 96; V_H1 = 112
V_XA = (128, 28); V_EA = (144, 44)
V_G = 148; V_GR = 152; V_EV = 156
V_SL = 164
V_ACC = (168, 52)
V_XR = 172
V_PS = 176
V_AS = 177; V_AP = 178; V_AG = 179
V_K0 = 180; V_N8 = 181; V_H16 = 182; V_N8H = 183
V_GE = 60
V_GM = 48
V_RUN = 56


def wfrag(f):
    return f"v[{V_W+4*f}:{V_W+4*f+3}]"


def mf_list(u, Z, H, par):
    xa = V_XA[par]; ea = V_EA[par]
    l = []
    l.append(f"v_mfma_f32_32x32x16_bf16 v[{Z}:{Z+15}], v[{ea}:{ea+3}], {wfrag(16+u)}, 0")
    for t in range(4):
        l.append(f"v_mfma_f32_32x32x16_bf16 v[{Z}:{Z+15}], v[{xa+4*t}:{xa+4*t+3}], {wfrag(u*4+t)}, v[{Z}:{Z+15}]")
    for t in range(4):
        c = "0" if t == 0 else f"v[{H}:{H+15}]"
        l.append(f"v_mfma_f32_32x32x16_bf16 v[{H}:{H+15}], v[{xa+4*t}:{xa+4*t+3}], {wfrag(8+u*4+t)}, {c}")
    return l


def body(par, safe):
    out = []
    npar = 1 - par
    PH = OPT["prio_hi"]; PL = OPT["prio_lo"]

    def run(instrs, ins):
        for k, x in enumerate(instrs):
            out.extend(ins.get(k, []))
            out.append(x)
        out.extend(ins.get(len(instrs), []))

    def half(u, Z, H, mf, insE, insF, insR, insM):
        ev = lambda i: V_EV + 2 * (i // 4) + u
        for k in range(5):
            insE.setdefault(1 + 3 * k, []).append(mf[k])
        for k in range(4):
            insR.setdefault(1 + 3 * k, []).append(mf[5 + k])
        if safe:
            if u == 0:
                out.append(("W", "ev3"))
            out.extend(f"v_add_f32 v{Z+i}, v{ev(i)}, v{Z+i}" for i in range(16))
        out.append(f"s_setprio {PH}")
        run([f"v_exp_f32 v{Z+i}, v{Z+i}" for i in range(16)], insE)
        out.append(f"s_setprio {PL}")
        if safe:
            run([f"v_add_f32 v{Z+i}, 1.0, v{Z+i}" for i in range(16)], insF)
        else:
            run([f"v_fma_f32 v{Z+i}, v{Z+i}, v{ev(i)}, 1.0" for i in range(16)], insF)
        out.append(f"s_setprio {PH}")
        run([f"v_rcp_f32 v{Z+i}, v{Z+i}" for i in range(16)], insR)
        out.append(f"s_setprio {PL}")
        m = []
        A_ = V_ACC[u]
        for g in range(4):
            m.append(f"v_and_b32 v{A_+g}, v{A_+(g+3)%4}, v{V_GM+g}")
            m += [f"v_fmac_f32 v{A_+g}, v{Z+4*g+k}, v{H+4*g+k}" for k in range(4)]
            insM.setdefault(5 * (g + 1), []).insert(0, ("L", f"ds_write_b32 v{V_G+g}, v{A_+g} offset:{L_ACC+4*u}", None))
        run(m, insM)

    out.append(("L", f"ds_read_b128 v[{V_GM}:{V_GM+3}], v{V_AG} offset:{L_GM+128*par}", "gm"))
    xa = V_XA[npar]; ea = V_EA[npar]
    l = ["s_waitcnt vmcnt(4)"]
    l.append(("L", f"ds_read_b128 v[{ea}:{ea+3}], v{V_PS} offset:{L_STAGE}", "ea"))
    for t in range(4):
        l.append(("L", f"ds_read_b128 v[{xa+4*t}:{xa+4*t+3}], v{V_XR+t} offset:{npar*4096}", f"xa{t}"))
    l.append(("L", f"ds_read_b128 v[{V_SL}:{V_SL+3}], v{V_AS} offset:{L_SRC+512*(3+par)}", "sl"))
    insE = {8: l}
    insF = {0: [f"v_add_u32 v{V_G+g}, v{V_GR+g}, v{V_N8H}" for g in range(4)] + ([] if safe else [("W", "ev3")])}
    insR = {2: [("L", f"ds_read_b128 v[{V_GR}:{V_GR+3}], v{V_AG} offset:{L_GT+128*(1+par)}", "gr"),
                ("L", f"ds_read_u16 v{V_PS}, v{V_AP} offset:{L_POS+256*(2+par)}", "pos")]}
    l = ["s_cmp_gt_u32 s21, 3", "s_cselect_b32 s38, s19, 0", ("W", "sl")]
    for j in range(4):
        l += [f"s_add_u32 m0, s20, {npar*4096+j*1024}",
              f"v_xor_b32 v{V_SL+j}, v{V_SL+j}, v{V_K0}",
              f"buffer_load_dwordx4 v{V_SL+j}, s[36:39], 0 offen lds"]
    insM = {0: l}
    half(0, V_Z0, V_H0, mf_list(1, V_Z1, V_H1, par), insE, insF, insR, insM)
    l = [("W", "pos")]
    for g in range(4):
        l += [f"v_add_u32 v{V_GE+g}, v{V_GR+g}, v{V_N8}",
              ("L", f"ds_read_b64 v[{V_EV+2*g}:{V_EV+2*g+1}], v{V_GE+g} offset:{L_EA}", f"ev{g}")]
    l.append(f"v_add_u32 v{V_PS}, v{V_PS}, v{V_H16}")
    insF = {16: l}
    half(1, V_Z1, V_H1, mf_list(0, V_Z0, V_H0, npar), {}, insF, {}, {})
    if "nomfma" in OPT["abl"]:
        out = [x for x in out if not (isinstance(x, str) and "mfma" in x)]
    if "novalu" in OPT["abl"]:
        out = [x for x in out if not (isinstance(x, str) and any(k in x for k in ("v_exp", "v_rcp", "v_fma", "v_fmac")))]
    return out


def resolve(prev, cur):
    seq = prev + cur
    res = []
    for i, x in enumerate(seq):
        if i < len(prev):
            continue
        if isinstance(x, str):
            res.append(x)
        elif x[0] == "L":
            res.append(x[1])
        else:
            n = 0
            k = i - 1
            while not (isinstance(seq[k], tuple) and seq[k][0] == "L" and seq[k][2] == x[1]):
                if isinstance(seq[k], tuple) and seq[k][0] == "L":
                    n += 1
                k -= 1
                assert k >= 0, x
            res.append(f"s_waitcnt lgkmcnt({min(n, 15)})")
    return res


def gen_main(a, safe, tag):
    xa = V_XA[0]; ea = V_EA[0]
    a(f"""
    ds_read_b128 v[{V_SL}:{V_SL+3}], v{V_AS} offset:{L_SRC}
    ds_read_b128 v[{V_G}:{V_G+3}], v{V_AS} offset:{L_SRC+512}
    ds_read_b128 v[{V_GM}:{V_GM+3}], v{V_AS} offset:{L_SRC+1024}
    ds_read_u16 v{V_GE}, v{V_AP} offset:{L_POS}
    ds_read_u16 v{V_PS}, v{V_AP} offset:{L_POS+256}
    ds_read_b128 v[{V_GR}:{V_GR+3}], v{V_AG} offset:{L_GT}
    s_mov_b32 s38, s19
    v_mov_b32 v{V_ACC[0]+3}, 0
    v_mov_b32 v{V_ACC[1]+3}, 0
    s_waitcnt lgkmcnt(4)
    """)
    for b, vb in ((0, V_SL), (1, V_G)):
        for j in range(4):
            a(f"""
            s_add_u32 m0, s20, {b*4096+j*1024}
            v_xor_b32 v{vb+j}, v{vb+j}, v{V_K0}
            buffer_load_dwordx4 v{vb+j}, s[36:39], 0 offen lds
            """)
    a(f"""
    s_waitcnt lgkmcnt(0)
    v_add_u32 v{V_GE}, v{V_GE}, v{V_H16}
    v_add_u32 v{V_PS}, v{V_PS}, v{V_H16}
    ds_read_b128 v[{ea}:{ea+3}], v{V_GE} offset:{L_STAGE}
    """)
    for g in range(4):
        a(f"""
        v_add_u32 v{V_GE+g}, v{V_GR+g}, v{V_N8}
        ds_read_b64 v[{V_EV+2*g}:{V_EV+2*g+1}], v{V_GE+g} offset:{L_EA}
        """)
    a("s_waitcnt vmcnt(4)")
    for t in range(4):
        a(f"ds_read_b128 v[{xa+4*t}:{xa+4*t+3}], v{V_XR+t}")
    a("s_waitcnt lgkmcnt(0)")
    for j in range(4):
        a(f"""
        s_add_u32 m0, s20, {j*1024}
        v_xor_b32 v{V_GM+j}, v{V_GM+j}, v{V_K0}
        buffer_load_dwordx4 v{V_GM+j}, s[36:39], 0 offen lds
        """)
    for m in mf_list(0, V_Z0, V_H0, 0):
        a(m)
    a("s_nop 7\ns_nop 7")
    b0 = body(0, safe); b1 = body(1, safe)
    a.lab(f"P2_LOOP{tag}")
    for x in resolve(b1, b0):
        a(x)
    a(f"""
    s_sub_u32 s21, s21, 1
    s_cmp_eq_u32 s21, 0
    s_cbranch_scc1 P2_MAIN_DONE
    """)
    for x in resolve(b0, b1):
        a(x)
    a(f"""
    v_add_u32 v{V_AS}, 0x400, v{V_AS}
    v_add_u32 v{V_AP}, 0x200, v{V_AP}
    v_add_u32 v{V_AG}, 0x100, v{V_AG}
    s_sub_u32 s21, s21, 1
    s_cmp_lg_u32 s21, 0
    s_cbranch_scc1 P2_LOOP{tag}
    s_branch P2_MAIN_DONE
    """)


def gen_p2():
    a = A()
    MAG = -(-(1 << 44) // MUL)
    a.lab("p2_kernel")
    a(f"""
    s_cmp_ge_u32 s2, {NB}
    s_cbranch_scc1 P2_END
    s_setprio {OPT["prio_pro"]}
    """)
    a.stamp(0)
    a(f"""
    s_load_dwordx2 s[16:17], s[0:1], 0
    s_load_dwordx2 s[18:19], s[0:1], 56
    s_load_dwordx2 s[34:35], s[0:1], 72
    s_and_b32 s4, s2, 7
    s_lshl_b32 s4, s4, 7
    s_lshr_b32 s5, s2, 3
    s_add_u32 s4, s4, s5
    v_and_b32 v1, 63, v0
    v_lshrrev_b32 v5, 6, v0
    v_lshlrev_b32 v2, 5, v0
    v_lshlrev_b32 v3, 4, v0
    v_readfirstlane_b32 s3, v5
    v_lshlrev_b32 v4, 2, v0
    s_lshl_b32 s5, s4, 16
    s_add_u32 s5, s5, {MUL-1}
    s_mov_b32 s7, {MAG}
    s_mul_hi_u32 s6, s5, s7
    s_lshr_b32 s6, s6, 12
    s_add_u32 s5, s5, 0x10000
    s_mul_hi_u32 s7, s5, s7
    s_lshr_b32 s7, s7, 12
    s_min_u32 s7, s7, {N}
    s_lshl_b32 s8, s4, 13
    s_add_u32 s8, s8, {T_OFF}
    s_waitcnt lgkmcnt(0)
    s_add_u32 s34, s34, {OPT["ws_base"]}
    s_addc_u32 s35, s35, 0
    """)
    a.srd(40, 34, 35, WS_SIZE)
    a(f"""
    buffer_load_dwordx4 v[8:11], v2, s[40:43], s8 offen
    buffer_load_dwordx4 v[12:15], v2, s[40:43], s8 offen offset:16
    """)
    a.srd(36, 16, 17, N * 128)
    a.srd(44, 18, 19, N * 128)
    a.srd(48, 34, 35, N * 256, AP_OFF)
    a.srd(52, 34, 35, N * 128, HU_OFF)
    a(f"""
    s_mov_b32 s19, {0 if "nox" in OPT["abl"] else N*128}
    v_lshrrev_b32 v6, 4, v0
    v_subrev_u32 v6, s6, v6
    v_and_b32 v6, 15, v6
    v_add_u32 v6, s6, v6
    v_cmp_gt_u32 vcc, s7, v6
    v_mov_b32 v16, 0x100000
    v_and_b32 v7, 15, v0
    v_cndmask_b32 v6, v16, v6, vcc
    v_lshlrev_b32 v16, 8, v6
    v_lshl_add_u32 v16, v7, 4, v16
    v_lshlrev_b32 v6, 7, v6
    v_lshl_add_u32 v6, v7, 2, v6
    buffer_load_dwordx4 v[20:23], v16, s[48:51], 0 offen
    buffer_load_dword v24, v6, s[52:55], 0 offen
    buffer_load_dword v25, v6, s[52:55], 0 offen offset:64
    v_lshlrev_b32 v17, 4, v1
    s_mov_b32 s9, {WF_OFF}
    """)
    for f in range(18):
        if f and f % 4 == 0:
            a(f"s_add_u32 s9, s9, 4096")
        a(f"buffer_load_dwordx4 {wfrag(f)}, v17, s[40:43], s9 offen offset:{(f%4)*1024}")
    a(f"""
    s_lshl_b32 s20, s3, 13
    s_add_u32 s20, s20, {L_XB}
    v_and_b32 v26, 31, v1
    v_lshrrev_b32 v27, 5, v1
    v_lshlrev_b32 v{V_N8}, 3, v26
    v_lshlrev_b32 v{V_H16}, 4, v27
    v_lshrrev_b32 v28, 5, v0
    v_lshl_add_u32 v{V_N8H}, v28, 8, v{V_N8}
    v_and_b32 v28, 7, v1
    v_lshlrev_b32 v29, 2, v27
    v_xor_b32 v28, v28, v29
    v_lshlrev_b32 v{V_K0}, 4, v28
    v_and_b32 v28, 3, v26
    v_lshrrev_b32 v29, 2, v26
    v_lshl_add_u32 v29, v28, 3, v29
    v_lshlrev_b32 v29, 7, v29
    v_add_u32 v29, s20, v29
    v_lshrrev_b32 v30, 4, v26
    v_lshl_add_u32 v28, v30, 2, v28
    v_xor_b32 v28, v28, v27
    """)
    for t in range(4):
        a(f"""
        v_xor_b32 v30, {2*t}, v28
        v_lshl_add_u32 v{V_XR+t}, v30, 4, v29
        """)
    a(f"""
    v_mov_b32 v28, 0
    v_and_b32 v32, 0x1c, v4
    ds_write_b32 v32, v28 offset:{L_STAGE+L_ZROW}
    ds_write_b32 v28, v28 offset:{L_FLAG}
    v_mov_b32 v{V_RUN}, 0
    v_mov_b32 v{V_RUN+1}, 0
    v_mov_b32 v{V_RUN+2}, 0
    v_mov_b32 v{V_RUN+3}, 0
    s_mov_b32 s23, 0
    """)
    a.lab("P2_ROUND")
    a(f"""
    v_mov_b32 v28, {SENT}
    v_mov_b32 v29, {SENT}
    v_mov_b32 v30, {SENT}
    v_mov_b32 v31, {SENT}
    ds_write_b128 v3, v[28:31] offset:{L_SRC}
    v_mov_b32 v32, {L_ZROW*0x10001}
    v_mov_b32 v33, {L_ZROW*0x10001}
    v_lshlrev_b32 v34, 3, v0
    ds_write_b64 v34, v[32:33] offset:{L_POS}
    v_mov_b32 v36, {15*256}
    ds_write_b32 v4, v36 offset:{L_GT}
    v_mov_b32 v36, -1
    ds_write_b32 v4, v36 offset:{L_GM}
    v_mov_b32 v40, 0
    v_and_b32 v38, 0x3c, v4
    ds_write_b32 v38, v40 offset:{L_NCNT}
    s_cmp_lg_u32 s23, 0
    s_cbranch_scc1 P2_SLOW
    """)
    a(f"""
    v_and_b32 v32, 31, v0
    v_lshrrev_b32 v33, 5, v0
    v_lshl_add_u32 v32, v32, 3, v33
    v_cmp_gt_u32 vcc, {NCH}, v32
    v_mul_u32_u24 v19, {CH}, v32
    s_waitcnt vmcnt(21)
    """)
    a.stamp(1)
    a(f"""
    v_lshrrev_b32 v17, 16, v8
    v_and_b32 v33, 0xffff, v8
    v_cndmask_b32 v17, 0, v17, vcc
    v_add_u32 v19, v19, v33
    v_cmp_lt_u32 vcc, {SLOTN}, v17
    v_mov_b32 v33, 0x100000
    s_nop 0
    v_cndmask_b32 v33, 0, v33, vcc
    v_add_u32 v18, v17, v33
    """)
    a.wave_scan(18)
    a(f"""
    s_nop 0
    v_readlane_b32 s10, v18, 63
    s_lshl_b32 s11, s3, 2
    v_mov_b32 v34, s11
    s_nop 0
    v_mov_b32 v33, s10
    ds_write_b32 v34, v33 offset:{L_WT}
    s_waitcnt lgkmcnt(0)
    s_barrier
    ds_read_b128 v[28:31], v40 offset:{L_WT}
    s_waitcnt lgkmcnt(0)
    v_readfirstlane_b32 s10, v28
    v_readfirstlane_b32 s11, v29
    v_readfirstlane_b32 s12, v30
    v_readfirstlane_b32 s13, v31
    s_add_u32 s11, s11, s10
    s_add_u32 s12, s12, s11
    s_add_u32 s13, s13, s12
    s_cmp_eq_u32 s3, 1
    s_cselect_b32 s14, s10, 0
    s_cmp_eq_u32 s3, 2
    s_cselect_b32 s14, s11, s14
    s_cmp_eq_u32 s3, 3
    s_cselect_b32 s14, s12, s14
    v_add_u32 v18, s14, v18
    v_and_b32 v18, 0xfffff, v18
    v_sub_u32 v18, v18, v17
    s_and_b32 s24, s13, 0xfffff
    s_cmp_gt_u32 s13, {CAP}
    s_cbranch_scc1 P2_SLOW
    s_mov_b32 s25, s24
    """)
    a(f"""
    v_lshlrev_b32 v32, 3, v18
    v_lshlrev_b32 v35, 5, v19
    """)
    for j in range(SLOTN):
        byte = 10 + 2 * j
        w = 8 + byte // 4
        sh = (byte % 4) * 8
        nw = 9 + (j >> 3)
        a(f"v_cmpx_lt_u32 vcc, {j}, v17")
        if j >= 3:
            a("s_cbranch_execz P2_FLAT_DONE")
        a(f"""
        v_bfe_u32 v33, v{w}, {sh}, 14
        v_bfe_u32 v34, v{nw}, {4*(j&7)}, 4
        v_lshl_or_b32 v{36+2*(j&1)}, v33, 7, v34
        v_add_u32 v{37+2*(j&1)}, {32*j}, v35
        ds_write_b64 v32, v[{36+2*(j&1)}:{37+2*(j&1)}] offset:{L_FLAT+8*j}
        """)
    a("s_branch P2_FLAT_DONE")
    a.lab("P2_SLOW")
    a(f"""
    ds_write_b32 v4, v18 offset:{L_PREF}
    ds_write_b32 v4, v19 offset:{L_GB}
    s_sub_u32 s25, s24, s23
    s_min_u32 s25, s25, {CAP}
    s_waitcnt lgkmcnt(0)
    s_barrier
    s_mov_b32 s26, 0
    """)
    a.lab("P2_SLOW_L")
    a(f"""
    v_add_u32 v28, s26, v0
    v_cmp_gt_u32 vcc, s25, v28
    s_and_saveexec_b64 s[10:11], vcc
    s_cbranch_execz P2_SLOW_N
    v_add_u32 v29, s23, v28
    v_mov_b32 v30, 0
    """)
    for bit in (128, 64, 32, 16, 8, 4, 2, 1):
        a(f"""
        v_add_u32 v31, {bit*4}, v30
        ds_read_b32 v32, v31 offset:{L_PREF}
        s_waitcnt lgkmcnt(0)
        v_cmp_le_u32 vcc, v32, v29
        s_nop 1
        v_cndmask_b32 v30, v30, v31, vcc
        """)
    a(f"""
    ds_read_b32 v32, v30 offset:{L_PREF}
    ds_read_b32 v33, v30 offset:{L_GB}
    s_waitcnt lgkmcnt(0)
    v_sub_u32 v32, v29, v32
    v_add_u32 v33, v33, v32
    v_lshlrev_b32 v32, 2, v33
    s_mov_b32 s12, {ENT_OFF}
    buffer_load_dword v34, v32, s[40:43], s12 offen
    v_lshlrev_b32 v37, 5, v33
    s_waitcnt vmcnt(0)
    v_bfe_u32 v35, v34, 0, 14
    v_bfe_u32 v34, v34, 14, 4
    v_lshl_or_b32 v36, v35, 7, v34
    v_lshlrev_b32 v28, 3, v28
    ds_write_b64 v28, v[36:37] offset:{L_FLAT}
    """)
    a.lab("P2_SLOW_N")
    a(f"""
    s_mov_b64 exec, -1
    s_add_u32 s26, s26, 256
    s_cmp_lt_u32 s26, 1024
    s_cbranch_scc1 P2_SLOW_L
    """)
    a.lab("P2_FLAT_DONE")
    a(f"""
    s_mov_b64 exec, -1
    s_waitcnt lgkmcnt(0)
    s_barrier
    """)
    a.stamp(2)
    a(f"""
    v_lshrrev_b32 v28, 1, v0
    v_lshlrev_b32 v29, 3, v28
    v_lshlrev_b32 v30, 3, v0
    """)
    for k in range(8):
        a(f"ds_read_b32 v{40+k}, v29 offset:{L_FLAT+4+k*1024}")
    for r in range(4):
        a(f"ds_read_b32 v{48+r}, v30 offset:{L_FLAT+r*2048}")
    a(f"""
    v_and_b32 v31, 1, v0
    v_lshlrev_b32 v31, 4, v31
    s_lshl_b32 s10, s3, 10
    s_add_u32 s10, s10, {L_STAGE}
    s_lshl_b32 s11, s3, 5
    v_mov_b32 v32, 1
    """)
    for k in range(8):
        a(f"""
        s_add_u32 s12, s11, {k*128}
        s_cmp_ge_u32 s12, s25
        s_cbranch_scc1 P2_DMA_DONE
        v_add_u32 v33, {k*128}, v28
        v_cmp_gt_u32 vcc, s25, v33
        s_add_u32 m0, s10, {k*4096}
        s_waitcnt lgkmcnt({11-k})
        v_add_u32 v{40+k}, v{40+k}, v31
        s_mov_b64 exec, vcc
        buffer_load_dwordx4 v{40+k}, s[40:43], 0 offen lds
        s_mov_b64 exec, -1
        """)
    a.lab("P2_DMA_DONE")
    a("s_waitcnt lgkmcnt(0)")
    for r in range(4):
        a(f"""
        v_add_u32 v33, {r*256}, v0
        v_cmp_gt_u32 s[{26+2*r}:{27+2*r}], s25, v33
        v_and_b32 v{52+r}, 15, v{48+r}
        v_lshlrev_b32 v{52+r}, 2, v{52+r}
        s_mov_b64 exec, s[{26+2*r}:{27+2*r}]
        ds_add_rtn_u32 v{64+r}, v{52+r}, v32 offset:{L_NCNT}
        s_mov_b64 exec, -1
        """)
    a(f"""
    s_cmp_lg_u32 s23, 0
    s_cbranch_scc1 P2_EA_DONE
    s_waitcnt vmcnt(20)
    v_max3_f32 v33, abs(v20), abs(v21), abs(v22)
    v_mov_b32 v34, 0x42700000
    v_cmp_u_f32 s[10:11], v20, v21
    v_max_f32 v33, abs(v23), v33
    v_cmp_u_f32 s[12:13], v22, v23
    v_cmp_lt_f32 vcc, v34, v33
    s_or_b64 s[10:11], s[10:11], s[12:13]
    s_or_b64 vcc, vcc, s[10:11]
    s_cbranch_vccz P2_EA_DONE
    v_mov_b32 v34, 0
    ds_write_b32 v34, v32 offset:{L_FLAG}
    """)
    a.lab("P2_EA_DONE")
    a(f"""
    s_waitcnt lgkmcnt(0)
    s_barrier
    """)
    a.stamp(3)
    a(f"""
    v_and_b32 v33, 15, v1
    v_lshlrev_b32 v33, 2, v33
    ds_read_b32 v34, v33 offset:{L_NCNT}
    v_mov_b32 v35, 0
    ds_read_b32 v36, v35 offset:{L_FLAG}
    v_lshrrev_b32 v40, 4, v1
    v_bfe_u32 v41, v1, 3, 1
    v_and_b32 v42, 7, v1
    v_lshl_add_u32 v43, v42, 2, v40
    v_lshlrev_b32 v43, 5, v43
    v_lshl_add_u32 v43, v41, 2, v43
    v_lshrrev_b32 v44, 3, v1
    v_lshl_or_b32 v43, v44, 16, v43
    s_waitcnt lgkmcnt(0)
    v_add_u32 v34, 3, v34
    v_and_b32 v34, -4, v34
    v_mov_b32 v35, v34
    v_readfirstlane_b32 s15, v36
    """)
    a.wave_scan(35, full=False)
    a(f"""
    s_nop 0
    v_readlane_b32 s12, v35, 15
    v_add_u32 v37, -1, v35
    v_sub_u32 v35, v35, v34
    """)
    for r in range(4):
        a(f"ds_bpermute_b32 v{68+r}, v{52+r}, v35")
    a(f"""
    s_add_u32 s12, s12, 31
    s_lshr_b32 s12, s12, 5
    s_add_u32 s21, s12, 3
    s_sub_u32 s21, s21, s3
    s_lshr_b32 s21, s21, 2
    s_lshr_b32 s13, s12, 2
    s_and_b32 s14, s12, 3
    v_cmp_gt_u32 vcc, s14, v40
    v_mul_u32_u24 v44, s13, v40
    v_min_u32 v45, s14, v40
    v_addc_co_u32 v46, vcc, 0, v{V_K0+100 if False else 47}, vcc
    """ if False else f"""
    s_add_u32 s12, s12, 31
    s_lshr_b32 s12, s12, 5
    s_add_u32 s21, s12, 3
    s_sub_u32 s21, s21, s3
    s_lshr_b32 s21, s21, 2
    s_lshr_b32 s13, s12, 2
    s_and_b32 s14, s12, 3
    v_cmp_gt_u32 vcc, s14, v40
    v_mul_u32_u24 v44, s13, v40
    v_min_u32 v45, s14, v40
    v_cndmask_b32 v46, 0, 1, vcc
    v_add_u32 v46, s13, v46
    v_add_lshl_u32 v44, v44, v45, 1
    v_mul_u32_u24 v45, v41, v46
    v_cmp_lt_u32 vcc, v42, v46
    v_add3_u32 v44, v44, v45, v42
    s_nop 0
    v_cndmask_b32 v44, 63, v44, vcc
    v_lshlrev_b32 v44, 2, v44
    ds_permute_b32 v47, v44, v43
    """)
    a(f"""
    s_cmp_lg_u32 s23, 0
    s_cbranch_scc1 P2_EA2_DONE
    s_cmp_lg_u32 s15, 0
    s_cbranch_scc1 P2_EA2_W
    v_exp_f32 v20, v20
    v_exp_f32 v21, v21
    v_exp_f32 v22, v22
    v_exp_f32 v23, v23
    s_nop 0
    """)
    a.lab("P2_EA2_W")
    a(f"ds_write_b128 v3, v[20:23] offset:{L_EA}")
    a.lab("P2_EA2_DONE")
    a(f"""
    v_lshrrev_b32 v38, 4, v35
    v_lshlrev_b32 v38, 2, v38
    v_lshrrev_b32 v37, 4, v37
    v_lshlrev_b32 v37, 2, v37
    s_waitcnt lgkmcnt(0)
    """)
    for r in range(4):
        a(f"""
        v_add_u32 v{68+r}, v{68+r}, v{64+r}
        v_lshrrev_b32 v33, 4, v{68+r}
        v_lshlrev_b32 v33, 2, v33
        ds_bpermute_b32 v{72+r}, v33, v47
        """)
    a(f"""
    ds_bpermute_b32 v38, v38, v47
    ds_bpermute_b32 v37, v37, v47
    """)
    for r in range(4):
        sl = 68 + r
        a(f"""
        v_and_b32 v33, 3, v{sl}
        v_and_b32 v34, 0xffffff80, v{48+r}
        v_lshl_or_b32 v{48+r}, v33, 4, v34
        v_bfe_u32 v34, v{sl}, 2, 2
        v_lshl_add_u32 v{sl}, v34, 3, v33
        v_sub_u32 v{64+r}, 3, v{64+r}
        v_ashrrev_i32 v{64+r}, 31, v{64+r}
        """)
    for r in range(4):
        sl = 68 + r
        a(f"""
        s_waitcnt lgkmcnt({5-r+3*r})
        v_and_b32 v33, 0xffff, v{72+r}
        v_add_u32 v{sl}, v{sl}, v33
        s_mov_b64 exec, s[{26+2*r}:{27+2*r}]
        v_lshlrev_b32 v33, 2, v{sl}
        ds_write_b32 v33, v{48+r} offset:{L_SRC}
        v_add_u32 v35, {r*256*32}, v2
        v_lshlrev_b32 v33, 1, v{sl}
        ds_write_b16 v33, v35 offset:{L_POS}
        v_and_b32 v36, 0xffffffe0, v{sl}
        v_and_b32 v33, 4, v{sl}
        v_lshl_or_b32 v36, v33, 2, v36
        v_bfe_u32 v33, v{sl}, 3, 2
        v_lshl_or_b32 v36, v33, 2, v36
        v_lshlrev_b32 v33, 6, v{52+r}
        v_add_u32 v36, {L_GT}, v36
        ds_write2st64_b32 v36, v33, v{64+r} offset0:0 offset1:4
        s_mov_b64 exec, -1
        """)
    a(f"""
    v_and_b32 v33, 15, v1
    v_lshlrev_b32 v33, 2, v33
    ds_read_b32 v34, v33 offset:{L_NCNT}
    s_waitcnt lgkmcnt(0)
    v_lshrrev_b32 v38, 16, v38
    v_lshrrev_b32 v37, 16, v37
    v_sub_u32 v37, v37, v38
    v_add_u32 v37, 1, v37
    v_cmp_ne_u32 vcc, 0, v34
    v_lshrrev_b32 v33, 4, v0
    v_lshlrev_b32 v33, 2, v33
    v_cndmask_b32 v37, 0, v37, vcc
    v_lshl_or_b32 v37, v38, 8, v37
    ds_bpermute_b32 v26, v33, v37
    """)
    a(f"""
    s_lshl_b32 s10, s3, 7
    v_lshrrev_b32 v33, 3, v1
    v_lshlrev_b32 v33, 4, v33
    v_add_u32 v{V_AS}, s10, v33
    s_lshl_b32 s10, s3, 6
    v_and_b32 v33, 31, v1
    v_lshlrev_b32 v33, 1, v33
    v_add_u32 v{V_AP}, s10, v33
    s_lshl_b32 s10, s3, 5
    v_add_u32 v{V_AG}, s10, v{V_H16}
    """)
    a.stamp(4)
    a(f"""
    s_waitcnt vmcnt(0) lgkmcnt(0)
    s_barrier
    """)
    a.stamp(5)
    if OPT["stamp"]:
        a("s_memtime s[82:83]\ns_mov_b32 s86, s21")
    a(f"""
    {"s_mov_b32 s21, 0" if "nomain" in OPT["abl"] else ""}
    s_cmp_eq_u32 s21, 0
    s_cbranch_scc1 P2_MAIN_DONE
    s_cmp_lg_u32 s15, 0
    s_cbranch_scc1 P2_SAFE
    """)
    gen_main(a, False, "F")
    a.lab("P2_SAFE")
    gen_main(a, True, "S")
    a.lab("P2_MAIN_DONE")
    a(f"s_setprio {OPT['prio_pro']}")
    a.stamp(6)
    if OPT["stamp"]:
        a("s_memtime s[84:85]\ns_getreg_b32 s88, hwreg(HW_REG_HW_ID)\ns_getreg_b32 s90, hwreg(HW_REG_XCC_ID)")
    a(f"""
    s_waitcnt vmcnt(0) lgkmcnt(0)
    s_barrier
    """)
    a.stamp(7)
    a(f"""
    v_and_b32 v27, 0xff, v26
    v_and_b32 v28, 0xff00, v26
    v_add_u32 v28, v28, v3
    """)
    for k in range(8):
        a(f"""
        v_cmpx_lt_u32 vcc, {k}, v27
        s_cbranch_execz P2_FOLD_DONE
        ds_read_b128 v[32:35], v28 offset:{L_ACC+256*k}
        s_waitcnt lgkmcnt(0)
        v_add_f32 v{V_RUN}, v{V_RUN}, v32
        v_add_f32 v{V_RUN+1}, v{V_RUN+1}, v33
        v_add_f32 v{V_RUN+2}, v{V_RUN+2}, v34
        v_add_f32 v{V_RUN+3}, v{V_RUN+3}, v35
        """)
    a.lab("P2_FOLD_DONE")
    a(f"""
    s_mov_b64 exec, -1
    s_add_u32 s23, s23, {CAP}
    s_cmp_ge_u32 s23, s24
    s_cbranch_scc1 P2_FIN
    s_barrier
    s_branch P2_ROUND
    """)
    a.lab("P2_FIN")
    a(f"""
    v_lshlrev_b32 v32, 16, v24
    v_and_b32 v34, 0xffff0000, v24
    v_lshlrev_b32 v33, 16, v25
    v_and_b32 v35, 0xffff0000, v25
    v_cvt_pk_bf16_f32 v36, v{V_RUN}, v{V_RUN+2}
    v_cvt_pk_bf16_f32 v37, v{V_RUN+1}, v{V_RUN+3}
    v_lshlrev_b32 v28, 16, v36
    v_and_b32 v30, 0xffff0000, v36
    v_lshlrev_b32 v29, 16, v37
    v_and_b32 v31, 0xffff0000, v37
    v_add_f32 v28, v28, v32
    v_add_f32 v29, v29, v33
    v_add_f32 v30, v30, v34
    v_add_f32 v31, v31, v35
    v_cvt_pk_bf16_f32 v36, v28, v30
    v_cvt_pk_bf16_f32 v37, v29, v31
    v_lshlrev_b32 v28, 16, v36
    v_and_b32 v30, 0xffff0000, v36
    v_lshlrev_b32 v29, 16, v37
    v_and_b32 v31, 0xffff0000, v37
    """)
    for k in range(4):
        a(f"v_mul_f32 v{32+k}, {NLOG2E:#x}, v{28+k}")
    for k in range(4):
        a(f"v_exp_f32 v{32+k}, v{32+k}")
    for k in range(4):
        a(f"v_add_f32 v{32+k}, 1.0, v{32+k}")
    for k in range(4):
        a(f"v_rcp_f32 v{32+k}, v{32+k}")
    for k in range(4):
        a(f"v_mul_f32 v{28+k}, v{28+k}, v{32+k}")
    a(f"""
    v_cvt_pk_bf16_f32 v36, v28, v30
    v_cvt_pk_bf16_f32 v37, v29, v31
    buffer_store_dword v36, v6, s[44:47], 0 offen
    buffer_store_dword v37, v6, s[44:47], 0 offen offset:64
    """)
    a.stamp(8)
    a.stamp_flush(14, 40, 4, DBG2_OFF)
    a.lab("P2_END")
    a("s_endpgm")
    return a.text()


HEAD = open("standalone__edge_featured_mpnn_egc__graph.s.ref").read().split("; Override launch")[0]


def kd(name, vgpr, sgpr):
    acc = (vgpr + 3) // 4 * 4
    return f""".amdhsa_kernel {name}
  .amdhsa_next_free_vgpr {vgpr}
  .amdhsa_next_free_sgpr {sgpr}
  .amdhsa_accum_offset {acc}
  .amdhsa_group_segment_fixed_size 0
  .amdhsa_kernarg_size 80
  .amdhsa_user_sgpr_count 2
  .amdhsa_user_sgpr_kernarg_segment_ptr 1
  .amdhsa_system_sgpr_workgroup_id_x 1
.end_amdhsa_kernel
"""


def main():
    out = HEAD
    out += f"; @launch kernel=p1_kernel grid=({NCH},1,1) block=(1024,1,1) lds={P1_LDS}\n"
    out += f"; @launch kernel=p2_kernel grid=({NB},1,1) block=(256,1,1) lds={P2_LDS}\n"
    out += '.amdgcn_target "amdgcn-amd-amdhsa--gfx950"\n.text\n'
    out += ".globl p1_kernel\n.p2align 8\n.type p1_kernel,@function\n" + gen_p1()
    out += ".globl p2_kernel\n.p2align 8\n.type p2_kernel,@function\n" + gen_p2()
    out += '.section .rodata,"a"\n.p2align 6\n' + kd("p1_kernel", 120, 100) + ".p2align 6\n" + kd("p2_kernel", 256, 100)
    open(sys.argv[1], "w").write(out)


main()
```

```python
import sys

N = 12500; E = 800000
NCH = 320; CH = 2500
NK = NCH // 64
TROW = NCH * 128
NB = 256; NPB = 49; MUL = 21400
SUBN = 16
SLOTS = 4096
JS = 7
NLOG2E = 0xBFB8AA3B

T_OFF = 0x0
ENT_OFF = 0xA00000
HDR_OFF = 0xE00000
WF_OFF = 0xE80000
DBG1_OFF = 0x2C00000
DBG2_OFF = 0x2D00000
WS_SIZE = 0x3000000
NFRAG = 34

OPT = dict(p1_store="", p1_tstore="", p1_ld="nt", abl="", stamp="", prio_hi="1", prio_lo="0", xpf="1",
           p1_sched="[[0,1],[2,3],[4,5],[6]]", bunch="1", ne="4", e_pol="")
for a_ in sys.argv[2:]:
    k_, v_ = a_.split("=")
    OPT[k_] = v_


class A:
    def __init__(self):
        self.l = []

    def __call__(self, s):
        for x in s.strip().split("\n"):
            self.l.append("    " + x.strip())

    def lab(self, s):
        self.l.append(s + ":")

    def srd(self, d, lo, hi, nrec, add=None):
        if add is None:
            self(f"s_mov_b32 s{d}, s{lo}\ns_mov_b32 s{d+1}, s{hi}")
        else:
            self(f"s_add_u32 s{d}, s{lo}, {add}\ns_addc_u32 s{d+1}, s{hi}, 0")
        self(f"s_mov_b32 s{d+2}, {nrec}\ns_mov_b32 s{d+3}, 0x20000")

    def wave_scan(self, v, full=True):
        for sh in (1, 2, 4, 8):
            self("s_nop 1")
            self(f"v_add_u32_dpp v{v}, v{v}, v{v} row_shr:{sh} row_mask:0xf bank_mask:0xf bound_ctrl:0")
        if full:
            self("s_nop 1")
            self(f"v_add_u32_dpp v{v}, v{v}, v{v} row_bcast:15 row_mask:0xa bank_mask:0xf")
            self("s_nop 1")
            self(f"v_add_u32_dpp v{v}, v{v}, v{v} row_bcast:31 row_mask:0xc bank_mask:0xf")

    def stamp(self, k):
        if OPT["stamp"] == "1":
            self(f"s_memrealtime s[{64+2*k}:{65+2*k}]")

    def stamp3(self, k):
        if OPT["stamp"] == "3":
            self(f"s_memtime s[{64+2*k}:{65+2*k}]")

    def stamp_flush(self, n, srd, nw, base):
        if not OPT["stamp"]:
            return
        self(f"""
        s_waitcnt lgkmcnt(0)
        s_mov_b64 exec, -1
        s_mul_i32 s10, s2, {nw}
        s_add_u32 s10, s10, s3
        s_lshl_b32 s10, s10, 6
        s_add_u32 s10, s10, {base}
        v_mov_b32 v1, 0
        """)
        for k in range(n):
            self(f"v_mov_b32 v2, s{64+2*k}\nbuffer_store_dword v2, v1, s[{srd}:{srd+3}], s10 offen offset:{4*k}\ns_nop 1")

    def text(self):
        return "\n".join(self.l) + "\n"


def sub_dl(j):
    return (1 if j < 10 else 8) + (j % 10) // 5, 6 * (j % 5)


def sub_src(j):
    return (3 if j < 10 else 10) + (j % 10) // 2, 16 * (j % 2)


P1_HIST = 0; P1_START = 1024; P1_ENT = 2048
P1_LDS = P1_ENT + CH * 4 + 256


def gen_p1():
    a = A()
    ST = OPT["p1_store"]; TST = OPT["p1_tstore"]; LD = OPT["p1_ld"]
    a.lab("p1_kernel")
    a(f"""
    s_cmp_ge_u32 s2, {NCH}
    s_cbranch_scc1 P1_END
    """)
    a.stamp(0)
    a(f"""
    s_load_dwordx16 s[16:31], s[0:1], 0
    s_load_dwordx4 s[32:35], s[0:1], 64
    v_and_b32 v1, 63, v0
    v_lshrrev_b32 v5, 6, v0
    v_lshlrev_b32 v2, 4, v0
    v_lshlrev_b32 v3, 2, v0
    v_readfirstlane_b32 s3, v5
    v_lshlrev_b32 v4, 4, v1
    v_mov_b32 v6, 0
    v_and_b32 v7, 0x3fc, v3
    ds_write_b32 v7, v6 offset:{P1_HIST}
    s_mul_i32 s4, s2, {CH*4}
    v_and_b32 v24, 31, v1
    v_lshrrev_b32 v25, 5, v1
    s_waitcnt lgkmcnt(0)
    """)
    a.srd(44, 22, 23, CH * 4, "s4")
    a.srd(40, 20, 21, CH * 4, "s4")
    a(f"""
    buffer_load_dwordx4 v[8:11], v2, s[44:47], 0 offen {LD}
    buffer_load_dwordx4 v[12:15], v2, s[40:43], 0 offen {LD}
    """)
    a.srd(48, 34, 35, WS_SIZE)
    a.srd(56, 28, 29, 2048 - 64)
    a(f"""
    v_lshlrev_b32 v26, 10, v25
    v_lshl_add_u32 v26, v24, 1, v26
    s_mov_b32 s14, 1.0
    s_cmp_lg_u32 s3, 10
    s_cbranch_scc1 P1_FL_DONE
    s_cmp_ge_u32 s2, {NFRAG}
    s_cbranch_scc1 P1_FL_DONE
    s_sub_u32 s5, s2, 2
    s_cmp_ge_u32 s2, 18
    s_cselect_b32 s5, s5, s2
    s_and_b32 s6, s5, 3
    s_lshl_b32 s6, s6, 11
    s_lshr_b32 s7, s5, 2
    s_and_b32 s7, s7, 1
    s_lshl_b32 s7, s7, 6
    s_add_u32 s6, s6, s7
    s_cmp_ge_u32 s2, 8
    s_cbranch_scc1 P1_FL1
    s_add_u32 s6, s6, 8192
    s_mov_b32 s14, {NLOG2E}
    s_branch P1_FL3
    """)
    a.lab("P1_FL1")
    a(f"""
    s_cmp_ge_u32 s2, 16
    s_cbranch_scc1 P1_FL2
    s_mov_b32 s56, s26
    s_mov_b32 s57, s27
    s_branch P1_FL3
    """)
    a.lab("P1_FL2")
    a(f"""
    s_cmp_ge_u32 s2, 26
    s_cselect_b32 s56, s24, s28
    s_cselect_b32 s57, s25, s29
    s_cmp_ge_u32 s2, 18
    s_cbranch_scc1 P1_FL3
    s_mov_b32 s14, {NLOG2E}
    s_and_b32 s6, s2, 1
    s_lshl_b32 s6, s6, 6
    s_add_u32 s6, s6, 16384
    """)
    a.lab("P1_FL3")
    a(f"""
    s_add_u32 s56, s56, s6
    s_addc_u32 s57, s57, 0
    """)
    for jj in range(8):
        a(f"buffer_load_ushort v{40+jj}, v26, s[56:59], 0 offen offset:{jj*128}")
    a("s_waitcnt vmcnt(0)")
    for jj in range(8):
        a(f"v_lshlrev_b32 v{40+jj}, 16, v{40+jj}")
    for jj in range(8):
        a(f"v_mul_f32 v{40+jj}, s14, v{40+jj}")
    for q in range(4):
        a(f"v_cvt_pk_bf16_f32 v{48+q}, v{40+2*q}, v{40+2*q+1}")
    a(f"""
    s_lshl_b32 s6, s2, 10
    s_add_u32 s6, s6, {WF_OFF}
    buffer_store_dwordx4 v[48:51], v4, s[48:51], s6 offen
    s_endpgm
    """)
    a.lab("P1_FL_DONE")
    a(f"""
    s_cmp_ge_u32 s3, 10
    s_cbranch_scc1 P1_END
    v_cmp_gt_u32 vcc, {CH//4}, v0
    s_mov_b64 s[8:9], vcc
    v_mov_b32 v30, 1
    s_barrier
    s_waitcnt vmcnt(1)
    """)
    a.stamp(1)
    a("s_mov_b64 exec, s[8:9]")
    for e in range(4):
        a(f"""
        v_mul_u32_u24 v{16+e}, {MUL}, v{8+e}
        v_lshrrev_b32 v31, 20, v{16+e}
        v_lshlrev_b32 v{16+e}, 2, v31
        ds_add_rtn_u32 v{20+e}, v{16+e}, v30 offset:{P1_HIST}
        v_mul_u32_u24 v31, {NPB}, v31
        v_sub_u32 v{8+e}, v{8+e}, v31
        """)
    a("s_mov_b64 exec, -1\ns_waitcnt lgkmcnt(0)")
    a.stamp(2)
    a("s_barrier")
    a.stamp(3)
    a(f"""
    s_cmp_lg_u32 s3, 0
    s_cbranch_scc1 P1_SC_DONE
    ds_read_b128 v[32:35], v4 offset:{P1_HIST}
    s_waitcnt lgkmcnt(0)
    v_add_u32 v36, v32, v33
    v_add_u32 v37, v36, v34
    v_add_u32 v38, v37, v35
    v_mov_b32 v39, v38
    """)
    a.wave_scan(39)
    a(f"""
    v_sub_u32 v40, v39, v38
    v_add_u32 v41, v32, v40
    v_add_u32 v42, v36, v40
    v_add_u32 v43, v37, v40
    ds_write_b128 v4, v[40:43] offset:{P1_START}
    v_lshl_or_b32 v44, v32, 16, v40
    v_lshl_or_b32 v45, v33, 16, v41
    v_lshl_or_b32 v46, v34, 16, v42
    v_lshl_or_b32 v47, v35, 16, v43
    s_lshl_b32 s6, s2, 10
    s_add_u32 s6, s6, {HDR_OFF}
    buffer_store_dwordx4 v[44:47], v4, s[48:51], s6 offen
    """)
    a.lab("P1_SC_DONE")
    a("s_waitcnt vmcnt(0)" if False else "s_waitcnt vmcnt(1)")
    a(f"""
    s_cmp_eq_u32 s3, 0
    s_cbranch_scc1 P1_W0
    s_waitcnt vmcnt(0)
    """)
    a.lab("P1_W0")
    for e in range(4):
        a(f"""
        v_lshl_or_b32 v{36+e}, v{8+e}, 14, v{12+e}
        v_add_u32 v31, {e}, v3
        v_lshl_or_b32 v{36+e}, v31, 20, v{36+e}
        """)
    a(f"""
    v_lshrrev_b32 v7, 3, v0
    v_lshlrev_b32 v6, 2, v7
    v_and_b32 v27, 7, v0
    s_waitcnt lgkmcnt(0)
    s_barrier
    """)
    a.stamp(4)
    for r in range(4):
        a(f"""
        ds_read_b32 v{40+r}, v6 offset:{P1_START+320*r}
        ds_read_b32 v{44+r}, v6 offset:{P1_HIST+320*r}
        """)
    a("s_mov_b64 exec, s[8:9]")
    for e in range(4):
        a(f"ds_read_b32 v{32+e}, v{16+e} offset:{P1_START}")
    for e in range(4):
        a(f"""
        s_waitcnt lgkmcnt(3)
        v_add_lshl_u32 v{32+e}, v{32+e}, v{20+e}, 2
        ds_write_b32 v{32+e}, v{36+e} offset:{P1_ENT}
        """)
    a("s_mov_b64 exec, -1")
    for r in range(4):
        a(f"""
        v_add_lshl_u32 v{40+r}, v{40+r}, v27, 2
        v_add_u32 v{40+r}, {P1_ENT}, v{40+r}
        v_sub_u32 v{48+r}, v{44+r}, v27
        """)
    a(f"""
    s_lshl_b32 s6, s2, 7
    s_add_u32 s6, s6, {T_OFF}
    s_add_u32 s10, s4, {ENT_OFF}
    v_mul_u32_u24 v28, {TROW}, v7
    v_lshl_or_b32 v28, v27, 4, v28
    s_waitcnt lgkmcnt(0)
    """)
    a.stamp(5)
    a("s_barrier")
    a.stamp(6)
    for r in range(3):
        a(f"""
        ds_read2_b32 v[{8+4*r}:{9+4*r}], v{40+r} offset0:0 offset1:8
        ds_read2_b32 v[{10+4*r}:{11+4*r}], v{40+r} offset0:16 offset1:24
        """)
    a(f"""
    ds_read_b128 v[32:35], v2 offset:{P1_ENT}
    s_cmp_ge_u32 s3, 2
    s_cbranch_scc1 P1_R2SKIP
    ds_read2_b32 v[20:21], v43 offset0:0 offset1:8
    ds_read2_b32 v[22:23], v43 offset0:16 offset1:24
    """)
    a.lab("P1_R2SKIP")
    for r in range(4):
        if r == 3:
            a(f"""
            s_mov_b64 exec, s[8:9]
            buffer_store_dwordx4 v[32:35], v2, s[48:51], s10 offen {ST}
            s_mov_b64 exec, -1
            s_cmp_ge_u32 s3, 2
            s_cbranch_scc1 P1_FIN
            """)
        for k in range(4):
            a(f"v_cmp_lt_i32 s[{16+2*k}:{17+2*k}], {8*k}, v{48+r}")
        a(f"v_cmp_lt_u32 vcc, 32, v{44+r}")
        a("s_waitcnt lgkmcnt(0)" if r == 0 else "s_nop 0")
        for k in range(4):
            a(f"v_cndmask_b32 v{8+4*r+k}, -1, v{8+4*r+k}, s[{16+2*k}:{17+2*k}]")
        a(f"""
        v_cndmask_b32 v{8+4*r}, v{8+4*r}, -2, vcc
        buffer_store_dwordx4 v[{8+4*r}:{11+4*r}], v28, s[48:51], s6 offen {TST}
        s_add_u32 s6, s6, {80*TROW}
        """)
    a.lab("P1_FIN")
    a.stamp(7)
    if OPT["stamp"]:
        a("s_waitcnt vmcnt(0)")
    a.stamp(8)
    a.stamp_flush(9, 48, 16, DBG1_OFF)
    a.lab("P1_END")
    a("s_endpgm")
    return a.text()


L_NCNT = 0; L_FLAG = 256; L_WT = 272
L_SRC = 512; L_POS = L_SRC + 16384; L_GT = L_POS + 16384; L_GM = L_GT + 4096; L_EA = L_GM + 4096
NROW = 50
L_ACC = L_EA + NROW * 256
L_XB = L_ACC + 18432
L_HU = L_XB + 65536
L_PX = L_HU + NROW * 256
P2_LDS = L_PX + 8192
assert P2_LDS <= 163840 and L_ACC + 4 < 65536 and (16 + NROW) * 256 <= 18432
SENT = 0x40000000

V_W = 184
V_Z0 = 64; V_H0 = 80; V_Z1 = 96; V_H1 = 112
V_XA = (128, 28); V_EA = (144, 44, 24, 56)
V_G = 148; V_GR = 152; V_EV = 156
V_SL = 164
V_ACC = (168, 52)
V_XR = 172
V_PS = 176
V_AS = 177; V_AP = 178; V_AG = 179
V_N8 = 181; V_H16 = 182; V_N8H = 183
V_K = (180, 10, 11, 12)
V_GE = 60
V_GM = 48
V_RUN = 16
NE = int(OPT["ne"])


def wfrag(f):
    return f"v[{V_W+4*f}:{V_W+4*f+3}]"


def mf_list(u, Z, H, ph):
    xa = V_XA[ph % 2]; ea = V_EA[ph % NE]
    l = [f"v_mfma_f32_32x32x16_bf16 v[{Z}:{Z+15}], v[{ea}:{ea+3}], {wfrag(16+u)}, 0"]
    for t in range(4):
        l.append(f"v_mfma_f32_32x32x16_bf16 v[{Z}:{Z+15}], v[{xa+4*t}:{xa+4*t+3}], {wfrag(u*4+t)}, v[{Z}:{Z+15}]")
    for t in range(4):
        c = "0" if t == 0 else f"v[{H}:{H+15}]"
        l.append(f"v_mfma_f32_32x32x16_bf16 v[{H}:{H+15}], v[{xa+4*t}:{xa+4*t+3}], {wfrag(8+u*4+t)}, {c}")
    return l


def body(ph, safe):
    out = []
    par = ph % 2
    npar = 1 - par
    PH = OPT["prio_hi"]; PL = OPT["prio_lo"]
    cnt = [0]
    bunch = OPT["bunch"] == "1"

    def lstamp():
        if OPT["stamp"] == "2" and ph == 1:
            out.append(f"s_memtime s[{64+2*cnt[0]}:{65+2*cnt[0]}]")
            cnt[0] += 1

    def trun(instrs, mf, fill):
        lstamp()
        if PH != PL:
            out.append(f"s_setprio {PH}")
        mf = list(mf)
        for k, x in enumerate(instrs):
            out.append(x)
            if k % 3 == 0 and mf:
                out.append(mf.pop(0))
            elif fill:
                if bunch:
                    out.extend(fill); del fill[:]
                else:
                    out.append(fill.pop(0))
        assert not mf
        if PH != PL:
            out.append(f"s_setprio {PL}")

    def half(u, Z, H, mf, fill, preF, postF, fillR, preM, postM):
        ev = lambda i: V_EV + 2 * (i // 4) + u
        if safe:
            if u == 0:
                out.append(("W", "ev3"))
            out.extend(f"v_add_f32 v{Z+i}, v{ev(i)}, v{Z+i}" for i in range(16))
        trun([f"v_exp_f32 v{Z+i}, v{Z+i}" for i in range(16)], mf[:5], fill)
        lstamp()
        out.extend(preF)
        if safe:
            out.extend(f"v_add_f32 v{Z+i}, 1.0, v{Z+i}" for i in range(16))
        else:
            out.extend(f"v_fma_f32 v{Z+i}, v{Z+i}, v{ev(i)}, 1.0" for i in range(16))
        out.extend(postF)
        fill.extend(fillR)
        trun([f"v_rcp_f32 v{Z+i}, v{Z+i}" for i in range(16)], mf[5:], fill)
        assert not fill, fill
        lstamp()
        out.extend(preM)
        A_ = V_ACC[u]
        for g in range(4):
            out.append(f"v_and_b32 v{A_+g}, v{A_+(g+3)%4}, v{V_GM+g}")
            out.extend(f"v_fmac_f32 v{A_+g}, v{Z+4*g+k}, v{H+4*g+k}" for k in range(4))
        out.extend(postM)

    def accw(u):
        return [("L", f"ds_write_b32 v{V_G+g}, v{V_ACC[u]+g} offset:{L_ACC+4*u}", None) for g in range(4)]

    xa = V_XA[npar]
    fill = [f"s_cmp_gt_u32 s21, {NE}", "s_cselect_b32 s58, s18, 0",
            f"buffer_load_dwordx4 v[{V_EA[ph]}:{V_EA[ph]+3}], v{V_PS}, s[56:59], 0 offen {OPT['e_pol']}"] + accw(1)
    fill.append(("L", f"ds_read_b128 v[{V_GM}:{V_GM+3}], v{V_AG} offset:{L_GM+16*ph}", "gm"))
    preF = [f"v_add_u32 v{V_G+g}, v{V_GR+g}, v{V_N8H}" for g in range(4)] + ([] if safe else [("W", "ev3")])
    fillR = [f"s_waitcnt vmcnt({5 if NE == 2 else 6})"]
    for t in range(4):
        fillR.append(("L", f"ds_read_b128 v[{xa+4*t}:{xa+4*t+3}], v{V_XR+t} offset:{npar*4096}", f"xa{t}"))
    fillR += [("L", f"ds_read_b128 v[{V_SL}:{V_SL+3}], v{V_AS} offset:{L_SRC+64*(3+ph)}", "sl"),
              ("L", f"ds_read_b128 v[{V_GR}:{V_GR+3}], v{V_AG} offset:{L_GT+16*(1+ph)}", "gr"),
              ("L", f"ds_read_b32 v{V_PS}, v{V_AP} offset:{L_POS+64*(NE+1+ph)}", "pos"),
              "s_cmp_gt_u32 s21, 3", "s_cselect_b32 s38, s19, 0", f"s_add_u32 m0, s20, {npar*4096}"]
    postM = [("W", "sl")] + [f"v_or_b32 v{V_SL+j}, v{V_SL+j}, v{V_K[j]}" for j in range(4)]
    half(0, V_Z0, V_H0, mf_list(1, V_Z1, V_H1, ph), fill, preF, [], fillR, [("W", "gm")], postM)
    fill = []
    aw = accw(0)
    for j in range(4):
        fill.append(f"buffer_load_dwordx4 v{V_SL+j}, s[36:39], 0 offen lds")
        if j < 3:
            fill.append(f"s_add_u32 m0, s20, {npar*4096+(j+1)*1024}")
        fill.append(aw[j])
    postF = [("W", "pos")] + [f"v_add_u32 v{V_GE+g}, v{V_GR+g}, v{V_N8}" for g in range(4)]
    postF.append(f"v_add_u32 v{V_PS}, v{V_PS}, v{V_H16}")
    fillR = [("L", f"ds_read_b64 v[{V_EV+2*g}:{V_EV+2*g+1}], v{V_GE+g} offset:{L_EA}", f"ev{g}") for g in range(4)]
    half(1, V_Z1, V_H1, mf_list(0, V_Z0, V_H0, ph + 1), fill, [], postF, fillR, [], [])
    lstamp()
    if "nomfma" in OPT["abl"]:
        out = [x for x in out if not (isinstance(x, str) and "mfma" in x)]
    if "novalu" in OPT["abl"]:
        out = [x for x in out if not (isinstance(x, str) and any(k in x for k in ("v_exp", "v_rcp", "v_fma", "v_fmac")))]
    return out


def resolve(prev, cur):
    seq = prev + cur
    res = []
    for i, x in enumerate(seq):
        if i < len(prev):
            continue
        if isinstance(x, str):
            res.append(x)
        elif x[0] == "L":
            res.append(x[1])
        else:
            n = 0
            k = i - 1
            while not (isinstance(seq[k], tuple) and seq[k][0] == "L" and seq[k][2] == x[1]):
                if isinstance(seq[k], tuple) and seq[k][0] == "L":
                    n += 1
                k -= 1
                assert k >= 0, x
            res.append(f"s_waitcnt lgkmcnt({min(n, 15)})")
    return res


def gen_fill1(a):
    EP = OPT['e_pol']
    a(f"ds_read_b128 v[{V_SL}:{V_SL+3}], v{V_AS} offset:{L_SRC}")
    for k in range(NE):
        a(f"ds_read_b32 v{V_GE+k}, v{V_AP} offset:{L_POS+64*k}")
    a(f"""
    ds_read_b128 v[{V_ACC[0]}:{V_ACC[0]+3}], v{V_AS} offset:{L_SRC+64}
    ds_read_b32 v{V_PS}, v{V_AP} offset:{L_POS+64*NE}
    s_waitcnt lgkmcnt(2)
    """)

    def eld(k):
        a(f"""
        s_cmp_gt_u32 s21, {k}
        s_cselect_b32 s58, s18, 0
        v_add_u32 v{V_GE+k}, v{V_GE+k}, v{V_H16}
        buffer_load_dwordx4 v[{V_EA[k]}:{V_EA[k]+3}], v{V_GE+k}, s[56:59], 0 offen {EP}
        """)
    eld(0)
    xld(a, 0, V_SL, 0)
    eld(1)
    if NE == 4:
        eld(2)
    a("s_waitcnt lgkmcnt(0)")
    xld(a, 1, V_ACC[0], 1)
    if NE == 4:
        eld(3)
    a(f"""
    v_add_u32 v{V_PS}, v{V_PS}, v{V_H16}
    ds_read_b128 v[{V_SL}:{V_SL+3}], v{V_AS} offset:{L_SRC+128}
    """)


def xld(a, b, vb, k):
    a(f"s_cmp_gt_u32 s21, {k}\ns_cselect_b32 s38, s19, 0")
    for j in range(4):
        a(f"""
        s_add_u32 m0, s20, {b*4096+j*1024}
        v_or_b32 v{vb+j}, v{vb+j}, v{V_K[j]}
        buffer_load_dwordx4 v{vb+j}, s[36:39], 0 offen lds
        """)


def gen_fill2(a):
    xa = V_XA[0]
    a(f"""
    ds_read_b128 v[{V_GR}:{V_GR+3}], v{V_AG} offset:{L_GT}
    v_mov_b32 v{V_ACC[0]+3}, 0
    v_mov_b32 v{V_ACC[1]+3}, 0
    s_waitcnt lgkmcnt(0)
    """)
    for g in range(4):
        a(f"""
        v_add_u32 v{V_GE+g}, v{V_GR+g}, v{V_N8}
        v_add_u32 v{V_G+g}, v{V_GR+g}, v{V_N8H}
        ds_read_b64 v[{V_EV+2*g}:{V_EV+2*g+1}], v{V_GE+g} offset:{L_EA}
        """)
    a(f"s_waitcnt vmcnt({5 if NE == 2 else 7})")
    for t in range(4):
        a(f"ds_read_b128 v[{xa+4*t}:{xa+4*t+3}], v{V_XR+t}")
    a("s_waitcnt lgkmcnt(0)")
    xld(a, 0, V_SL, 2)
    for m in mf_list(0, V_Z0, V_H0, 0):
        a(m)
    a("s_nop 7\ns_nop 7")


def gen_loop(a, safe, tag):
    bs = [body(p, safe) for p in range(NE)]
    a.lab(f"P2_LOOP{tag}")
    for p in range(NE):
        for x in resolve(bs[p - 1], bs[p]):
            a(x)
        if p < NE - 1:
            a(f"""
            s_sub_u32 s21, s21, 1
            s_cmp_eq_u32 s21, 0
            s_cbranch_scc1 P2_FLUSH
            """)
    a(f"""
    v_add_u32 v{V_AS}, {64*NE}, v{V_AS}
    v_add_u32 v{V_AP}, {64*NE}, v{V_AP}
    v_add_u32 v{V_AG}, {16*NE}, v{V_AG}
    s_sub_u32 s21, s21, 1
    s_cmp_lg_u32 s21, 0
    s_cbranch_scc1 P2_LOOP{tag}
    s_branch P2_FLUSH
    """)


def gen_p2():
    a = A()
    VT = 64
    VP = 84
    VR = 104
    VD = 124
    VE = 144
    VF = 200
    VX = 216
    VAP = 184
    a.lab("p2_kernel")
    a(f"""
    s_cmp_ge_u32 s2, {NB}
    s_cbranch_scc1 P2_END
    """)
    a.stamp(0)
    a.stamp3(0)
    a(f"""
    s_load_dwordx4 s[16:19], s[0:1], 0
    s_load_dwordx2 s[12:13], s[0:1], 56
    s_load_dwordx2 s[34:35], s[0:1], 72
    s_and_b32 s4, s2, 7
    s_lshl_b32 s4, s4, 5
    s_lshr_b32 s5, s2, 3
    s_add_u32 s4, s4, s5
    v_and_b32 v1, 63, v0
    v_lshrrev_b32 v5, 6, v0
    v_lshlrev_b32 v3, 4, v0
    v_lshlrev_b32 v4, 2, v0
    v_readfirstlane_b32 s3, v5
    s_mul_i32 s8, s4, {TROW}
    s_add_u32 s8, s8, {T_OFF}
    s_mul_i32 s6, s4, {NPB*128}
    v_and_b32 v56, 31, v1
    v_lshrrev_b32 v57, 5, v1
    v_and_b32 v58, 7, v1
    v_lshlrev_b32 v59, 2, v57
    v_xor_b32 v58, v58, v59
    v_lshlrev_b32 v{V_K[0]}, 4, v58
    s_waitcnt lgkmcnt(0)
    """)
    a.stamp3(1)
    a.srd(40, 34, 35, WS_SIZE)
    for k in range(NK):
        a(f"buffer_load_dwordx4 v[{VT+4*k}:{VT+4*k+3}], v3, s[40:43], s8 offen\ns_add_u32 s8, s8, 8192")
    a.srd(36, 16, 17, N * 128)
    a.srd(56, 18, 19, E * 32)
    a(f"""
    s_add_u32 s44, s12, s6
    s_addc_u32 s45, s13, 0
    s_sub_u32 s46, {N*128}, s6
    s_min_u32 s46, s46, {NPB*128}
    s_mov_b32 s47, 0x20000
    s_mov_b32 s19, {0 if "nox" in OPT["abl"] else N*128}
    s_mov_b32 s18, {0 if "noe" in OPT["abl"] else E*32}
    """)
    NLD = 0
    a.stamp3(2)
    a(f"""
    s_lshl_b32 s20, s3, 13
    s_add_u32 s20, s20, {L_XB}
    v_lshlrev_b32 v{V_N8}, 3, v56
    v_lshlrev_b32 v{V_H16}, 4, v57
    v_lshrrev_b32 v58, 5, v0
    v_lshl_add_u32 v{V_N8H}, v58, 8, v{V_N8}
    v_xor_b32 v{V_K[1]}, 16, v{V_K[0]}
    v_xor_b32 v{V_K[2]}, 32, v{V_K[0]}
    v_xor_b32 v{V_K[3]}, 48, v{V_K[0]}
    v_and_b32 v58, 3, v56
    v_lshrrev_b32 v59, 2, v56
    v_lshl_add_u32 v59, v58, 3, v59
    v_lshlrev_b32 v59, 7, v59
    v_add_u32 v59, s20, v59
    v_lshrrev_b32 v60, 4, v56
    v_lshl_add_u32 v58, v60, 2, v58
    v_xor_b32 v58, v58, v57
    """)
    for t in range(4):
        a(f"""
        v_xor_b32 v60, {2*t}, v58
        v_lshl_add_u32 v{V_XR+t}, v60, 4, v59
        """)
    for k in range(8):
        a(f"v_mov_b32 v{V_RUN+k}, 0")
    a(f"""
    ds_write_b32 v{V_RUN}, v{V_RUN} offset:{L_FLAG}
    s_mov_b32 s23, 0
    s_mov_b32 s24, 0
    s_mov_b32 s25, 0
    s_mov_b32 s15, 0
    """)
    a.lab("P2_ROUND")
    a(f"""
    v_mov_b32 v32, {SENT}
    v_mov_b32 v33, {SENT}
    v_mov_b32 v34, {SENT}
    v_mov_b32 v35, {SENT}
    ds_write_b128 v3, v[32:35] offset:{L_SRC}
    ds_write_b128 v3, v[32:35] offset:{L_SRC+8192}
    ds_write_b128 v3, v[32:35] offset:{L_POS}
    ds_write_b128 v3, v[32:35] offset:{L_POS+8192}
    v_mov_b32 v36, {(NROW-1)*256}
    v_mov_b32 v37, {(NROW-1)*256}
    v_lshlrev_b32 v40, 3, v0
    ds_write_b64 v40, v[36:37] offset:{L_GT}
    v_mov_b32 v38, -1
    v_mov_b32 v39, -1
    ds_write_b64 v40, v[38:39] offset:{L_GM}
    v_mov_b32 v41, 0
    v_and_b32 v42, 0xfc, v4
    ds_write_b32 v42, v41 offset:{L_NCNT}
    v_mov_b32 v43, 1
    s_cmp_lg_u32 s24, 0
    s_cbranch_scc1 P2_SLOW
    """)
    a(f"""
    v_lshrrev_b32 v44, 3, v0
    v_mul_u32_u24 v13, {CH}, v44
    """)
    a.stamp3(3)
    a("s_waitcnt lgkmcnt(0)\ns_barrier")
    a.stamp3(4)
    for k in range(NK):
        a(f"s_waitcnt vmcnt({NK-1-k})")
        if k == 0:
            a.stamp(1)
        if k < 4:
            a.stamp3(5 + k)
        a(f"""
        v_cmp_eq_u32 vcc, -2, v{VT+4*k}
        s_cbranch_vccz P2_NOOVF{k}
        ds_or_b32 v41, v43 offset:{L_FLAG}
        s_branch P2_A_LD
        """)
        a.lab(f"P2_NOOVF{k}")
        for pos in range(4):
            j = 4 * k + pos
            a(f"v_cmpx_ne_u32 vcc, -1, v{VT+j}")
            if pos >= 2:
                a(f"s_cbranch_execz P2_A{k}")
            a(f"""
            v_bfe_u32 v{VD+j}, v{VT+j}, 14, 6
            v_lshlrev_b32 v{VD+j}, 2, v{VD+j}
            ds_add_rtn_u32 v{VR+j}, v{VD+j}, v43 offset:{L_NCNT}
            v_lshrrev_b32 v{VP+j}, 20, v{VT+j}
            v_add_lshl_u32 v{VP+j}, v{VP+j}, v13, 5
            v_and_b32 v{VE+j}, 0x3fff, v{VT+j}
            v_lshlrev_b32 v{VE+j}, 7, v{VE+j}
            """)
        a.lab(f"P2_A{k}")
        a(f"""
        s_mov_b64 exec, -1
        v_add_u32 v13, {64*CH}, v13
        """)
    a.lab("P2_A_LD")
    a("s_mov_b64 exec, -1")
    a(f"""
    s_and_b32 s9, s3, 3
    s_lshl_b32 s10, s9, 4
    v_xor_b32 v26, s10, v{V_K[0]}
    v_lshrrev_b32 v27, 3, v1
    v_lshl_add_u32 v26, v27, 9, v26
    s_lshr_b32 s10, s3, 2
    s_lshl_b32 s10, s10, 12
    s_lshl_b32 s11, s9, 7
    s_add_u32 s10, s10, s11
    s_add_u32 s10, s10, s6
    s_lshl_b32 s11, s3, 10
    s_add_u32 m0, s11, {L_PX}
    v_lshlrev_b32 v27, 4, v1
    buffer_load_dwordx4 v26, s[36:39], s10 offen lds
    s_add_u32 m0, s11, {L_ACC}
    s_add_u32 s10, s11, {WF_OFF}
    buffer_load_dwordx4 v27, s[40:43], s10 offen lds
    s_add_u32 m0, s11, {L_ACC+8192}
    s_add_u32 s10, s11, {WF_OFF+8192}
    buffer_load_dwordx4 v27, s[40:43], s10 offen lds
    s_and_b32 s11, s11, 0x400
    s_add_u32 m0, s11, {L_ACC+16384}
    s_add_u32 s10, s11, {WF_OFF+16384}
    buffer_load_dwordx4 v27, s[40:43], s10 offen lds
    s_lshl_b32 s9, s9, 12
    s_add_u32 s9, s9, {WF_OFF+18*1024}
    """)
    for t in range(4):
        a(f"buffer_load_dwordx4 v[{VF+4*t}:{VF+4*t+3}], v27, s[40:43], s9 offen offset:{1024*t}")
    a("s_branch P2_A_DONE")
    L_PREF = L_XB
    a.lab("P2_SLOW")
    a(f"""
    v_add_u32 v44, {L_PREF}, v4
    ds_write_b32 v44, v14
    ds_write_b32 v44, v9 offset:2048
    ds_write_b32 v44, v15 offset:4096
    s_waitcnt lgkmcnt(0)
    s_barrier
    """)
    for j in range(4 * NK):
        a(f"v_mov_b32 v{VT+j}, -1")
    for j in range(JS):
        a(f"""
        s_add_u32 s10, s23, {512*j}
        v_add_u32 v44, s10, v0
        v_cmp_gt_u32 vcc, s24, v44
        s_and_saveexec_b64 s[10:11], vcc
        s_cbranch_execz P2_A_DONE
        v_mov_b32 v45, {L_PREF}
        s_mov_b32 s12, 1024
        """)
        a.lab(f"P2_BS{j}")
        a(f"""
        v_add_u32 v46, s12, v45
        ds_read_b32 v47, v46
        s_waitcnt lgkmcnt(0)
        v_cmp_le_u32 vcc, v47, v44
        s_lshr_b32 s12, s12, 1
        s_cmp_ge_u32 s12, 4
        v_cndmask_b32 v45, v45, v46, vcc
        s_cbranch_scc1 P2_BS{j}
        ds_read_b32 v46, v45
        ds_read_b32 v47, v45 offset:2048
        ds_read_b32 v45, v45 offset:4096
        s_waitcnt lgkmcnt(0)
        v_sub_u32 v46, v44, v46
        v_add_lshl_u32 v46, v47, v46, 2
        s_mov_b32 s12, {ENT_OFF}
        buffer_load_dword v{VT+j}, v46, s[40:43], s12 offen
        s_waitcnt vmcnt(0)
        v_bfe_u32 v{VD+j}, v{VT+j}, 14, 6
        v_lshlrev_b32 v{VD+j}, 2, v{VD+j}
        ds_add_rtn_u32 v{VR+j}, v{VD+j}, v43 offset:{L_NCNT}
        v_lshrrev_b32 v{VP+j}, 20, v{VT+j}
        v_add_lshl_u32 v{VP+j}, v{VP+j}, v45, 5
        v_and_b32 v{VE+j}, 0x3fff, v{VT+j}
        v_lshlrev_b32 v{VE+j}, 7, v{VE+j}
        """)
    a.lab("P2_A_DONE")
    a("s_mov_b64 exec, -1")
    a.stamp3(9)
    a(f"""
    v_lshlrev_b32 v44, 2, v1
    s_waitcnt lgkmcnt(0)
    s_barrier
    """)
    a.stamp3(10)
    a.stamp(2)
    a(f"""
    ds_read_b32 v45, v44 offset:{L_NCNT}
    ds_read_b32 v47, v41 offset:{L_FLAG}
    s_waitcnt lgkmcnt(0)
    v_add_u32 v32, 3, v45
    v_and_b32 v32, -4, v32
    v_mov_b32 v33, v32
    v_readfirstlane_b32 s14, v47
    """)
    a.wave_scan(33)
    a(f"""
    s_nop 0
    v_readlane_b32 s12, v33, 63
    v_add_u32 v34, -1, v33
    v_sub_u32 v33, v33, v32
    s_cmp_lg_u32 s24, 0
    s_cbranch_scc1 P2_CHK_DONE
    s_and_b32 s14, s14, 1
    s_cmp_gt_u32 s12, {SLOTS}
    s_cselect_b32 s14, 1, s14
    s_cmp_eq_u32 s14, 0
    s_cbranch_scc1 P2_CHK_DONE
    """)
    a(f"""
    v_cmp_gt_u32 vcc, {NCH}, v0
    s_mov_b64 s[10:11], vcc
    v_mul_u32_u24 v15, {CH}, v0
    v_lshlrev_b32 v44, 10, v0
    s_lshl_b32 s12, s4, 2
    s_add_u32 s12, s12, {HDR_OFF}
    buffer_load_dword v45, v44, s[40:43], s12 offen
    s_waitcnt vmcnt(0)
    v_lshrrev_b32 v46, 16, v45
    v_cndmask_b32 v46, 0, v46, s[10:11]
    v_and_b32 v45, 0xffff, v45
    v_add_u32 v9, v15, v45
    v_mov_b32 v14, v46
    """)
    a.wave_scan(14)
    a(f"""
    s_nop 0
    v_readlane_b32 s10, v14, 63
    s_lshl_b32 s11, s3, 2
    v_mov_b32 v44, s11
    s_nop 0
    v_mov_b32 v45, s10
    ds_write_b32 v44, v45 offset:{L_WT}
    s_waitcnt lgkmcnt(0)
    s_barrier
    v_and_b32 v44, 7, v1
    v_lshlrev_b32 v45, 2, v44
    ds_read_b32 v45, v45 offset:{L_WT}
    v_cmp_gt_u32 vcc, s3, v44
    v_cmp_gt_u32 s[10:11], 8, v1
    s_waitcnt lgkmcnt(0)
    v_cndmask_b32 v45, 0, v45, s[10:11]
    s_nop 1
    v_cndmask_b32 v47, 0, v45, vcc
    """)
    a.wave_scan(45, full=False)
    a.wave_scan(47, full=False)
    a(f"""
    s_nop 0
    v_readlane_b32 s24, v45, 15
    v_readlane_b32 s10, v47, 15
    v_sub_u32 v14, v14, v46
    s_nop 0
    v_add_u32 v14, s10, v14
    s_branch P2_ROUND
    """)
    a.lab("P2_CHK_DONE")
    for k in range(NK):
        for pos in range(4):
            j = 4 * k + pos
            if pos == 2:
                a(f"v_cmp_ne_u32 vcc, -1, v{VT+j}\ns_cbranch_vccz P2_B1_{k}")
            a(f"ds_bpermute_b32 v{VD+j}, v{VD+j}, v33")
        a.lab(f"P2_B1_{k}")
    a(f"""
    s_add_u32 s12, s12, 31
    s_lshr_b32 s12, s12, 5
    s_add_u32 s21, s12, 7
    s_sub_u32 s21, s21, s3
    s_lshr_b32 s21, s21, 3
    s_lshr_b32 s13, s12, 3
    s_and_b32 s14, s12, 7
    """)
    a(f"""
    s_mul_i32 s10, s3, s13
    s_min_u32 s11, s3, s14
    s_add_u32 s10, s10, s11
    s_lshl_b32 s10, s10, 7
    s_lshl_b32 s11, s21, 6
    v_bfe_u32 v53, v1, 3, 1
    v_mul_u32_u24 v53, s11, v53
    v_lshrrev_b32 v54, 4, v1
    v_lshl_add_u32 v53, v54, 4, v53
    v_add_u32 v{V_AS}, s10, v53
    v_bfe_u32 v53, v1, 2, 1
    v_mul_u32_u24 v53, s11, v53
    v_bfe_u32 v54, v1, 3, 2
    v_lshl_add_u32 v53, v54, 4, v53
    v_and_b32 v54, 3, v1
    v_lshl_add_u32 v53, v54, 2, v53
    v_add_u32 v{V_AP}, s10, v53
    v_lshrrev_b32 v53, 5, v1
    v_mul_u32_u24 v53, s11, v53
    v_add_u32 v53, s10, v53
    v_lshrrev_b32 v{V_AG}, 2, v53
    s_waitcnt lgkmcnt(0)
    """)
    a.stamp3(11)
    for k in range(NK):
        for pos in range(4):
            j = 4 * k + pos
            a(f"v_cmpx_ne_u32 vcc, -1, v{VT+j}")
            if pos >= 2:
                a(f"s_cbranch_execz P2_B2_{k}")
            a(f"""
            v_add_lshl_u32 v{VR+j}, v{VR+j}, v{VD+j}, 2
            ds_write2st64_b32 v{VR+j}, v{VE+j}, v{VP+j} offset0:{L_SRC//256} offset1:{L_POS//256}
            """)
        a.lab(f"P2_B2_{k}")
        a("s_mov_b64 exec, -1")
    a.stamp3(12)
    a.stamp(3)
    a("s_waitcnt vmcnt(0) lgkmcnt(0)")
    a.stamp(4)
    a("s_barrier")
    a.stamp(5)
    a.stamp3(13)
    if OPT["stamp"] == "1":
        a("s_memtime s[82:83]\ns_mov_b32 s86, s21")
    if "nomain" in OPT["abl"]:
        a("s_mov_b32 s21, 0")
    gen_fill1(a)
    a(f"""
    s_lshl_b32 s10, s3, 2
    v_add_u32 v64, s10, v33
    v_add_u32 v65, v33, v32
    v_lshlrev_b32 v66, 8, v1
    s_cmp_eq_u32 s3, 0
    s_cselect_b32 s11, 0, -1
    v_mov_b32 v67, s11
    """)
    a.lab("P2_G_L")
    a(f"""
    v_cmpx_lt_u32 vcc, v64, v65
    s_cbranch_execz P2_G_DONE
    ds_write2st64_b32 v64, v66, v67 offset0:{L_GT//256} offset1:{L_GM//256}
    v_add_u32 v64, 32, v64
    v_mov_b32 v67, -1
    s_branch P2_G_L
    """)
    a.lab("P2_G_DONE")
    a("s_mov_b64 exec, -1")
    a(f"""
    s_cmp_lg_u32 s25, 0
    s_cbranch_scc1 P2_PREP_A
    s_lshr_b32 s9, s3, 2
    s_lshl_b32 s10, s9, 12
    s_add_u32 s10, s10, {L_PX}
    s_sub_u32 s10, s10, s20
    """)
    for t in range(4):
        a(f"""
        v_add_u32 v{64+t}, s10, v{V_XR+t}
        ds_read_b128 v[{VX+4*t}:{VX+4*t+3}], v{64+t}
        """)
    a(f"""
    s_lshl_b32 s9, s9, 13
    s_and_b32 s10, s3, 1
    s_lshl_b32 s10, s10, 2
    s_add_u32 s9, s9, s10
    v_lshl_add_u32 v2, v{V_H16}, 6, v{V_N8}
    v_add_u32 v2, s9, v2
    s_waitcnt lgkmcnt(0)
    """)
    for t in range(4):
        c = "0" if t == 0 else f"v[{VAP}:{VAP+15}]"
        a(f"v_mfma_f32_32x32x16_bf16 v[{VAP}:{VAP+15}], v[{VX+4*t}:{VX+4*t+3}], v[{VF+4*t}:{VF+4*t+3}], {c}")
    a.lab("P2_PREP_A")
    a(f"""
    s_add_u32 s10, s13, 1
    s_mul_i32 s11, s14, s10
    s_lshl_b32 s11, s11, 1
    v_cvt_f32_u32 v68, s10
    v_cvt_f32_u32 v69, s13
    v_rcp_f32 v68, v68
    v_rcp_f32 v69, v69
    s_lshl_b32 s10, s14, 1
    v_lshrrev_b32 v64, 4, v33
    v_bfe_u32 v65, v34, 4, 9
    """)
    for v in (64, 65):
        a(f"""
        v_cmp_gt_u32 vcc, s11, v{v}
        v_subrev_u32 v70, s11, v{v}
        s_nop 0
        v_cndmask_b32 v70, v70, v{v}, vcc
        v_cndmask_b32 v71, v69, v68, vcc
        v_cvt_f32_u32 v70, v70
        v_add_f32 v70, 0.5, v70
        v_mul_f32 v70, v70, v71
        v_cvt_u32_f32 v70, v70
        v_add_u32 v71, s10, v70
        v_cndmask_b32 v{v}, v71, v70, vcc
        """)
    a(f"""
    v_sub_u32 v65, v65, v64
    v_add_u32 v65, 1, v65
    v_cmp_ne_u32 vcc, 0, v32
    v_lshrrev_b32 v66, 4, v0
    v_lshlrev_b32 v66, 2, v66
    v_cndmask_b32 v65, 0, v65, vcc
    v_and_b32 v64, 15, v64
    v_lshl_or_b32 v65, v64, 8, v65
    v_add_u32 v67, 128, v66
    ds_bpermute_b32 v7, v66, v65
    ds_bpermute_b32 v8, v67, v65
    s_cmp_lg_u32 s25, 0
    s_cbranch_scc1 P2_PREP_DONE
    s_bitcmp1_b32 s3, 1
    s_cbranch_scc1 P2_HU
    """)

    def dwrites(base):
        a("s_cmp_ge_u32 s3, 4\ns_cbranch_scc1 " + f"P2_DW1_{base}")
        for i in range(16):
            a(f"ds_write_b32 v2, v{VAP+i} offset:{base+(8*(i//4)+i%4)*256}")
        a(f"s_branch P2_DW2_{base}")
        a.lab(f"P2_DW1_{base}")
        for i in range(8):
            a(f"ds_write_b32 v2, v{VAP+i} offset:{base+(8*(i//4)+i%4)*256}")
        a("s_mov_b32 exec_hi, 0")
        for i in (8, 9):
            a(f"ds_write_b32 v2, v{VAP+i} offset:{base+(8*(i//4)+i%4)*256}")
        a("s_mov_b64 exec, -1")
        a.lab(f"P2_DW2_{base}")

    for i in range(16):
        a(f"v_mul_f32 v{VAP+i}, {NLOG2E:#x}, v{VAP+i}")
    a(f"v_max3_f32 v64, abs(v{VAP}), abs(v{VAP+1}), abs(v{VAP+2})")
    for i in range(3, 15, 2):
        a(f"v_max3_f32 v64, abs(v{VAP+i}), abs(v{VAP+i+1}), v64")
    a(f"""
    v_max_f32 v64, abs(v{VAP+15}), v64
    v_mov_b32 v65, 0x42700000
    v_cmp_lt_f32 s[10:11], v65, v64
    """)
    for i in range(0, 16, 2):
        a(f"""
        v_cmp_u_f32 vcc, v{VAP+i}, v{VAP+i+1}
        s_or_b64 s[10:11], s[10:11], vcc
        """)
    a(f"""
    s_cmp_eq_u64 s[10:11], 0
    s_cbranch_scc1 P2_EA_W
    v_mov_b32 v65, 2
    ds_or_b32 v41, v65 offset:{L_FLAG}
    s_branch P2_EA_W
    """)
    a.lab("P2_HU")
    a(f"v_add_u32 v2, {L_HU}, v2")
    for i in range(16):
        a(f"v_cvt_pk_bf16_f32 v{VAP+i}, v{VAP+i}, v{VAP+i}")
    for i in range(16):
        a(f"v_and_b32 v{VAP+i}, 0xffff0000, v{VAP+i}")
    dwrites(0)
    a.lab("P2_EA_W")
    a(f"""
    v_lshlrev_b32 v64, 4, v1
    v_add_u32 v64, {L_ACC}, v64
    """)
    for f in range(4, 18):
        a(f"ds_read_b128 {wfrag(f)}, v64 offset:{1024*f}")
    a(f"""
    s_waitcnt lgkmcnt(0)
    s_barrier
    ds_read_b32 v65, v41 offset:{L_FLAG}
    s_waitcnt lgkmcnt(0)
    v_readfirstlane_b32 s15, v65
    s_lshr_b32 s15, s15, 1
    s_bitcmp1_b32 s3, 1
    s_cbranch_scc1 P2_EA3
    s_cmp_lg_u32 s15, 0
    s_cbranch_scc1 P2_EA2_W
    """)
    for k in range(16):
        a(f"v_exp_f32 v{VAP+k}, v{VAP+k}")
    a("s_nop 0")
    a.lab("P2_EA2_W")
    dwrites(L_EA)
    a.lab("P2_EA3")
    for f in range(4):
        a(f"ds_read_b128 {wfrag(f)}, v64 offset:{1024*f}")
    a("s_mov_b32 s25, 1")
    a.lab("P2_PREP_DONE")
    a(f"""
    s_waitcnt lgkmcnt(0)
    s_barrier
    """)
    a.stamp3(14)
    a(f"""
    s_cmp_eq_u32 s21, 0
    s_cbranch_scc1 P2_MAIN_DONE
    """)
    gen_fill2(a)
    a.stamp(14)
    a(f"""
    s_cmp_lg_u32 s15, 0
    s_cbranch_scc1 P2_LOOPS
    """)
    gen_loop(a, False, "F")
    gen_loop(a, True, "S")
    a.lab("P2_FLUSH")
    for g in range(4):
        a(f"ds_write_b32 v{V_G+g}, v{V_ACC[1]+g} offset:{L_ACC+4}")
    a.lab("P2_MAIN_DONE")
    a.stamp(6)
    if OPT["stamp"] == "1":
        a("s_memtime s[84:85]\ns_getreg_b32 s88, hwreg(HW_REG_HW_ID)\ns_getreg_b32 s90, hwreg(HW_REG_XCC_ID)")
    a(f"""
    s_waitcnt vmcnt(0) lgkmcnt(0)
    s_barrier
    """)
    a.stamp(7)
    for h in range(2):
        a(f"""
        v_and_b32 v24, 0xff, v{7+h}
        v_and_b32 v25, 0xff00, v{7+h}
        v_add_u32 v25, v25, v3
        v_add_u32 v25, {L_ACC+8192*h}, v25
        """)
        a.lab(f"P2_FOLD{h}")
        a(f"""
        v_cmpx_lt_u32 vcc, 0, v24
        s_cbranch_execz P2_FOLD_DONE{h}
        ds_read_b128 v[32:35], v25
        v_add_u32 v24, -1, v24
        v_add_u32 v25, 0x100, v25
        s_waitcnt lgkmcnt(0)
        v_add_f32 v{V_RUN+4*h}, v{V_RUN+4*h}, v32
        v_add_f32 v{V_RUN+4*h+1}, v{V_RUN+4*h+1}, v33
        v_add_f32 v{V_RUN+4*h+2}, v{V_RUN+4*h+2}, v34
        v_add_f32 v{V_RUN+4*h+3}, v{V_RUN+4*h+3}, v35
        s_branch P2_FOLD{h}
        """)
        a.lab(f"P2_FOLD_DONE{h}")
        a("s_mov_b64 exec, -1")
    a(f"""
    s_add_u32 s23, s23, {512*JS}
    s_cmp_lt_u32 s23, s24
    s_cbranch_scc1 P2_ROUND
    v_lshrrev_b32 v5, 4, v0
    v_and_b32 v6, 15, v0
    v_lshlrev_b32 v5, 7, v5
    v_lshl_add_u32 v5, v6, 2, v5
    v_add_u32 v6, 0x1000, v5
    """)
    for h in range(2):
        R = V_RUN + 4 * h
        a(f"""
        v_add_u32 v24, {L_HU+8192*h}, v3
        ds_read_b128 v[32:35], v24
        v_cvt_pk_bf16_f32 v36, v{R}, v{R+2}
        v_cvt_pk_bf16_f32 v37, v{R+1}, v{R+3}
        v_lshlrev_b32 v28, 16, v36
        v_and_b32 v30, 0xffff0000, v36
        v_lshlrev_b32 v29, 16, v37
        v_and_b32 v31, 0xffff0000, v37
        s_waitcnt lgkmcnt(0)
        v_add_f32 v28, v28, v32
        v_add_f32 v29, v29, v33
        v_add_f32 v30, v30, v34
        v_add_f32 v31, v31, v35
        v_cvt_pk_bf16_f32 v36, v28, v30
        v_cvt_pk_bf16_f32 v37, v29, v31
        v_lshlrev_b32 v28, 16, v36
        v_and_b32 v30, 0xffff0000, v36
        v_lshlrev_b32 v29, 16, v37
        v_and_b32 v31, 0xffff0000, v37
        """)
        for k in range(4):
            a(f"v_mul_f32 v{32+k}, {NLOG2E:#x}, v{28+k}")
        for k in range(4):
            a(f"v_exp_f32 v{32+k}, v{32+k}")
        for k in range(4):
            a(f"v_add_f32 v{32+k}, 1.0, v{32+k}")
        for k in range(4):
            a(f"v_rcp_f32 v{32+k}, v{32+k}")
        for k in range(4):
            a(f"v_mul_f32 v{28+k}, v{28+k}, v{32+k}")
        a(f"""
        v_cvt_pk_bf16_f32 v{38+2*h}, v28, v30
        v_cvt_pk_bf16_f32 v{39+2*h}, v29, v31
        buffer_store_dword v{38+2*h}, v{5+h}, s[44:47], 0 offen
        buffer_store_dword v{39+2*h}, v{5+h}, s[44:47], 0 offen offset:64
        """)
    a.stamp(8)
    a.stamp_flush(15, 40, 8, DBG2_OFF)
    a.lab("P2_END")
    a("s_endpgm")
    return a.text()


HEAD = open("standalone__edge_featured_mpnn_egc__graph.s.ref").read().split("; Override launch")[0]


def kd(name, vgpr, sgpr):
    acc = (vgpr + 3) // 4 * 4
    return f""".amdhsa_kernel {name}
  .amdhsa_next_free_vgpr {vgpr}
  .amdhsa_next_free_sgpr {sgpr}
  .amdhsa_accum_offset {acc}
  .amdhsa_group_segment_fixed_size 0
  .amdhsa_kernarg_size 80
  .amdhsa_user_sgpr_count 2
  .amdhsa_user_sgpr_kernarg_segment_ptr 1
  .amdhsa_system_sgpr_workgroup_id_x 1
.end_amdhsa_kernel
"""


def main():
    out = HEAD
    out += f"; @launch kernel=p1_kernel grid=({NCH},1,1) block=(704,1,1) lds={P1_LDS}\n"
    out += f"; @launch kernel=p2_kernel grid=({NB},1,1) block=(512,1,1) lds={P2_LDS}\n"
    out += '.amdgcn_target "amdgcn-amd-amdhsa--gfx950"\n.text\n'
    out += ".globl p1_kernel\n.p2align 8\n.type p1_kernel,@function\n" + gen_p1()
    out += ".globl p2_kernel\n.p2align 8\n.type p2_kernel,@function\n" + gen_p2()
    out += '.section .rodata,"a"\n.p2align 6\n' + kd("p1_kernel", 64, 100) + ".p2align 6\n" + kd("p2_kernel", 256, 100)
    open(sys.argv[1], "w").write(out)


main()
```

```python
import sys

N = 12500; E = 800000
NCH = 320; CH = 2500
NK = NCH // 64
TROW = NCH * 128
NB = 256; NPB = 49; MUL = 21400
SUBN = 16
SLOTS = 4096
JS = 7
NLOG2E = 0xBFB8AA3B

T_OFF = 0x0
ENT_OFF = 0xA00000
HDR_OFF = 0xE00000
WF_OFF = 0xE80000
DBG1_OFF = 0x2C00000
DBG2_OFF = 0x2D00000
WS_SIZE = 0x3000000
NFRAG = 34

OPT = dict(p1_store="", p1_tstore="", p1_ld="nt", abl="", stamp="", prio_hi="1", prio_lo="0", xpf="1",
           p1_sched="[[0,1],[2,3],[4,5],[6]]", bunch="1", ne="4", e_pol="", epf1="0", epf2="0", epf_pol="")
for a_ in sys.argv[2:]:
    k_, v_ = a_.split("=")
    OPT[k_] = v_


class A:
    def __init__(self):
        self.l = []

    def __call__(self, s):
        for x in s.strip().split("\n"):
            self.l.append("    " + x.strip())

    def lab(self, s):
        self.l.append(s + ":")

    def srd(self, d, lo, hi, nrec, add=None):
        if add is None:
            self(f"s_mov_b32 s{d}, s{lo}\ns_mov_b32 s{d+1}, s{hi}")
        else:
            self(f"s_add_u32 s{d}, s{lo}, {add}\ns_addc_u32 s{d+1}, s{hi}, 0")
        self(f"s_mov_b32 s{d+2}, {nrec}\ns_mov_b32 s{d+3}, 0x20000")

    def wave_scan(self, v, full=True):
        for sh in (1, 2, 4, 8):
            self("s_nop 1")
            self(f"v_add_u32_dpp v{v}, v{v}, v{v} row_shr:{sh} row_mask:0xf bank_mask:0xf bound_ctrl:0")
        if full:
            self("s_nop 1")
            self(f"v_add_u32_dpp v{v}, v{v}, v{v} row_bcast:15 row_mask:0xa bank_mask:0xf")
            self("s_nop 1")
            self(f"v_add_u32_dpp v{v}, v{v}, v{v} row_bcast:31 row_mask:0xc bank_mask:0xf")

    def stamp(self, k):
        if OPT["stamp"] == "1":
            self(f"s_memrealtime s[{64+2*k}:{65+2*k}]")

    def stamp3(self, k):
        if OPT["stamp"] == "3":
            self(f"s_memtime s[{64+2*k}:{65+2*k}]")

    def stamp_flush(self, n, srd, nw, base):
        if not OPT["stamp"]:
            return
        self(f"""
        s_waitcnt lgkmcnt(0)
        s_mov_b64 exec, -1
        s_mul_i32 s10, s2, {nw}
        s_add_u32 s10, s10, s3
        s_lshl_b32 s10, s10, 6
        s_add_u32 s10, s10, {base}
        v_mov_b32 v1, 0
        """)
        for k in range(n):
            self(f"v_mov_b32 v2, s{64+2*k}\nbuffer_store_dword v2, v1, s[{srd}:{srd+3}], s10 offen offset:{4*k}\ns_nop 1")

    def text(self):
        return "\n".join(self.l) + "\n"


def sub_dl(j):
    return (1 if j < 10 else 8) + (j % 10) // 5, 6 * (j % 5)


def sub_src(j):
    return (3 if j < 10 else 10) + (j % 10) // 2, 16 * (j % 2)


P1_HIST = 0; P1_START = 1024; P1_ENT = 2048
P1_LDS = P1_ENT + CH * 4 + 256


def gen_p1():
    a = A()
    ST = OPT["p1_store"]; TST = OPT["p1_tstore"]; LD = OPT["p1_ld"]
    a.lab("p1_kernel")
    a(f"""
    s_cmp_ge_u32 s2, {NCH}
    s_cbranch_scc1 P1_END
    """)
    a.stamp(0)
    a(f"""
    s_load_dwordx16 s[16:31], s[0:1], 0
    s_load_dwordx4 s[32:35], s[0:1], 64
    v_and_b32 v1, 63, v0
    v_lshrrev_b32 v5, 6, v0
    v_lshlrev_b32 v2, 4, v0
    v_lshlrev_b32 v3, 2, v0
    v_readfirstlane_b32 s3, v5
    v_lshlrev_b32 v4, 4, v1
    v_mov_b32 v6, 0
    v_and_b32 v7, 0x3fc, v3
    ds_write_b32 v7, v6 offset:{P1_HIST}
    s_mul_i32 s4, s2, {CH*4}
    v_and_b32 v24, 31, v1
    v_lshrrev_b32 v25, 5, v1
    s_waitcnt lgkmcnt(0)
    """)
    a.srd(44, 22, 23, CH * 4, "s4")
    a.srd(40, 20, 21, CH * 4, "s4")
    a(f"""
    buffer_load_dwordx4 v[8:11], v2, s[44:47], 0 offen {LD}
    buffer_load_dwordx4 v[12:15], v2, s[40:43], 0 offen {LD}
    """)
    if OPT["epf1"] != "0":
        nl = 625 * int(OPT["epf1"]) // 8
        a(f"s_mul_i32 s5, s2, {CH*32}")
        a.srd(36, 18, 19, nl * 128, "s5")
        a(f"v_lshlrev_b32 v60, 7, v0\nbuffer_load_dword v61, v60, s[36:39], 0 offen {OPT['epf_pol']}")
    a.srd(48, 34, 35, WS_SIZE)
    a.srd(56, 28, 29, 2048 - 64)
    a(f"""
    v_lshlrev_b32 v26, 10, v25
    v_lshl_add_u32 v26, v24, 1, v26
    s_mov_b32 s14, 1.0
    s_cmp_lg_u32 s3, 10
    s_cbranch_scc1 P1_FL_DONE
    s_cmp_ge_u32 s2, {NFRAG}
    s_cbranch_scc1 P1_FL_DONE
    s_sub_u32 s5, s2, 2
    s_cmp_ge_u32 s2, 18
    s_cselect_b32 s5, s5, s2
    s_and_b32 s6, s5, 3
    s_lshl_b32 s6, s6, 11
    s_lshr_b32 s7, s5, 2
    s_and_b32 s7, s7, 1
    s_lshl_b32 s7, s7, 6
    s_add_u32 s6, s6, s7
    s_cmp_ge_u32 s2, 8
    s_cbranch_scc1 P1_FL1
    s_add_u32 s6, s6, 8192
    s_mov_b32 s14, {NLOG2E}
    s_branch P1_FL3
    """)
    a.lab("P1_FL1")
    a(f"""
    s_cmp_ge_u32 s2, 16
    s_cbranch_scc1 P1_FL2
    s_mov_b32 s56, s26
    s_mov_b32 s57, s27
    s_branch P1_FL3
    """)
    a.lab("P1_FL2")
    a(f"""
    s_cmp_ge_u32 s2, 26
    s_cselect_b32 s56, s24, s28
    s_cselect_b32 s57, s25, s29
    s_cmp_ge_u32 s2, 18
    s_cbranch_scc1 P1_FL3
    s_mov_b32 s14, {NLOG2E}
    s_and_b32 s6, s2, 1
    s_lshl_b32 s6, s6, 6
    s_add_u32 s6, s6, 16384
    """)
    a.lab("P1_FL3")
    a(f"""
    s_add_u32 s56, s56, s6
    s_addc_u32 s57, s57, 0
    """)
    for jj in range(8):
        a(f"buffer_load_ushort v{40+jj}, v26, s[56:59], 0 offen offset:{jj*128}")
    a("s_waitcnt vmcnt(0)")
    for jj in range(8):
        a(f"v_lshlrev_b32 v{40+jj}, 16, v{40+jj}")
    for jj in range(8):
        a(f"v_mul_f32 v{40+jj}, s14, v{40+jj}")
    for q in range(4):
        a(f"v_cvt_pk_bf16_f32 v{48+q}, v{40+2*q}, v{40+2*q+1}")
    a(f"""
    s_lshl_b32 s6, s2, 10
    s_add_u32 s6, s6, {WF_OFF}
    buffer_store_dwordx4 v[48:51], v4, s[48:51], s6 offen
    s_endpgm
    """)
    a.lab("P1_FL_DONE")
    a(f"""
    s_cmp_ge_u32 s3, 10
    s_cbranch_scc1 P1_END
    v_cmp_gt_u32 vcc, {CH//4}, v0
    s_mov_b64 s[8:9], vcc
    v_mov_b32 v30, 1
    s_barrier
    s_waitcnt vmcnt({2 if OPT["epf1"] != "0" else 1})
    """)
    a.stamp(1)
    a("s_mov_b64 exec, s[8:9]")
    for e in range(4):
        a(f"""
        v_mul_u32_u24 v{16+e}, {MUL}, v{8+e}
        v_lshrrev_b32 v31, 20, v{16+e}
        v_lshlrev_b32 v{16+e}, 2, v31
        ds_add_rtn_u32 v{20+e}, v{16+e}, v30 offset:{P1_HIST}
        v_mul_u32_u24 v31, {NPB}, v31
        v_sub_u32 v{8+e}, v{8+e}, v31
        """)
    a("s_mov_b64 exec, -1\ns_waitcnt lgkmcnt(0)")
    a.stamp(2)
    a("s_barrier")
    a.stamp(3)
    a(f"""
    s_cmp_lg_u32 s3, 0
    s_cbranch_scc1 P1_SC_DONE
    ds_read_b128 v[32:35], v4 offset:{P1_HIST}
    s_waitcnt lgkmcnt(0)
    v_add_u32 v36, v32, v33
    v_add_u32 v37, v36, v34
    v_add_u32 v38, v37, v35
    v_mov_b32 v39, v38
    """)
    a.wave_scan(39)
    a(f"""
    v_sub_u32 v40, v39, v38
    v_add_u32 v41, v32, v40
    v_add_u32 v42, v36, v40
    v_add_u32 v43, v37, v40
    ds_write_b128 v4, v[40:43] offset:{P1_START}
    v_lshl_or_b32 v44, v32, 16, v40
    v_lshl_or_b32 v45, v33, 16, v41
    v_lshl_or_b32 v46, v34, 16, v42
    v_lshl_or_b32 v47, v35, 16, v43
    s_lshl_b32 s6, s2, 10
    s_add_u32 s6, s6, {HDR_OFF}
    buffer_store_dwordx4 v[44:47], v4, s[48:51], s6 offen
    """)
    a.lab("P1_SC_DONE")
    a(f"""
    s_waitcnt vmcnt({2 if OPT["epf1"] != "0" else 1})
    s_cmp_eq_u32 s3, 0
    s_cbranch_scc1 P1_W0
    s_waitcnt vmcnt({1 if OPT["epf1"] != "0" else 0})
    """)
    a.lab("P1_W0")
    for e in range(4):
        a(f"""
        v_lshl_or_b32 v{36+e}, v{8+e}, 14, v{12+e}
        v_add_u32 v31, {e}, v3
        v_lshl_or_b32 v{36+e}, v31, 20, v{36+e}
        """)
    a(f"""
    v_lshrrev_b32 v7, 3, v0
    v_lshlrev_b32 v6, 2, v7
    v_and_b32 v27, 7, v0
    s_waitcnt lgkmcnt(0)
    s_barrier
    """)
    a.stamp(4)
    for r in range(4):
        a(f"""
        ds_read_b32 v{40+r}, v6 offset:{P1_START+320*r}
        ds_read_b32 v{44+r}, v6 offset:{P1_HIST+320*r}
        """)
    a("s_mov_b64 exec, s[8:9]")
    for e in range(4):
        a(f"ds_read_b32 v{32+e}, v{16+e} offset:{P1_START}")
    for e in range(4):
        a(f"""
        s_waitcnt lgkmcnt(3)
        v_add_lshl_u32 v{32+e}, v{32+e}, v{20+e}, 2
        ds_write_b32 v{32+e}, v{36+e} offset:{P1_ENT}
        """)
    a("s_mov_b64 exec, -1")
    for r in range(4):
        a(f"""
        v_add_lshl_u32 v{40+r}, v{40+r}, v27, 2
        v_add_u32 v{40+r}, {P1_ENT}, v{40+r}
        v_sub_u32 v{48+r}, v{44+r}, v27
        """)
    a(f"""
    s_lshl_b32 s6, s2, 7
    s_add_u32 s6, s6, {T_OFF}
    s_add_u32 s10, s4, {ENT_OFF}
    v_mul_u32_u24 v28, {TROW}, v7
    v_lshl_or_b32 v28, v27, 4, v28
    s_waitcnt lgkmcnt(0)
    """)
    a.stamp(5)
    a("s_barrier")
    a.stamp(6)
    for r in range(3):
        a(f"""
        ds_read2_b32 v[{8+4*r}:{9+4*r}], v{40+r} offset0:0 offset1:8
        ds_read2_b32 v[{10+4*r}:{11+4*r}], v{40+r} offset0:16 offset1:24
        """)
    a(f"""
    ds_read_b128 v[32:35], v2 offset:{P1_ENT}
    s_cmp_ge_u32 s3, 2
    s_cbranch_scc1 P1_R2SKIP
    ds_read2_b32 v[20:21], v43 offset0:0 offset1:8
    ds_read2_b32 v[22:23], v43 offset0:16 offset1:24
    """)
    a.lab("P1_R2SKIP")
    for r in range(4):
        if r == 3:
            a(f"""
            s_mov_b64 exec, s[8:9]
            buffer_store_dwordx4 v[32:35], v2, s[48:51], s10 offen {ST}
            s_mov_b64 exec, -1
            s_cmp_ge_u32 s3, 2
            s_cbranch_scc1 P1_FIN
            """)
        for k in range(4):
            a(f"v_cmp_lt_i32 s[{16+2*k}:{17+2*k}], {8*k}, v{48+r}")
        a(f"v_cmp_lt_u32 vcc, 32, v{44+r}")
        a("s_waitcnt lgkmcnt(0)" if r == 0 else "s_nop 0")
        for k in range(4):
            a(f"v_cndmask_b32 v{8+4*r+k}, -1, v{8+4*r+k}, s[{16+2*k}:{17+2*k}]")
        a(f"""
        v_cndmask_b32 v{8+4*r}, v{8+4*r}, -2, vcc
        buffer_store_dwordx4 v[{8+4*r}:{11+4*r}], v28, s[48:51], s6 offen {TST}
        s_add_u32 s6, s6, {80*TROW}
        """)
    a.lab("P1_FIN")
    a.stamp(7)
    if OPT["stamp"]:
        a("s_waitcnt vmcnt(0)")
    a.stamp(8)
    a.stamp_flush(9, 48, 16, DBG1_OFF)
    a.lab("P1_END")
    a("s_endpgm")
    return a.text()


L_NCNT = 0; L_FLAG = 256; L_WT = 272
L_SRC = 512; L_POS = L_SRC + 16384; L_GT = L_POS + 16384; L_GM = L_GT + 4096; L_EA = L_GM + 4096
NROW = 50
L_ACC = L_EA + NROW * 256
L_XB = L_ACC + 18432
L_HU = L_XB + 65536
L_PX = L_HU + NROW * 256
P2_LDS = L_PX + 8192
assert P2_LDS <= 163840 and L_ACC + 4 < 65536 and (16 + NROW) * 256 <= 18432
SENT = 0x40000000

V_W = 184
V_Z0 = 64; V_H0 = 80; V_Z1 = 96; V_H1 = 112
V_XA = (128, 28); V_EA = (144, 44, 24, 56)
V_G = 148; V_GR = 152; V_EV = 156
V_SL = 164
V_ACC = (168, 52)
V_XR = 172
V_PS = 176
V_AS = 177; V_AP = 178; V_AG = 179
V_N8 = 181; V_H16 = 182; V_N8H = 183
V_K = (180, 10, 11, 12)
V_GE = 60
V_GM = 48
V_RUN = 16
NE = int(OPT["ne"])


def wfrag(f):
    return f"v[{V_W+4*f}:{V_W+4*f+3}]"


def mf_list(u, Z, H, ph):
    xa = V_XA[ph % 2]; ea = V_EA[ph % NE]
    l = [f"v_mfma_f32_32x32x16_bf16 v[{Z}:{Z+15}], v[{ea}:{ea+3}], {wfrag(16+u)}, 0"]
    for t in range(4):
        l.append(f"v_mfma_f32_32x32x16_bf16 v[{Z}:{Z+15}], v[{xa+4*t}:{xa+4*t+3}], {wfrag(u*4+t)}, v[{Z}:{Z+15}]")
    for t in range(4):
        c = "0" if t == 0 else f"v[{H}:{H+15}]"
        l.append(f"v_mfma_f32_32x32x16_bf16 v[{H}:{H+15}], v[{xa+4*t}:{xa+4*t+3}], {wfrag(8+u*4+t)}, {c}")
    return l


def body(ph, safe):
    out = []
    par = ph % 2
    npar = 1 - par
    PH = OPT["prio_hi"]; PL = OPT["prio_lo"]
    cnt = [0]
    bunch = OPT["bunch"] == "1"

    def lstamp():
        if OPT["stamp"] == "2" and ph == 1:
            out.append(f"s_memtime s[{64+2*cnt[0]}:{65+2*cnt[0]}]")
            cnt[0] += 1

    def trun(instrs, mf, fill):
        lstamp()
        if PH != PL:
            out.append(f"s_setprio {PH}")
        mf = list(mf)
        for k, x in enumerate(instrs):
            out.append(x)
            if k % 3 == 0 and mf:
                out.append(mf.pop(0))
            elif fill:
                if bunch:
                    out.extend(fill); del fill[:]
                else:
                    out.append(fill.pop(0))
        assert not mf
        if PH != PL:
            out.append(f"s_setprio {PL}")

    def half(u, Z, H, mf, fill, preF, postF, fillR, preM, postM):
        ev = lambda i: V_EV + 2 * (i // 4) + u
        if safe:
            if u == 0:
                out.append(("W", "ev3"))
            out.extend(f"v_add_f32 v{Z+i}, v{ev(i)}, v{Z+i}" for i in range(16))
        trun([f"v_exp_f32 v{Z+i}, v{Z+i}" for i in range(16)], mf[:5], fill)
        lstamp()
        out.extend(preF)
        if safe:
            out.extend(f"v_add_f32 v{Z+i}, 1.0, v{Z+i}" for i in range(16))
        else:
            out.extend(f"v_fma_f32 v{Z+i}, v{Z+i}, v{ev(i)}, 1.0" for i in range(16))
        out.extend(postF)
        fill.extend(fillR)
        trun([f"v_rcp_f32 v{Z+i}, v{Z+i}" for i in range(16)], mf[5:], fill)
        assert not fill, fill
        lstamp()
        out.extend(preM)
        A_ = V_ACC[u]
        for g in range(4):
            out.append(f"v_and_b32 v{A_+g}, v{A_+(g+3)%4}, v{V_GM+g}")
            out.extend(f"v_fmac_f32 v{A_+g}, v{Z+4*g+k}, v{H+4*g+k}" for k in range(4))
        out.extend(postM)

    def accw(u):
        return [("L", f"ds_write_b32 v{V_G+g}, v{V_ACC[u]+g} offset:{L_ACC+4*u}", None) for g in range(4)]

    xa = V_XA[npar]
    fill = [f"s_cmp_gt_u32 s21, {NE}", "s_cselect_b32 s58, s18, 0",
            f"buffer_load_dwordx4 v[{V_EA[ph]}:{V_EA[ph]+3}], v{V_PS}, s[56:59], 0 offen {OPT['e_pol']}"] + accw(1)
    fill.append(("L", f"ds_read_b128 v[{V_GM}:{V_GM+3}], v{V_AG} offset:{L_GM+16*ph}", "gm"))
    preF = [f"v_add_u32 v{V_G+g}, v{V_GR+g}, v{V_N8H}" for g in range(4)] + ([] if safe else [("W", "ev3")])
    fillR = [f"s_waitcnt vmcnt({5 if NE == 2 else 6})"]
    for t in range(4):
        fillR.append(("L", f"ds_read_b128 v[{xa+4*t}:{xa+4*t+3}], v{V_XR+t} offset:{npar*4096}", f"xa{t}"))
    fillR += [("L", f"ds_read_b128 v[{V_SL}:{V_SL+3}], v{V_AS} offset:{L_SRC+64*(3+ph)}", "sl"),
              ("L", f"ds_read_b128 v[{V_GR}:{V_GR+3}], v{V_AG} offset:{L_GT+16*(1+ph)}", "gr"),
              ("L", f"ds_read_b32 v{V_PS}, v{V_AP} offset:{L_POS+64*(NE+1+ph)}", "pos"),
              "s_cmp_gt_u32 s21, 3", "s_cselect_b32 s38, s19, 0", f"s_add_u32 m0, s20, {npar*4096}"]
    postM = [("W", "sl")] + [f"v_or_b32 v{V_SL+j}, v{V_SL+j}, v{V_K[j]}" for j in range(4)]
    half(0, V_Z0, V_H0, mf_list(1, V_Z1, V_H1, ph), fill, preF, [], fillR, [("W", "gm")], postM)
    fill = []
    aw = accw(0)
    for j in range(4):
        fill.append(f"buffer_load_dwordx4 v{V_SL+j}, s[36:39], 0 offen lds")
        if j < 3:
            fill.append(f"s_add_u32 m0, s20, {npar*4096+(j+1)*1024}")
        fill.append(aw[j])
    postF = [("W", "pos")] + [f"v_add_u32 v{V_GE+g}, v{V_GR+g}, v{V_N8}" for g in range(4)]
    postF.append(f"v_add_u32 v{V_PS}, v{V_PS}, v{V_H16}")
    fillR = [("L", f"ds_read_b64 v[{V_EV+2*g}:{V_EV+2*g+1}], v{V_GE+g} offset:{L_EA}", f"ev{g}") for g in range(4)]
    half(1, V_Z1, V_H1, mf_list(0, V_Z0, V_H0, ph + 1), fill, [], postF, fillR, [], [])
    lstamp()
    if "nomfma" in OPT["abl"]:
        out = [x for x in out if not (isinstance(x, str) and "mfma" in x)]
    if "novalu" in OPT["abl"]:
        out = [x for x in out if not (isinstance(x, str) and any(k in x for k in ("v_exp", "v_rcp", "v_fma", "v_fmac")))]
    return out


def resolve(prev, cur):
    seq = prev + cur
    res = []
    for i, x in enumerate(seq):
        if i < len(prev):
            continue
        if isinstance(x, str):
            res.append(x)
        elif x[0] == "L":
            res.append(x[1])
        else:
            n = 0
            k = i - 1
            while not (isinstance(seq[k], tuple) and seq[k][0] == "L" and seq[k][2] == x[1]):
                if isinstance(seq[k], tuple) and seq[k][0] == "L":
                    n += 1
                k -= 1
                assert k >= 0, x
            res.append(f"s_waitcnt lgkmcnt({min(n, 15)})")
    return res


def gen_fill1(a):
    EP = OPT['e_pol']
    a(f"ds_read_b128 v[{V_SL}:{V_SL+3}], v{V_AS} offset:{L_SRC}")
    for k in range(NE):
        a(f"ds_read_b32 v{V_GE+k}, v{V_AP} offset:{L_POS+64*k}")
    a(f"""
    ds_read_b128 v[{V_ACC[0]}:{V_ACC[0]+3}], v{V_AS} offset:{L_SRC+64}
    ds_read_b32 v{V_PS}, v{V_AP} offset:{L_POS+64*NE}
    s_waitcnt lgkmcnt(2)
    """)

    def eld(k):
        a(f"""
        s_cmp_gt_u32 s21, {k}
        s_cselect_b32 s58, s18, 0
        v_add_u32 v{V_GE+k}, v{V_GE+k}, v{V_H16}
        buffer_load_dwordx4 v[{V_EA[k]}:{V_EA[k]+3}], v{V_GE+k}, s[56:59], 0 offen {EP}
        """)
    eld(0)
    xld(a, 0, V_SL, 0)
    eld(1)
    if NE == 4:
        eld(2)
    a("s_waitcnt lgkmcnt(0)")
    xld(a, 1, V_ACC[0], 1)
    if NE == 4:
        eld(3)
    a(f"""
    v_add_u32 v{V_PS}, v{V_PS}, v{V_H16}
    ds_read_b128 v[{V_SL}:{V_SL+3}], v{V_AS} offset:{L_SRC+128}
    """)


def xld(a, b, vb, k):
    a(f"s_cmp_gt_u32 s21, {k}\ns_cselect_b32 s38, s19, 0")
    for j in range(4):
        a(f"""
        s_add_u32 m0, s20, {b*4096+j*1024}
        v_or_b32 v{vb+j}, v{vb+j}, v{V_K[j]}
        buffer_load_dwordx4 v{vb+j}, s[36:39], 0 offen lds
        """)


def gen_fill2(a):
    xa = V_XA[0]
    a(f"""
    ds_read_b128 v[{V_GR}:{V_GR+3}], v{V_AG} offset:{L_GT}
    v_mov_b32 v{V_ACC[0]+3}, 0
    v_mov_b32 v{V_ACC[1]+3}, 0
    s_waitcnt lgkmcnt(0)
    """)
    for g in range(4):
        a(f"""
        v_add_u32 v{V_GE+g}, v{V_GR+g}, v{V_N8}
        v_add_u32 v{V_G+g}, v{V_GR+g}, v{V_N8H}
        ds_read_b64 v[{V_EV+2*g}:{V_EV+2*g+1}], v{V_GE+g} offset:{L_EA}
        """)
    a(f"s_waitcnt vmcnt({5 if NE == 2 else 7})")
    for t in range(4):
        a(f"ds_read_b128 v[{xa+4*t}:{xa+4*t+3}], v{V_XR+t}")
    a("s_waitcnt lgkmcnt(0)")
    xld(a, 0, V_SL, 2)
    for m in mf_list(0, V_Z0, V_H0, 0):
        a(m)
    a("s_nop 7\ns_nop 7")


def gen_loop(a, safe, tag):
    bs = [body(p, safe) for p in range(NE)]
    a.lab(f"P2_LOOP{tag}")
    for p in range(NE):
        for x in resolve(bs[p - 1], bs[p]):
            a(x)
        if p < NE - 1:
            a(f"""
            s_sub_u32 s21, s21, 1
            s_cmp_eq_u32 s21, 0
            s_cbranch_scc1 P2_FLUSH
            """)
    a(f"""
    v_add_u32 v{V_AS}, {64*NE}, v{V_AS}
    v_add_u32 v{V_AP}, {64*NE}, v{V_AP}
    v_add_u32 v{V_AG}, {16*NE}, v{V_AG}
    s_sub_u32 s21, s21, 1
    s_cmp_lg_u32 s21, 0
    s_cbranch_scc1 P2_LOOP{tag}
    s_branch P2_FLUSH
    """)


def gen_p2():
    a = A()
    VT = 64
    VP = 84
    VR = 104
    VD = 124
    VE = 144
    VF = 200
    VX = 216
    VAP = 184
    a.lab("p2_kernel")
    a(f"""
    s_cmp_ge_u32 s2, {NB}
    s_cbranch_scc1 P2_END
    """)
    a.stamp(0)
    a.stamp3(0)
    a(f"""
    s_load_dwordx4 s[16:19], s[0:1], 0
    s_load_dwordx2 s[12:13], s[0:1], 56
    s_load_dwordx2 s[34:35], s[0:1], 72
    s_and_b32 s4, s2, 7
    s_lshl_b32 s4, s4, 5
    s_lshr_b32 s5, s2, 3
    s_add_u32 s4, s4, s5
    v_and_b32 v1, 63, v0
    v_lshrrev_b32 v5, 6, v0
    v_lshlrev_b32 v3, 4, v0
    v_lshlrev_b32 v4, 2, v0
    v_readfirstlane_b32 s3, v5
    s_mul_i32 s8, s4, {TROW}
    s_add_u32 s8, s8, {T_OFF}
    s_mul_i32 s6, s4, {NPB*128}
    v_and_b32 v56, 31, v1
    v_lshrrev_b32 v57, 5, v1
    v_and_b32 v58, 7, v1
    v_lshlrev_b32 v59, 2, v57
    v_xor_b32 v58, v58, v59
    v_lshlrev_b32 v{V_K[0]}, 4, v58
    s_waitcnt lgkmcnt(0)
    """)
    a.stamp3(1)
    a.srd(40, 34, 35, WS_SIZE)
    for k in range(NK):
        a(f"buffer_load_dwordx4 v[{VT+4*k}:{VT+4*k+3}], v3, s[40:43], s8 offen\ns_add_u32 s8, s8, 8192")
    a.srd(36, 16, 17, N * 128)
    a.srd(56, 18, 19, E * 32)
    if OPT["epf2"] != "0":
        f1 = 625 * int(OPT["epf1"]) // 8
        a(f"""
        v_add_u32 v60, {f1}, v0
        v_cmp_gt_u32 vcc, 625, v60
        v_lshlrev_b32 v60, 7, v60
        s_mul_i32 s9, s2, {CH*32}
        s_mov_b64 exec, vcc
        buffer_load_dword v61, v60, s[56:59], s9 offen {OPT['epf_pol']}
        s_add_u32 s9, s9, {256*CH*32}
        buffer_load_dword v61, v60, s[56:59], s9 offen {OPT['epf_pol']}
        s_mov_b64 exec, -1
        """)
    a(f"""
    s_add_u32 s44, s12, s6
    s_addc_u32 s45, s13, 0
    s_sub_u32 s46, {N*128}, s6
    s_min_u32 s46, s46, {NPB*128}
    s_mov_b32 s47, 0x20000
    s_mov_b32 s19, {0 if "nox" in OPT["abl"] else N*128}
    s_mov_b32 s18, {0 if "noe" in OPT["abl"] else E*32}
    """)
    NLD = 0
    a.stamp3(2)
    a(f"""
    s_lshl_b32 s20, s3, 13
    s_add_u32 s20, s20, {L_XB}
    v_lshlrev_b32 v{V_N8}, 3, v56
    v_lshlrev_b32 v{V_H16}, 4, v57
    v_lshrrev_b32 v58, 5, v0
    v_lshl_add_u32 v{V_N8H}, v58, 8, v{V_N8}
    v_xor_b32 v{V_K[1]}, 16, v{V_K[0]}
    v_xor_b32 v{V_K[2]}, 32, v{V_K[0]}
    v_xor_b32 v{V_K[3]}, 48, v{V_K[0]}
    v_and_b32 v58, 3, v56
    v_lshrrev_b32 v59, 2, v56
    v_lshl_add_u32 v59, v58, 3, v59
    v_lshlrev_b32 v59, 7, v59
    v_add_u32 v59, s20, v59
    v_lshrrev_b32 v60, 4, v56
    v_lshl_add_u32 v58, v60, 2, v58
    v_xor_b32 v58, v58, v57
    """)
    for t in range(4):
        a(f"""
        v_xor_b32 v60, {2*t}, v58
        v_lshl_add_u32 v{V_XR+t}, v60, 4, v59
        """)
    for k in range(8):
        a(f"v_mov_b32 v{V_RUN+k}, 0")
    a(f"""
    ds_write_b32 v{V_RUN}, v{V_RUN} offset:{L_FLAG}
    s_mov_b32 s23, 0
    s_mov_b32 s24, 0
    s_mov_b32 s25, 0
    s_mov_b32 s15, 0
    """)
    a.lab("P2_ROUND")
    a(f"""
    v_mov_b32 v32, {SENT}
    v_mov_b32 v33, {SENT}
    v_mov_b32 v34, {SENT}
    v_mov_b32 v35, {SENT}
    ds_write_b128 v3, v[32:35] offset:{L_SRC}
    ds_write_b128 v3, v[32:35] offset:{L_SRC+8192}
    ds_write_b128 v3, v[32:35] offset:{L_POS}
    ds_write_b128 v3, v[32:35] offset:{L_POS+8192}
    v_mov_b32 v36, {(NROW-1)*256}
    v_mov_b32 v37, {(NROW-1)*256}
    v_lshlrev_b32 v40, 3, v0
    ds_write_b64 v40, v[36:37] offset:{L_GT}
    v_mov_b32 v38, -1
    v_mov_b32 v39, -1
    ds_write_b64 v40, v[38:39] offset:{L_GM}
    v_mov_b32 v41, 0
    v_and_b32 v42, 0xfc, v4
    ds_write_b32 v42, v41 offset:{L_NCNT}
    v_mov_b32 v43, 1
    s_cmp_lg_u32 s24, 0
    s_cbranch_scc1 P2_SLOW
    """)
    a(f"""
    v_lshrrev_b32 v44, 3, v0
    v_mul_u32_u24 v13, {CH}, v44
    """)
    a.stamp3(3)
    a("s_waitcnt lgkmcnt(0)\ns_barrier")
    a.stamp3(4)
    for k in range(NK):
        a(f"s_waitcnt vmcnt({NK-1-k+(2 if OPT['epf2'] != '0' else 0)})")
        if k == 0:
            a.stamp(1)
        if k < 4:
            a.stamp3(5 + k)
        a(f"""
        v_cmp_eq_u32 vcc, -2, v{VT+4*k}
        s_cbranch_vccz P2_NOOVF{k}
        ds_or_b32 v41, v43 offset:{L_FLAG}
        s_branch P2_A_LD
        """)
        a.lab(f"P2_NOOVF{k}")
        for pos in range(4):
            j = 4 * k + pos
            a(f"v_cmpx_ne_u32 vcc, -1, v{VT+j}")
            if pos >= 2:
                a(f"s_cbranch_execz P2_A{k}")
            a(f"""
            v_bfe_u32 v{VD+j}, v{VT+j}, 14, 6
            v_lshlrev_b32 v{VD+j}, 2, v{VD+j}
            ds_add_rtn_u32 v{VR+j}, v{VD+j}, v43 offset:{L_NCNT}
            v_lshrrev_b32 v{VP+j}, 20, v{VT+j}
            v_add_lshl_u32 v{VP+j}, v{VP+j}, v13, 5
            v_and_b32 v{VE+j}, 0x3fff, v{VT+j}
            v_lshlrev_b32 v{VE+j}, 7, v{VE+j}
            """)
        a.lab(f"P2_A{k}")
        a(f"""
        s_mov_b64 exec, -1
        v_add_u32 v13, {64*CH}, v13
        """)
    a.lab("P2_A_LD")
    a("s_mov_b64 exec, -1")
    a(f"""
    s_and_b32 s9, s3, 3
    s_lshl_b32 s10, s9, 4
    v_xor_b32 v26, s10, v{V_K[0]}
    v_lshrrev_b32 v27, 3, v1
    v_lshl_add_u32 v26, v27, 9, v26
    s_lshr_b32 s10, s3, 2
    s_lshl_b32 s10, s10, 12
    s_lshl_b32 s11, s9, 7
    s_add_u32 s10, s10, s11
    s_add_u32 s10, s10, s6
    s_lshl_b32 s11, s3, 10
    s_add_u32 m0, s11, {L_PX}
    v_lshlrev_b32 v27, 4, v1
    buffer_load_dwordx4 v26, s[36:39], s10 offen lds
    s_add_u32 m0, s11, {L_ACC}
    s_add_u32 s10, s11, {WF_OFF}
    buffer_load_dwordx4 v27, s[40:43], s10 offen lds
    s_add_u32 m0, s11, {L_ACC+8192}
    s_add_u32 s10, s11, {WF_OFF+8192}
    buffer_load_dwordx4 v27, s[40:43], s10 offen lds
    s_and_b32 s11, s11, 0x400
    s_add_u32 m0, s11, {L_ACC+16384}
    s_add_u32 s10, s11, {WF_OFF+16384}
    buffer_load_dwordx4 v27, s[40:43], s10 offen lds
    s_lshl_b32 s9, s9, 12
    s_add_u32 s9, s9, {WF_OFF+18*1024}
    """)
    for t in range(4):
        a(f"buffer_load_dwordx4 v[{VF+4*t}:{VF+4*t+3}], v27, s[40:43], s9 offen offset:{1024*t}")
    a("s_branch P2_A_DONE")
    L_PREF = L_XB
    a.lab("P2_SLOW")
    a(f"""
    v_add_u32 v44, {L_PREF}, v4
    ds_write_b32 v44, v14
    ds_write_b32 v44, v9 offset:2048
    ds_write_b32 v44, v15 offset:4096
    s_waitcnt lgkmcnt(0)
    s_barrier
    """)
    for j in range(4 * NK):
        a(f"v_mov_b32 v{VT+j}, -1")
    for j in range(JS):
        a(f"""
        s_add_u32 s10, s23, {512*j}
        v_add_u32 v44, s10, v0
        v_cmp_gt_u32 vcc, s24, v44
        s_and_saveexec_b64 s[10:11], vcc
        s_cbranch_execz P2_A_DONE
        v_mov_b32 v45, {L_PREF}
        s_mov_b32 s12, 1024
        """)
        a.lab(f"P2_BS{j}")
        a(f"""
        v_add_u32 v46, s12, v45
        ds_read_b32 v47, v46
        s_waitcnt lgkmcnt(0)
        v_cmp_le_u32 vcc, v47, v44
        s_lshr_b32 s12, s12, 1
        s_cmp_ge_u32 s12, 4
        v_cndmask_b32 v45, v45, v46, vcc
        s_cbranch_scc1 P2_BS{j}
        ds_read_b32 v46, v45
        ds_read_b32 v47, v45 offset:2048
        ds_read_b32 v45, v45 offset:4096
        s_waitcnt lgkmcnt(0)
        v_sub_u32 v46, v44, v46
        v_add_lshl_u32 v46, v47, v46, 2
        s_mov_b32 s12, {ENT_OFF}
        buffer_load_dword v{VT+j}, v46, s[40:43], s12 offen
        s_waitcnt vmcnt(0)
        v_bfe_u32 v{VD+j}, v{VT+j}, 14, 6
        v_lshlrev_b32 v{VD+j}, 2, v{VD+j}
        ds_add_rtn_u32 v{VR+j}, v{VD+j}, v43 offset:{L_NCNT}
        v_lshrrev_b32 v{VP+j}, 20, v{VT+j}
        v_add_lshl_u32 v{VP+j}, v{VP+j}, v45, 5
        v_and_b32 v{VE+j}, 0x3fff, v{VT+j}
        v_lshlrev_b32 v{VE+j}, 7, v{VE+j}
        """)
    a.lab("P2_A_DONE")
    a("s_mov_b64 exec, -1")
    a.stamp3(9)
    a(f"""
    v_lshlrev_b32 v44, 2, v1
    s_waitcnt lgkmcnt(0)
    s_barrier
    """)
    a.stamp3(10)
    a.stamp(2)
    a(f"""
    ds_read_b32 v45, v44 offset:{L_NCNT}
    ds_read_b32 v47, v41 offset:{L_FLAG}
    s_waitcnt lgkmcnt(0)
    v_add_u32 v32, 3, v45
    v_and_b32 v32, -4, v32
    v_mov_b32 v33, v32
    v_readfirstlane_b32 s14, v47
    """)
    a.wave_scan(33)
    a(f"""
    s_nop 0
    v_readlane_b32 s12, v33, 63
    v_add_u32 v34, -1, v33
    v_sub_u32 v33, v33, v32
    s_cmp_lg_u32 s24, 0
    s_cbranch_scc1 P2_CHK_DONE
    s_and_b32 s14, s14, 1
    s_cmp_gt_u32 s12, {SLOTS}
    s_cselect_b32 s14, 1, s14
    s_cmp_eq_u32 s14, 0
    s_cbranch_scc1 P2_CHK_DONE
    """)
    a(f"""
    v_cmp_gt_u32 vcc, {NCH}, v0
    s_mov_b64 s[10:11], vcc
    v_mul_u32_u24 v15, {CH}, v0
    v_lshlrev_b32 v44, 10, v0
    s_lshl_b32 s12, s4, 2
    s_add_u32 s12, s12, {HDR_OFF}
    buffer_load_dword v45, v44, s[40:43], s12 offen
    s_waitcnt vmcnt(0)
    v_lshrrev_b32 v46, 16, v45
    v_cndmask_b32 v46, 0, v46, s[10:11]
    v_and_b32 v45, 0xffff, v45
    v_add_u32 v9, v15, v45
    v_mov_b32 v14, v46
    """)
    a.wave_scan(14)
    a(f"""
    s_nop 0
    v_readlane_b32 s10, v14, 63
    s_lshl_b32 s11, s3, 2
    v_mov_b32 v44, s11
    s_nop 0
    v_mov_b32 v45, s10
    ds_write_b32 v44, v45 offset:{L_WT}
    s_waitcnt lgkmcnt(0)
    s_barrier
    v_and_b32 v44, 7, v1
    v_lshlrev_b32 v45, 2, v44
    ds_read_b32 v45, v45 offset:{L_WT}
    v_cmp_gt_u32 vcc, s3, v44
    v_cmp_gt_u32 s[10:11], 8, v1
    s_waitcnt lgkmcnt(0)
    v_cndmask_b32 v45, 0, v45, s[10:11]
    s_nop 1
    v_cndmask_b32 v47, 0, v45, vcc
    """)
    a.wave_scan(45, full=False)
    a.wave_scan(47, full=False)
    a(f"""
    s_nop 0
    v_readlane_b32 s24, v45, 15
    v_readlane_b32 s10, v47, 15
    v_sub_u32 v14, v14, v46
    s_nop 0
    v_add_u32 v14, s10, v14
    s_branch P2_ROUND
    """)
    a.lab("P2_CHK_DONE")
    for k in range(NK):
        for pos in range(4):
            j = 4 * k + pos
            if pos == 2:
                a(f"v_cmp_ne_u32 vcc, -1, v{VT+j}\ns_cbranch_vccz P2_B1_{k}")
            a(f"ds_bpermute_b32 v{VD+j}, v{VD+j}, v33")
        a.lab(f"P2_B1_{k}")
    a(f"""
    s_add_u32 s12, s12, 31
    s_lshr_b32 s12, s12, 5
    s_add_u32 s21, s12, 7
    s_sub_u32 s21, s21, s3
    s_lshr_b32 s21, s21, 3
    s_lshr_b32 s13, s12, 3
    s_and_b32 s14, s12, 7
    """)
    a(f"""
    s_mul_i32 s10, s3, s13
    s_min_u32 s11, s3, s14
    s_add_u32 s10, s10, s11
    s_lshl_b32 s10, s10, 7
    s_lshl_b32 s11, s21, 6
    v_bfe_u32 v53, v1, 3, 1
    v_mul_u32_u24 v53, s11, v53
    v_lshrrev_b32 v54, 4, v1
    v_lshl_add_u32 v53, v54, 4, v53
    v_add_u32 v{V_AS}, s10, v53
    v_bfe_u32 v53, v1, 2, 1
    v_mul_u32_u24 v53, s11, v53
    v_bfe_u32 v54, v1, 3, 2
    v_lshl_add_u32 v53, v54, 4, v53
    v_and_b32 v54, 3, v1
    v_lshl_add_u32 v53, v54, 2, v53
    v_add_u32 v{V_AP}, s10, v53
    v_lshrrev_b32 v53, 5, v1
    v_mul_u32_u24 v53, s11, v53
    v_add_u32 v53, s10, v53
    v_lshrrev_b32 v{V_AG}, 2, v53
    s_waitcnt lgkmcnt(0)
    """)
    a.stamp3(11)
    for k in range(NK):
        for pos in range(4):
            j = 4 * k + pos
            a(f"v_cmpx_ne_u32 vcc, -1, v{VT+j}")
            if pos >= 2:
                a(f"s_cbranch_execz P2_B2_{k}")
            a(f"""
            v_add_lshl_u32 v{VR+j}, v{VR+j}, v{VD+j}, 2
            ds_write2st64_b32 v{VR+j}, v{VE+j}, v{VP+j} offset0:{L_SRC//256} offset1:{L_POS//256}
            """)
        a.lab(f"P2_B2_{k}")
        a("s_mov_b64 exec, -1")
    a.stamp3(12)
    a.stamp(3)
    a("s_waitcnt vmcnt(0) lgkmcnt(0)")
    a.stamp(4)
    a("s_barrier")
    a.stamp(5)
    a.stamp3(13)
    if OPT["stamp"] == "1":
        a("s_memtime s[82:83]\ns_mov_b32 s86, s21")
    if "nomain" in OPT["abl"]:
        a("s_mov_b32 s21, 0")
    gen_fill1(a)
    a(f"""
    s_lshl_b32 s10, s3, 2
    v_add_u32 v64, s10, v33
    v_add_u32 v65, v33, v32
    v_lshlrev_b32 v66, 8, v1
    s_cmp_eq_u32 s3, 0
    s_cselect_b32 s11, 0, -1
    v_mov_b32 v67, s11
    """)
    a.lab("P2_G_L")
    a(f"""
    v_cmpx_lt_u32 vcc, v64, v65
    s_cbranch_execz P2_G_DONE
    ds_write2st64_b32 v64, v66, v67 offset0:{L_GT//256} offset1:{L_GM//256}
    v_add_u32 v64, 32, v64
    v_mov_b32 v67, -1
    s_branch P2_G_L
    """)
    a.lab("P2_G_DONE")
    a("s_mov_b64 exec, -1")
    a(f"""
    s_cmp_lg_u32 s25, 0
    s_cbranch_scc1 P2_PREP_A
    s_lshr_b32 s9, s3, 2
    s_lshl_b32 s10, s9, 12
    s_add_u32 s10, s10, {L_PX}
    s_sub_u32 s10, s10, s20
    """)
    for t in range(4):
        a(f"""
        v_add_u32 v{64+t}, s10, v{V_XR+t}
        ds_read_b128 v[{VX+4*t}:{VX+4*t+3}], v{64+t}
        """)
    a(f"""
    s_lshl_b32 s9, s9, 13
    s_and_b32 s10, s3, 1
    s_lshl_b32 s10, s10, 2
    s_add_u32 s9, s9, s10
    v_lshl_add_u32 v2, v{V_H16}, 6, v{V_N8}
    v_add_u32 v2, s9, v2
    s_waitcnt lgkmcnt(0)
    """)
    for t in range(4):
        c = "0" if t == 0 else f"v[{VAP}:{VAP+15}]"
        a(f"v_mfma_f32_32x32x16_bf16 v[{VAP}:{VAP+15}], v[{VX+4*t}:{VX+4*t+3}], v[{VF+4*t}:{VF+4*t+3}], {c}")
    a.lab("P2_PREP_A")
    a(f"""
    s_add_u32 s10, s13, 1
    s_mul_i32 s11, s14, s10
    s_lshl_b32 s11, s11, 1
    v_cvt_f32_u32 v68, s10
    v_cvt_f32_u32 v69, s13
    v_rcp_f32 v68, v68
    v_rcp_f32 v69, v69
    s_lshl_b32 s10, s14, 1
    v_lshrrev_b32 v64, 4, v33
    v_bfe_u32 v65, v34, 4, 9
    """)
    for v in (64, 65):
        a(f"""
        v_cmp_gt_u32 vcc, s11, v{v}
        v_subrev_u32 v70, s11, v{v}
        s_nop 0
        v_cndmask_b32 v70, v70, v{v}, vcc
        v_cndmask_b32 v71, v69, v68, vcc
        v_cvt_f32_u32 v70, v70
        v_add_f32 v70, 0.5, v70
        v_mul_f32 v70, v70, v71
        v_cvt_u32_f32 v70, v70
        v_add_u32 v71, s10, v70
        v_cndmask_b32 v{v}, v71, v70, vcc
        """)
    a(f"""
    v_sub_u32 v65, v65, v64
    v_add_u32 v65, 1, v65
    v_cmp_ne_u32 vcc, 0, v32
    v_lshrrev_b32 v66, 4, v0
    v_lshlrev_b32 v66, 2, v66
    v_cndmask_b32 v65, 0, v65, vcc
    v_and_b32 v64, 15, v64
    v_lshl_or_b32 v65, v64, 8, v65
    v_add_u32 v67, 128, v66
    ds_bpermute_b32 v7, v66, v65
    ds_bpermute_b32 v8, v67, v65
    s_cmp_lg_u32 s25, 0
    s_cbranch_scc1 P2_PREP_DONE
    s_bitcmp1_b32 s3, 1
    s_cbranch_scc1 P2_HU
    """)

    def dwrites(base):
        a("s_cmp_ge_u32 s3, 4\ns_cbranch_scc1 " + f"P2_DW1_{base}")
        for i in range(16):
            a(f"ds_write_b32 v2, v{VAP+i} offset:{base+(8*(i//4)+i%4)*256}")
        a(f"s_branch P2_DW2_{base}")
        a.lab(f"P2_DW1_{base}")
        for i in range(8):
            a(f"ds_write_b32 v2, v{VAP+i} offset:{base+(8*(i//4)+i%4)*256}")
        a("s_mov_b32 exec_hi, 0")
        for i in (8, 9):
            a(f"ds_write_b32 v2, v{VAP+i} offset:{base+(8*(i//4)+i%4)*256}")
        a("s_mov_b64 exec, -1")
        a.lab(f"P2_DW2_{base}")

    for i in range(16):
        a(f"v_mul_f32 v{VAP+i}, {NLOG2E:#x}, v{VAP+i}")
    a(f"v_max3_f32 v64, abs(v{VAP}), abs(v{VAP+1}), abs(v{VAP+2})")
    for i in range(3, 15, 2):
        a(f"v_max3_f32 v64, abs(v{VAP+i}), abs(v{VAP+i+1}), v64")
    a(f"""
    v_max_f32 v64, abs(v{VAP+15}), v64
    v_mov_b32 v65, 0x42700000
    v_cmp_lt_f32 s[10:11], v65, v64
    """)
    for i in range(0, 16, 2):
        a(f"""
        v_cmp_u_f32 vcc, v{VAP+i}, v{VAP+i+1}
        s_or_b64 s[10:11], s[10:11], vcc
        """)
    a(f"""
    s_cmp_eq_u64 s[10:11], 0
    s_cbranch_scc1 P2_EA_W
    v_mov_b32 v65, 2
    ds_or_b32 v41, v65 offset:{L_FLAG}
    s_branch P2_EA_W
    """)
    a.lab("P2_HU")
    a(f"v_add_u32 v2, {L_HU}, v2")
    for i in range(16):
        a(f"v_cvt_pk_bf16_f32 v{VAP+i}, v{VAP+i}, v{VAP+i}")
    for i in range(16):
        a(f"v_and_b32 v{VAP+i}, 0xffff0000, v{VAP+i}")
    dwrites(0)
    a.lab("P2_EA_W")
    a(f"""
    v_lshlrev_b32 v64, 4, v1
    v_add_u32 v64, {L_ACC}, v64
    """)
    for f in range(4, 18):
        a(f"ds_read_b128 {wfrag(f)}, v64 offset:{1024*f}")
    a(f"""
    s_waitcnt lgkmcnt(0)
    s_barrier
    ds_read_b32 v65, v41 offset:{L_FLAG}
    s_waitcnt lgkmcnt(0)
    v_readfirstlane_b32 s15, v65
    s_lshr_b32 s15, s15, 1
    s_bitcmp1_b32 s3, 1
    s_cbranch_scc1 P2_EA3
    s_cmp_lg_u32 s15, 0
    s_cbranch_scc1 P2_EA2_W
    """)
    for k in range(16):
        a(f"v_exp_f32 v{VAP+k}, v{VAP+k}")
    a("s_nop 0")
    a.lab("P2_EA2_W")
    dwrites(L_EA)
    a.lab("P2_EA3")
    for f in range(4):
        a(f"ds_read_b128 {wfrag(f)}, v64 offset:{1024*f}")
    a("s_mov_b32 s25, 1")
    a.lab("P2_PREP_DONE")
    a(f"""
    s_waitcnt lgkmcnt(0)
    s_barrier
    """)
    a.stamp3(14)
    a(f"""
    s_cmp_eq_u32 s21, 0
    s_cbranch_scc1 P2_MAIN_DONE
    """)
    gen_fill2(a)
    a.stamp(14)
    a(f"""
    s_cmp_lg_u32 s15, 0
    s_cbranch_scc1 P2_LOOPS
    """)
    gen_loop(a, False, "F")
    gen_loop(a, True, "S")
    a.lab("P2_FLUSH")
    for g in range(4):
        a(f"ds_write_b32 v{V_G+g}, v{V_ACC[1]+g} offset:{L_ACC+4}")
    a.lab("P2_MAIN_DONE")
    a.stamp(6)
    if OPT["stamp"] == "1":
        a("s_memtime s[84:85]\ns_getreg_b32 s88, hwreg(HW_REG_HW_ID)\ns_getreg_b32 s90, hwreg(HW_REG_XCC_ID)")
    a(f"""
    s_waitcnt vmcnt(0) lgkmcnt(0)
    s_barrier
    """)
    a.stamp(7)
    for h in range(2):
        a(f"""
        v_and_b32 v24, 0xff, v{7+h}
        v_and_b32 v25, 0xff00, v{7+h}
        v_add_u32 v25, v25, v3
        v_add_u32 v25, {L_ACC+8192*h}, v25
        """)
        a.lab(f"P2_FOLD{h}")
        a(f"""
        v_cmpx_lt_u32 vcc, 0, v24
        s_cbranch_execz P2_FOLD_DONE{h}
        ds_read_b128 v[32:35], v25
        v_add_u32 v24, -1, v24
        v_add_u32 v25, 0x100, v25
        s_waitcnt lgkmcnt(0)
        v_add_f32 v{V_RUN+4*h}, v{V_RUN+4*h}, v32
        v_add_f32 v{V_RUN+4*h+1}, v{V_RUN+4*h+1}, v33
        v_add_f32 v{V_RUN+4*h+2}, v{V_RUN+4*h+2}, v34
        v_add_f32 v{V_RUN+4*h+3}, v{V_RUN+4*h+3}, v35
        s_branch P2_FOLD{h}
        """)
        a.lab(f"P2_FOLD_DONE{h}")
        a("s_mov_b64 exec, -1")
    a(f"""
    s_add_u32 s23, s23, {512*JS}
    s_cmp_lt_u32 s23, s24
    s_cbranch_scc1 P2_ROUND
    v_lshrrev_b32 v5, 4, v0
    v_and_b32 v6, 15, v0
    v_lshlrev_b32 v5, 7, v5
    v_lshl_add_u32 v5, v6, 2, v5
    v_add_u32 v6, 0x1000, v5
    """)
    for h in range(2):
        R = V_RUN + 4 * h
        a(f"""
        v_add_u32 v24, {L_HU+8192*h}, v3
        ds_read_b128 v[32:35], v24
        v_cvt_pk_bf16_f32 v36, v{R}, v{R+2}
        v_cvt_pk_bf16_f32 v37, v{R+1}, v{R+3}
        v_lshlrev_b32 v28, 16, v36
        v_and_b32 v30, 0xffff0000, v36
        v_lshlrev_b32 v29, 16, v37
        v_and_b32 v31, 0xffff0000, v37
        s_waitcnt lgkmcnt(0)
        v_add_f32 v28, v28, v32
        v_add_f32 v29, v29, v33
        v_add_f32 v30, v30, v34
        v_add_f32 v31, v31, v35
        v_cvt_pk_bf16_f32 v36, v28, v30
        v_cvt_pk_bf16_f32 v37, v29, v31
        v_lshlrev_b32 v28, 16, v36
        v_and_b32 v30, 0xffff0000, v36
        v_lshlrev_b32 v29, 16, v37
        v_and_b32 v31, 0xffff0000, v37
        """)
        for k in range(4):
            a(f"v_mul_f32 v{32+k}, {NLOG2E:#x}, v{28+k}")
        for k in range(4):
            a(f"v_exp_f32 v{32+k}, v{32+k}")
        for k in range(4):
            a(f"v_add_f32 v{32+k}, 1.0, v{32+k}")
        for k in range(4):
            a(f"v_rcp_f32 v{32+k}, v{32+k}")
        for k in range(4):
            a(f"v_mul_f32 v{28+k}, v{28+k}, v{32+k}")
        a(f"""
        v_cvt_pk_bf16_f32 v{38+2*h}, v28, v30
        v_cvt_pk_bf16_f32 v{39+2*h}, v29, v31
        buffer_store_dword v{38+2*h}, v{5+h}, s[44:47], 0 offen
        buffer_store_dword v{39+2*h}, v{5+h}, s[44:47], 0 offen offset:64
        """)
    a.stamp(8)
    a.stamp_flush(15, 40, 8, DBG2_OFF)
    a.lab("P2_END")
    a("s_endpgm")
    return a.text()


HEAD = open("standalone__edge_featured_mpnn_egc__graph.s.ref").read().split("; Override launch")[0]


def kd(name, vgpr, sgpr):
    acc = (vgpr + 3) // 4 * 4
    return f""".amdhsa_kernel {name}
  .amdhsa_next_free_vgpr {vgpr}
  .amdhsa_next_free_sgpr {sgpr}
  .amdhsa_accum_offset {acc}
  .amdhsa_group_segment_fixed_size 0
  .amdhsa_kernarg_size 80
  .amdhsa_user_sgpr_count 2
  .amdhsa_user_sgpr_kernarg_segment_ptr 1
  .amdhsa_system_sgpr_workgroup_id_x 1
.end_amdhsa_kernel
"""


def main():
    out = HEAD
    out += f"; @launch kernel=p1_kernel grid=({NCH},1,1) block=(704,1,1) lds={P1_LDS}\n"
    out += f"; @launch kernel=p2_kernel grid=({NB},1,1) block=(512,1,1) lds={P2_LDS}\n"
    out += '.amdgcn_target "amdgcn-amd-amdhsa--gfx950"\n.text\n'
    out += ".globl p1_kernel\n.p2align 8\n.type p1_kernel,@function\n" + gen_p1()
    out += ".globl p2_kernel\n.p2align 8\n.type p2_kernel,@function\n" + gen_p2()
    out += '.section .rodata,"a"\n.p2align 6\n' + kd("p1_kernel", 64, 100) + ".p2align 6\n" + kd("p2_kernel", 256, 100)
    open(sys.argv[1], "w").write(out)


main()
```

```python
import sys

N = 12500; E = 800000
NCH = 320; CH = 2500
NK = NCH // 64
TROW = NCH * 128
NB = 256; NPB = 49; MUL = 21400
SUBN = 16
SLOTS = 4096
JS = 7
NLOG2E = 0xBFB8AA3B

T_OFF = 0x0
ENT_OFF = 0xA00000
HDR_OFF = 0xE00000
WF_OFF = 0xE80000
DBG1_OFF = 0x2C00000
DBG2_OFF = 0x2D00000
WS_SIZE = 0x3000000
NFRAG = 34

OPT = dict(p1_store="", p1_tstore="", p1_ld="nt", abl="", stamp="", prio_hi="1", prio_lo="0", xpf="0",
           p1_sched="[[0,1],[2,3],[4,5],[6]]", bunch="1", ne="4", e_pol="", epf1="0", epf2="0", epf_pol="")
for a_ in sys.argv[2:]:
    k_, v_ = a_.split("=")
    OPT[k_] = v_


class A:
    def __init__(self):
        self.l = []

    def __call__(self, s):
        for x in s.strip().split("\n"):
            self.l.append("    " + x.strip())

    def lab(self, s):
        self.l.append(s + ":")

    def srd(self, d, lo, hi, nrec, add=None):
        if add is None:
            self(f"s_mov_b32 s{d}, s{lo}\ns_mov_b32 s{d+1}, s{hi}")
        else:
            self(f"s_add_u32 s{d}, s{lo}, {add}\ns_addc_u32 s{d+1}, s{hi}, 0")
        self(f"s_mov_b32 s{d+2}, {nrec}\ns_mov_b32 s{d+3}, 0x20000")

    def wave_scan(self, v, full=True):
        for sh in (1, 2, 4, 8):
            self("s_nop 1")
            self(f"v_add_u32_dpp v{v}, v{v}, v{v} row_shr:{sh} row_mask:0xf bank_mask:0xf bound_ctrl:0")
        if full:
            self("s_nop 1")
            self(f"v_add_u32_dpp v{v}, v{v}, v{v} row_bcast:15 row_mask:0xa bank_mask:0xf")
            self("s_nop 1")
            self(f"v_add_u32_dpp v{v}, v{v}, v{v} row_bcast:31 row_mask:0xc bank_mask:0xf")

    def stamp(self, k):
        if OPT["stamp"] == "1":
            self(f"s_memrealtime s[{64+2*k}:{65+2*k}]")

    def stamp3(self, k):
        if OPT["stamp"] == "3":
            self(f"s_memtime s[{64+2*k}:{65+2*k}]")

    def stamp_flush(self, n, srd, nw, base):
        if not OPT["stamp"]:
            return
        self(f"""
        s_waitcnt lgkmcnt(0)
        s_mov_b64 exec, -1
        s_mul_i32 s10, s2, {nw}
        s_add_u32 s10, s10, s3
        s_lshl_b32 s10, s10, 6
        s_add_u32 s10, s10, {base}
        v_mov_b32 v1, 0
        """)
        for k in range(n):
            self(f"v_mov_b32 v2, s{64+2*k}\nbuffer_store_dword v2, v1, s[{srd}:{srd+3}], s10 offen offset:{4*k}\ns_nop 1")

    def text(self):
        return "\n".join(self.l) + "\n"


def sub_dl(j):
    return (1 if j < 10 else 8) + (j % 10) // 5, 6 * (j % 5)


def sub_src(j):
    return (3 if j < 10 else 10) + (j % 10) // 2, 16 * (j % 2)


P1_HIST = 0; P1_START = 1024; P1_ENT = 2048
P1_LDS = P1_ENT + CH * 4 + 256


def gen_p1():
    a = A()
    ST = OPT["p1_store"]; TST = OPT["p1_tstore"]; LD = OPT["p1_ld"]
    a.lab("p1_kernel")
    a(f"""
    s_cmp_ge_u32 s2, {NCH}
    s_cbranch_scc1 P1_END
    """)
    a.stamp(0)
    a(f"""
    s_load_dwordx16 s[16:31], s[0:1], 0
    s_load_dwordx4 s[32:35], s[0:1], 64
    v_and_b32 v1, 63, v0
    v_lshrrev_b32 v5, 6, v0
    v_lshlrev_b32 v2, 4, v0
    v_lshlrev_b32 v3, 2, v0
    v_readfirstlane_b32 s3, v5
    v_lshlrev_b32 v4, 4, v1
    v_mov_b32 v6, 0
    v_and_b32 v7, 0x3fc, v3
    ds_write_b32 v7, v6 offset:{P1_HIST}
    s_mul_i32 s4, s2, {CH*4}
    v_and_b32 v24, 31, v1
    v_lshrrev_b32 v25, 5, v1
    s_waitcnt lgkmcnt(0)
    """)
    a.srd(44, 22, 23, CH * 4, "s4")
    a.srd(40, 20, 21, CH * 4, "s4")
    a(f"""
    buffer_load_dwordx4 v[8:11], v2, s[44:47], 0 offen {LD}
    buffer_load_dwordx4 v[12:15], v2, s[40:43], 0 offen {LD}
    """)
    if OPT["epf1"] != "0":
        nl = 625 * int(OPT["epf1"]) // 8
        a(f"s_mul_i32 s5, s2, {CH*32}")
        a.srd(36, 18, 19, nl * 128, "s5")
        a(f"v_lshlrev_b32 v60, 7, v0\nbuffer_load_dword v61, v60, s[36:39], 0 offen {OPT['epf_pol']}")
    a.srd(48, 34, 35, WS_SIZE)
    a.srd(56, 28, 29, 2048 - 64)
    a(f"""
    v_lshlrev_b32 v26, 10, v25
    v_lshl_add_u32 v26, v24, 1, v26
    s_mov_b32 s14, 1.0
    s_cmp_lg_u32 s3, 10
    s_cbranch_scc1 P1_FL_DONE
    s_cmp_ge_u32 s2, {NFRAG}
    s_cbranch_scc1 P1_FL_DONE
    s_sub_u32 s5, s2, 2
    s_cmp_ge_u32 s2, 18
    s_cselect_b32 s5, s5, s2
    s_and_b32 s6, s5, 3
    s_lshl_b32 s6, s6, 11
    s_lshr_b32 s7, s5, 2
    s_and_b32 s7, s7, 1
    s_lshl_b32 s7, s7, 6
    s_add_u32 s6, s6, s7
    s_cmp_ge_u32 s2, 8
    s_cbranch_scc1 P1_FL1
    s_add_u32 s6, s6, 8192
    s_mov_b32 s14, {NLOG2E}
    s_branch P1_FL3
    """)
    a.lab("P1_FL1")
    a(f"""
    s_cmp_ge_u32 s2, 16
    s_cbranch_scc1 P1_FL2
    s_mov_b32 s56, s26
    s_mov_b32 s57, s27
    s_branch P1_FL3
    """)
    a.lab("P1_FL2")
    a(f"""
    s_cmp_ge_u32 s2, 26
    s_cselect_b32 s56, s24, s28
    s_cselect_b32 s57, s25, s29
    s_cmp_ge_u32 s2, 18
    s_cbranch_scc1 P1_FL3
    s_mov_b32 s14, {NLOG2E}
    s_and_b32 s6, s2, 1
    s_lshl_b32 s6, s6, 6
    s_add_u32 s6, s6, 16384
    """)
    a.lab("P1_FL3")
    a(f"""
    s_add_u32 s56, s56, s6
    s_addc_u32 s57, s57, 0
    """)
    for jj in range(8):
        a(f"buffer_load_ushort v{40+jj}, v26, s[56:59], 0 offen offset:{jj*128}")
    a("s_waitcnt vmcnt(0)")
    for jj in range(8):
        a(f"v_lshlrev_b32 v{40+jj}, 16, v{40+jj}")
    for jj in range(8):
        a(f"v_mul_f32 v{40+jj}, s14, v{40+jj}")
    for q in range(4):
        a(f"v_cvt_pk_bf16_f32 v{48+q}, v{40+2*q}, v{40+2*q+1}")
    a(f"""
    s_lshl_b32 s6, s2, 10
    s_add_u32 s6, s6, {WF_OFF}
    buffer_store_dwordx4 v[48:51], v4, s[48:51], s6 offen
    s_endpgm
    """)
    a.lab("P1_FL_DONE")
    a(f"""
    s_cmp_ge_u32 s3, 10
    s_cbranch_scc1 P1_END
    v_cmp_gt_u32 vcc, {CH//4}, v0
    s_mov_b64 s[8:9], vcc
    v_mov_b32 v30, 1
    s_barrier
    s_waitcnt vmcnt({2 if OPT["epf1"] != "0" else 1})
    """)
    a.stamp(1)
    a("s_mov_b64 exec, s[8:9]")
    for e in range(4):
        a(f"""
        v_mul_u32_u24 v{16+e}, {MUL}, v{8+e}
        v_lshrrev_b32 v31, 20, v{16+e}
        v_lshlrev_b32 v{16+e}, 2, v31
        ds_add_rtn_u32 v{20+e}, v{16+e}, v30 offset:{P1_HIST}
        v_mul_u32_u24 v31, {NPB}, v31
        v_sub_u32 v{8+e}, v{8+e}, v31
        """)
    a("s_mov_b64 exec, -1\ns_waitcnt lgkmcnt(0)")
    a.stamp(2)
    a("s_barrier")
    a.stamp(3)
    a(f"""
    s_cmp_lg_u32 s3, 0
    s_cbranch_scc1 P1_SC_DONE
    ds_read_b128 v[32:35], v4 offset:{P1_HIST}
    s_waitcnt lgkmcnt(0)
    v_add_u32 v36, v32, v33
    v_add_u32 v37, v36, v34
    v_add_u32 v38, v37, v35
    v_mov_b32 v39, v38
    """)
    a.wave_scan(39)
    a(f"""
    v_sub_u32 v40, v39, v38
    v_add_u32 v41, v32, v40
    v_add_u32 v42, v36, v40
    v_add_u32 v43, v37, v40
    ds_write_b128 v4, v[40:43] offset:{P1_START}
    v_lshl_or_b32 v44, v32, 16, v40
    v_lshl_or_b32 v45, v33, 16, v41
    v_lshl_or_b32 v46, v34, 16, v42
    v_lshl_or_b32 v47, v35, 16, v43
    s_lshl_b32 s6, s2, 10
    s_add_u32 s6, s6, {HDR_OFF}
    buffer_store_dwordx4 v[44:47], v4, s[48:51], s6 offen
    """)
    a.lab("P1_SC_DONE")
    a(f"""
    s_waitcnt vmcnt({2 if OPT["epf1"] != "0" else 1})
    s_cmp_eq_u32 s3, 0
    s_cbranch_scc1 P1_W0
    s_waitcnt vmcnt({1 if OPT["epf1"] != "0" else 0})
    """)
    a.lab("P1_W0")
    for e in range(4):
        a(f"""
        v_lshl_or_b32 v{36+e}, v{8+e}, 14, v{12+e}
        v_add_u32 v31, {e}, v3
        v_lshl_or_b32 v{36+e}, v31, 20, v{36+e}
        """)
    a(f"""
    v_lshrrev_b32 v7, 3, v0
    v_lshlrev_b32 v6, 2, v7
    v_and_b32 v27, 7, v0
    s_waitcnt lgkmcnt(0)
    s_barrier
    """)
    a.stamp(4)
    for r in range(4):
        a(f"""
        ds_read_b32 v{40+r}, v6 offset:{P1_START+320*r}
        ds_read_b32 v{44+r}, v6 offset:{P1_HIST+320*r}
        """)
    a("s_mov_b64 exec, s[8:9]")
    for e in range(4):
        a(f"ds_read_b32 v{32+e}, v{16+e} offset:{P1_START}")
    for e in range(4):
        a(f"""
        s_waitcnt lgkmcnt(3)
        v_add_lshl_u32 v{32+e}, v{32+e}, v{20+e}, 2
        ds_write_b32 v{32+e}, v{36+e} offset:{P1_ENT}
        """)
    a("s_mov_b64 exec, -1")
    for r in range(4):
        a(f"""
        v_add_lshl_u32 v{40+r}, v{40+r}, v27, 2
        v_add_u32 v{40+r}, {P1_ENT}, v{40+r}
        v_sub_u32 v{48+r}, v{44+r}, v27
        """)
    a(f"""
    s_lshl_b32 s6, s2, 7
    s_add_u32 s6, s6, {T_OFF}
    s_add_u32 s10, s4, {ENT_OFF}
    v_mul_u32_u24 v28, {TROW}, v7
    v_lshl_or_b32 v28, v27, 4, v28
    s_waitcnt lgkmcnt(0)
    """)
    a.stamp(5)
    a("s_barrier")
    a.stamp(6)
    for r in range(3):
        a(f"""
        ds_read2_b32 v[{8+4*r}:{9+4*r}], v{40+r} offset0:0 offset1:8
        ds_read2_b32 v[{10+4*r}:{11+4*r}], v{40+r} offset0:16 offset1:24
        """)
    a(f"""
    ds_read_b128 v[32:35], v2 offset:{P1_ENT}
    s_cmp_ge_u32 s3, 2
    s_cbranch_scc1 P1_R2SKIP
    ds_read2_b32 v[20:21], v43 offset0:0 offset1:8
    ds_read2_b32 v[22:23], v43 offset0:16 offset1:24
    """)
    a.lab("P1_R2SKIP")
    for r in range(4):
        if r == 3:
            a(f"""
            s_mov_b64 exec, s[8:9]
            buffer_store_dwordx4 v[32:35], v2, s[48:51], s10 offen {ST}
            s_mov_b64 exec, -1
            s_cmp_ge_u32 s3, 2
            s_cbranch_scc1 P1_FIN
            """)
        for k in range(4):
            a(f"v_cmp_lt_i32 s[{16+2*k}:{17+2*k}], {8*k}, v{48+r}")
        a(f"v_cmp_lt_u32 vcc, 32, v{44+r}")
        a("s_waitcnt lgkmcnt(0)" if r == 0 else "s_nop 0")
        for k in range(4):
            a(f"v_cndmask_b32 v{8+4*r+k}, -1, v{8+4*r+k}, s[{16+2*k}:{17+2*k}]")
        a(f"""
        v_cndmask_b32 v{8+4*r}, v{8+4*r}, -2, vcc
        buffer_store_dwordx4 v[{8+4*r}:{11+4*r}], v28, s[48:51], s6 offen {TST}
        s_add_u32 s6, s6, {80*TROW}
        """)
    a.lab("P1_FIN")
    a.stamp(7)
    if OPT["stamp"]:
        a("s_waitcnt vmcnt(0)")
    a.stamp(8)
    a.stamp_flush(9, 48, 16, DBG1_OFF)
    a.lab("P1_END")
    a("s_endpgm")
    return a.text()


L_NCNT = 0; L_FLAG = 256; L_WT = 272
L_SRC = 512; L_POS = L_SRC + 16384; L_GT = L_POS + 16384; L_GM = L_GT + 4096; L_EA = L_GM + 4096
NROW = 50
L_ACC = L_EA + NROW * 256
L_XB = L_ACC + 18432
L_HU = L_XB + 65536
L_PX = L_HU + NROW * 256
P2_LDS = L_PX + 8192
assert P2_LDS <= 163840 and L_ACC + 4 < 65536 and (16 + NROW) * 256 <= 18432
SENT = 0x40000000

V_W = 184
V_Z0 = 64; V_H0 = 80; V_Z1 = 96; V_H1 = 112
V_XA = (128, 28); V_EA = (144, 44, 24, 56)
V_G = 148; V_GR = 152; V_EV = 156
V_SL = 164
V_ACC = (168, 52)
V_XR = 172
V_PS = 176
V_AS = 177; V_AP = 178; V_AG = 179
V_N8 = 181; V_H16 = 182; V_N8H = 183
V_K = (180, 10, 11, 12)
V_GE = 60
V_GM = 48
V_RUN = 16
NE = int(OPT["ne"])


def wfrag(f):
    return f"v[{V_W+4*f}:{V_W+4*f+3}]"


def mf_list(u, Z, H, ph):
    xa = V_XA[ph % 2]; ea = V_EA[ph % NE]
    l = [f"v_mfma_f32_32x32x16_bf16 v[{Z}:{Z+15}], v[{ea}:{ea+3}], {wfrag(16+u)}, 0"]
    for t in range(4):
        l.append(f"v_mfma_f32_32x32x16_bf16 v[{Z}:{Z+15}], v[{xa+4*t}:{xa+4*t+3}], {wfrag(u*4+t)}, v[{Z}:{Z+15}]")
    for t in range(4):
        c = "0" if t == 0 else f"v[{H}:{H+15}]"
        l.append(f"v_mfma_f32_32x32x16_bf16 v[{H}:{H+15}], v[{xa+4*t}:{xa+4*t+3}], {wfrag(8+u*4+t)}, {c}")
    return l


def body(ph, safe):
    out = []
    par = ph % 2
    npar = 1 - par
    PH = OPT["prio_hi"]; PL = OPT["prio_lo"]
    cnt = [0]
    bunch = OPT["bunch"] == "1"

    def lstamp():
        if OPT["stamp"] == "2" and ph == 1:
            out.append(f"s_memtime s[{64+2*cnt[0]}:{65+2*cnt[0]}]")
            cnt[0] += 1

    def trun(instrs, mf, fill):
        lstamp()
        if PH != PL:
            out.append(f"s_setprio {PH}")
        mf = list(mf)
        for k, x in enumerate(instrs):
            out.append(x)
            if k % 3 == 0 and mf:
                out.append(mf.pop(0))
            elif fill:
                if bunch:
                    out.extend(fill); del fill[:]
                else:
                    out.append(fill.pop(0))
        assert not mf
        if PH != PL:
            out.append(f"s_setprio {PL}")

    def half(u, Z, H, mf, fill, preF, postF, fillR, preM, postM):
        ev = lambda i: V_EV + 2 * (i // 4) + u
        if safe:
            if u == 0:
                out.append(("W", "ev3"))
            out.extend(f"v_add_f32 v{Z+i}, v{ev(i)}, v{Z+i}" for i in range(16))
        trun([f"v_exp_f32 v{Z+i}, v{Z+i}" for i in range(16)], mf[:5], fill)
        lstamp()
        out.extend(preF)
        if safe:
            out.extend(f"v_add_f32 v{Z+i}, 1.0, v{Z+i}" for i in range(16))
        else:
            out.extend(f"v_fma_f32 v{Z+i}, v{Z+i}, v{ev(i)}, 1.0" for i in range(16))
        out.extend(postF)
        fill.extend(fillR)
        trun([f"v_rcp_f32 v{Z+i}, v{Z+i}" for i in range(16)], mf[5:], fill)
        assert not fill, fill
        lstamp()
        out.extend(preM)
        A_ = V_ACC[u]
        for g in range(4):
            out.append(f"v_and_b32 v{A_+g}, v{A_+(g+3)%4}, v{V_GM+g}")
            out.extend(f"v_fmac_f32 v{A_+g}, v{Z+4*g+k}, v{H+4*g+k}" for k in range(4))
        out.extend(postM)

    def accw(u):
        return [("L", f"ds_write_b32 v{V_G+g}, v{V_ACC[u]+g} offset:{L_ACC+4*u}", None) for g in range(4)]

    xa = V_XA[npar]
    fill = [f"s_cmp_gt_u32 s21, {NE}", "s_cselect_b32 s58, s18, 0",
            f"buffer_load_dwordx4 v[{V_EA[ph]}:{V_EA[ph]+3}], v{V_PS}, s[56:59], 0 offen {OPT['e_pol']}"] + accw(1)
    fill.append(("L", f"ds_read_b128 v[{V_GM}:{V_GM+3}], v{V_AG} offset:{L_GM+16*ph}", "gm"))
    preF = [f"v_add_u32 v{V_G+g}, v{V_GR+g}, v{V_N8H}" for g in range(4)] + ([] if safe else [("W", "ev3")])
    fillR = [f"s_waitcnt vmcnt({5 if NE == 2 else 6})"]
    for t in range(4):
        fillR.append(("L", f"ds_read_b128 v[{xa+4*t}:{xa+4*t+3}], v{V_XR+t} offset:{npar*4096}", f"xa{t}"))
    fillR += [("L", f"ds_read_b128 v[{V_SL}:{V_SL+3}], v{V_AS} offset:{L_SRC+64*(3+ph)}", "sl"),
              ("L", f"ds_read_b128 v[{V_GR}:{V_GR+3}], v{V_AG} offset:{L_GT+16*(1+ph)}", "gr"),
              ("L", f"ds_read_b32 v{V_PS}, v{V_AP} offset:{L_POS+64*(NE+1+ph)}", "pos"),
              "s_cmp_gt_u32 s21, 3", "s_cselect_b32 s38, s19, 0", f"s_add_u32 m0, s20, {npar*4096}"]
    postM = [("W", "sl")] + [f"v_or_b32 v{V_SL+j}, v{V_SL+j}, v{V_K[j]}" for j in range(4)]
    half(0, V_Z0, V_H0, mf_list(1, V_Z1, V_H1, ph), fill, preF, [], fillR, [("W", "gm")], postM)
    fill = []
    aw = accw(0)
    for j in range(4):
        fill.append(f"buffer_load_dwordx4 v{V_SL+j}, s[36:39], 0 offen lds")
        if j < 3:
            fill.append(f"s_add_u32 m0, s20, {npar*4096+(j+1)*1024}")
        fill.append(aw[j])
    postF = [("W", "pos")] + [f"v_add_u32 v{V_GE+g}, v{V_GR+g}, v{V_N8}" for g in range(4)]
    postF.append(f"v_add_u32 v{V_PS}, v{V_PS}, v{V_H16}")
    fillR = [("L", f"ds_read_b64 v[{V_EV+2*g}:{V_EV+2*g+1}], v{V_GE+g} offset:{L_EA}", f"ev{g}") for g in range(4)]
    half(1, V_Z1, V_H1, mf_list(0, V_Z0, V_H0, ph + 1), fill, [], postF, fillR, [], [])
    lstamp()
    if "nomfma" in OPT["abl"]:
        out = [x for x in out if not (isinstance(x, str) and "mfma" in x)]
    if "novalu" in OPT["abl"]:
        out = [x for x in out if not (isinstance(x, str) and any(k in x for k in ("v_exp", "v_rcp", "v_fma", "v_fmac")))]
    return out


def instrument(items):
    out = []
    for x in items:
        acc = None
        if isinstance(x, str):
            if x.startswith("s_waitcnt vmcnt"): acc = 70
            elif x.startswith("buffer_load") and "lds" not in x: acc = 71
            elif x.startswith("buffer_load"): acc = 72
        if acc:
            out += ["s_memtime s[64:65]", "s_waitcnt lgkmcnt(0)", x, "s_memtime s[66:67]", "s_waitcnt lgkmcnt(0)",
                    "s_sub_u32 s68, s66, s64", f"s_add_u32 s{acc+2*(acc-70)+4-0 if False else {70:70,71:72,72:74}[acc]}, s{ {70:70,71:72,72:74}[acc] }, s68"]
        else:
            out.append(x)
    return out


def resolve(prev, cur):
    seq = prev + cur
    res = []
    for i, x in enumerate(seq):
        if i < len(prev):
            continue
        if isinstance(x, str):
            res.append(x)
        elif x[0] == "L":
            res.append(x[1])
        else:
            n = 0
            k = i - 1
            while not (isinstance(seq[k], tuple) and seq[k][0] == "L" and seq[k][2] == x[1]):
                if isinstance(seq[k], tuple) and seq[k][0] == "L":
                    n += 1
                k -= 1
                assert k >= 0, x
            res.append(f"s_waitcnt lgkmcnt({min(n, 15)})")
    return res


def gen_fill1(a):
    EP = OPT['e_pol']
    a(f"ds_read_b128 v[{V_SL}:{V_SL+3}], v{V_AS} offset:{L_SRC}")
    for k in range(NE):
        a(f"ds_read_b32 v{V_GE+k}, v{V_AP} offset:{L_POS+64*k}")
    a(f"""
    ds_read_b128 v[{V_ACC[0]}:{V_ACC[0]+3}], v{V_AS} offset:{L_SRC+64}
    ds_read_b32 v{V_PS}, v{V_AP} offset:{L_POS+64*NE}
    s_waitcnt lgkmcnt(2)
    """)

    def eld(k):
        a(f"""
        s_cmp_gt_u32 s21, {k}
        s_cselect_b32 s58, s18, 0
        v_add_u32 v{V_GE+k}, v{V_GE+k}, v{V_H16}
        buffer_load_dwordx4 v[{V_EA[k]}:{V_EA[k]+3}], v{V_GE+k}, s[56:59], 0 offen {EP}
        """)
    eld(0)
    xld(a, 0, V_SL, 0)
    eld(1)
    if NE == 4:
        eld(2)
    a("s_waitcnt lgkmcnt(0)")
    xld(a, 1, V_ACC[0], 1)
    if NE == 4:
        eld(3)
    a(f"""
    v_add_u32 v{V_PS}, v{V_PS}, v{V_H16}
    ds_read_b128 v[{V_SL}:{V_SL+3}], v{V_AS} offset:{L_SRC+128}
    """)


def xld(a, b, vb, k):
    a(f"s_cmp_gt_u32 s21, {k}\ns_cselect_b32 s38, s19, 0")
    for j in range(4):
        a(f"""
        s_add_u32 m0, s20, {b*4096+j*1024}
        v_or_b32 v{vb+j}, v{vb+j}, v{V_K[j]}
        buffer_load_dwordx4 v{vb+j}, s[36:39], 0 offen lds
        """)


def gen_fill2(a):
    xa = V_XA[0]
    a(f"""
    ds_read_b128 v[{V_GR}:{V_GR+3}], v{V_AG} offset:{L_GT}
    v_mov_b32 v{V_ACC[0]+3}, 0
    v_mov_b32 v{V_ACC[1]+3}, 0
    s_waitcnt lgkmcnt(0)
    """)
    for g in range(4):
        a(f"""
        v_add_u32 v{V_GE+g}, v{V_GR+g}, v{V_N8}
        v_add_u32 v{V_G+g}, v{V_GR+g}, v{V_N8H}
        ds_read_b64 v[{V_EV+2*g}:{V_EV+2*g+1}], v{V_GE+g} offset:{L_EA}
        """)
    a(f"s_waitcnt vmcnt({5 if NE == 2 else 7})")
    for t in range(4):
        a(f"ds_read_b128 v[{xa+4*t}:{xa+4*t+3}], v{V_XR+t}")
    a("s_waitcnt lgkmcnt(0)")
    xld(a, 0, V_SL, 2)
    for m in mf_list(0, V_Z0, V_H0, 0):
        a(m)
    a("s_nop 7\ns_nop 7")


def gen_loop(a, safe, tag):
    bs = [body(p, safe) for p in range(NE)]
    a.lab(f"P2_LOOP{tag}")
    for p in range(NE):
        rs = resolve(bs[p - 1], bs[p])
        if OPT["stamp"] == "4":
            rs = instrument(rs)
        for x in rs:
            a(x)
        if p < NE - 1:
            a(f"""
            s_sub_u32 s21, s21, 1
            s_cmp_eq_u32 s21, 0
            s_cbranch_scc1 P2_FLUSH
            """)
    a(f"""
    v_add_u32 v{V_AS}, {64*NE}, v{V_AS}
    v_add_u32 v{V_AP}, {64*NE}, v{V_AP}
    v_add_u32 v{V_AG}, {16*NE}, v{V_AG}
    s_sub_u32 s21, s21, 1
    s_cmp_lg_u32 s21, 0
    s_cbranch_scc1 P2_LOOP{tag}
    s_branch P2_FLUSH
    """)


def gen_p2():
    a = A()
    VT = 64
    VP = 84
    VR = 104
    VD = 124
    VE = 144
    VF = 200
    VX = 216
    VAP = 184
    a.lab("p2_kernel")
    a(f"""
    s_cmp_ge_u32 s2, {NB}
    s_cbranch_scc1 P2_END
    """)
    a.stamp(0)
    a.stamp3(0)
    a(f"""
    s_load_dwordx4 s[16:19], s[0:1], 0
    s_load_dwordx2 s[12:13], s[0:1], 56
    s_load_dwordx2 s[34:35], s[0:1], 72
    s_and_b32 s4, s2, 7
    s_lshl_b32 s4, s4, 5
    s_lshr_b32 s5, s2, 3
    s_add_u32 s4, s4, s5
    v_and_b32 v1, 63, v0
    v_lshrrev_b32 v5, 6, v0
    v_lshlrev_b32 v3, 4, v0
    v_lshlrev_b32 v4, 2, v0
    v_readfirstlane_b32 s3, v5
    s_mul_i32 s8, s4, {TROW}
    s_add_u32 s8, s8, {T_OFF}
    s_mul_i32 s6, s4, {NPB*128}
    v_and_b32 v56, 31, v1
    v_lshrrev_b32 v57, 5, v1
    v_and_b32 v58, 7, v1
    v_lshlrev_b32 v59, 2, v57
    v_xor_b32 v58, v58, v59
    v_lshlrev_b32 v{V_K[0]}, 4, v58
    s_waitcnt lgkmcnt(0)
    """)
    a.stamp3(1)
    a.srd(40, 34, 35, WS_SIZE)
    for k in range(NK):
        a(f"buffer_load_dwordx4 v[{VT+4*k}:{VT+4*k+3}], v3, s[40:43], s8 offen\ns_add_u32 s8, s8, 8192")
    a.srd(36, 16, 17, N * 128)
    a.srd(56, 18, 19, E * 32)
    if OPT["epf2"] != "0":
        f1 = 625 * int(OPT["epf1"]) // 8
        a(f"""
        v_add_u32 v60, {f1}, v0
        v_cmp_gt_u32 vcc, 625, v60
        v_lshlrev_b32 v60, 7, v60
        s_mul_i32 s9, s2, {CH*32}
        s_mov_b64 exec, vcc
        buffer_load_dword v61, v60, s[56:59], s9 offen {OPT['epf_pol']}
        s_add_u32 s9, s9, {256*CH*32}
        buffer_load_dword v61, v60, s[56:59], s9 offen {OPT['epf_pol']}
        s_mov_b64 exec, -1
        """)
    a(f"""
    s_add_u32 s44, s12, s6
    s_addc_u32 s45, s13, 0
    s_sub_u32 s46, {N*128}, s6
    s_min_u32 s46, s46, {NPB*128}
    s_mov_b32 s47, 0x20000
    s_mov_b32 s19, {0 if "nox" in OPT["abl"] else N*128}
    s_mov_b32 s18, {0 if "noe" in OPT["abl"] else E*32}
    """)
    NLD = 0
    a.stamp3(2)
    a(f"""
    s_lshl_b32 s20, s3, 13
    s_add_u32 s20, s20, {L_XB}
    v_lshlrev_b32 v{V_N8}, 3, v56
    v_lshlrev_b32 v{V_H16}, 4, v57
    v_lshrrev_b32 v58, 5, v0
    v_lshl_add_u32 v{V_N8H}, v58, 8, v{V_N8}
    v_xor_b32 v{V_K[1]}, 16, v{V_K[0]}
    v_xor_b32 v{V_K[2]}, 32, v{V_K[0]}
    v_xor_b32 v{V_K[3]}, 48, v{V_K[0]}
    v_and_b32 v58, 3, v56
    v_lshrrev_b32 v59, 2, v56
    v_lshl_add_u32 v59, v58, 3, v59
    v_lshlrev_b32 v59, 7, v59
    v_add_u32 v59, s20, v59
    v_lshrrev_b32 v60, 4, v56
    v_lshl_add_u32 v58, v60, 2, v58
    v_xor_b32 v58, v58, v57
    """)
    for t in range(4):
        a(f"""
        v_xor_b32 v60, {2*t}, v58
        v_lshl_add_u32 v{V_XR+t}, v60, 4, v59
        """)
    for k in range(8):
        a(f"v_mov_b32 v{V_RUN+k}, 0")
    a(f"""
    ds_write_b32 v{V_RUN}, v{V_RUN} offset:{L_FLAG}
    s_mov_b32 s23, 0
    s_mov_b32 s24, 0
    s_mov_b32 s25, 0
    s_mov_b32 s15, 0
    """)
    a.lab("P2_ROUND")
    a(f"""
    v_mov_b32 v32, {SENT}
    v_mov_b32 v33, {SENT}
    v_mov_b32 v34, {SENT}
    v_mov_b32 v35, {SENT}
    ds_write_b128 v3, v[32:35] offset:{L_SRC}
    ds_write_b128 v3, v[32:35] offset:{L_SRC+8192}
    ds_write_b128 v3, v[32:35] offset:{L_POS}
    ds_write_b128 v3, v[32:35] offset:{L_POS+8192}
    v_mov_b32 v36, {(NROW-1)*256}
    v_mov_b32 v37, {(NROW-1)*256}
    v_lshlrev_b32 v40, 3, v0
    ds_write_b64 v40, v[36:37] offset:{L_GT}
    v_mov_b32 v38, -1
    v_mov_b32 v39, -1
    ds_write_b64 v40, v[38:39] offset:{L_GM}
    v_mov_b32 v41, 0
    v_and_b32 v42, 0xfc, v4
    ds_write_b32 v42, v41 offset:{L_NCNT}
    v_mov_b32 v43, 1
    s_cmp_lg_u32 s24, 0
    s_cbranch_scc1 P2_SLOW
    """)
    a(f"""
    v_lshrrev_b32 v44, 3, v0
    v_mul_u32_u24 v13, {CH}, v44
    """)
    a.stamp3(3)
    a("s_waitcnt lgkmcnt(0)\ns_barrier")
    a.stamp3(4)
    for k in range(NK):
        a(f"s_waitcnt vmcnt({NK-1-k+(2 if OPT['epf2'] != '0' else 0)})")
        if k == 0:
            a.stamp(1)
        if k < 4:
            a.stamp3(5 + k)
        a(f"""
        v_cmp_eq_u32 vcc, -2, v{VT+4*k}
        s_cbranch_vccz P2_NOOVF{k}
        ds_or_b32 v41, v43 offset:{L_FLAG}
        s_branch P2_A_LD
        """)
        a.lab(f"P2_NOOVF{k}")
        for pos in range(4):
            j = 4 * k + pos
            a(f"v_cmpx_ne_u32 vcc, -1, v{VT+j}")
            if pos >= 2:
                a(f"s_cbranch_execz P2_A{k}")
            a(f"""
            v_bfe_u32 v{VD+j}, v{VT+j}, 14, 6
            v_lshlrev_b32 v{VD+j}, 2, v{VD+j}
            ds_add_rtn_u32 v{VR+j}, v{VD+j}, v43 offset:{L_NCNT}
            v_lshrrev_b32 v{VP+j}, 20, v{VT+j}
            v_add_lshl_u32 v{VP+j}, v{VP+j}, v13, 5
            v_and_b32 v{VE+j}, 0x3fff, v{VT+j}
            v_lshlrev_b32 v{VE+j}, 7, v{VE+j}
            """)
        a.lab(f"P2_A{k}")
        a(f"""
        s_mov_b64 exec, -1
        v_add_u32 v13, {64*CH}, v13
        """)
    a.lab("P2_A_LD")
    a("s_mov_b64 exec, -1")
    if OPT["xpf"] == "1":
        a(f"""
        s_mul_i32 s9, s5, {391*128}
        v_lshlrev_b32 v26, 7, v0
        v_cmp_gt_u32 vcc, 391, v0
        s_mov_b64 exec, vcc
        buffer_load_dword v27, v26, s[36:39], s9 offen
        s_mov_b64 exec, -1
        """)
    a(f"""
    s_and_b32 s9, s3, 3
    s_lshl_b32 s10, s9, 4
    v_xor_b32 v26, s10, v{V_K[0]}
    v_lshrrev_b32 v27, 3, v1
    v_lshl_add_u32 v26, v27, 9, v26
    s_lshr_b32 s10, s3, 2
    s_lshl_b32 s10, s10, 12
    s_lshl_b32 s11, s9, 7
    s_add_u32 s10, s10, s11
    s_add_u32 s10, s10, s6
    s_lshl_b32 s11, s3, 10
    s_add_u32 m0, s11, {L_PX}
    v_lshlrev_b32 v27, 4, v1
    buffer_load_dwordx4 v26, s[36:39], s10 offen lds
    s_add_u32 m0, s11, {L_ACC}
    s_add_u32 s10, s11, {WF_OFF}
    buffer_load_dwordx4 v27, s[40:43], s10 offen lds
    s_add_u32 m0, s11, {L_ACC+8192}
    s_add_u32 s10, s11, {WF_OFF+8192}
    buffer_load_dwordx4 v27, s[40:43], s10 offen lds
    s_and_b32 s11, s11, 0x400
    s_add_u32 m0, s11, {L_ACC+16384}
    s_add_u32 s10, s11, {WF_OFF+16384}
    buffer_load_dwordx4 v27, s[40:43], s10 offen lds
    s_lshl_b32 s9, s9, 12
    s_add_u32 s9, s9, {WF_OFF+18*1024}
    """)
    for t in range(4):
        a(f"buffer_load_dwordx4 v[{VF+4*t}:{VF+4*t+3}], v27, s[40:43], s9 offen offset:{1024*t}")
    a("s_branch P2_A_DONE")
    L_PREF = L_XB
    a.lab("P2_SLOW")
    a(f"""
    v_add_u32 v44, {L_PREF}, v4
    ds_write_b32 v44, v14
    ds_write_b32 v44, v9 offset:2048
    ds_write_b32 v44, v15 offset:4096
    s_waitcnt lgkmcnt(0)
    s_barrier
    """)
    for j in range(4 * NK):
        a(f"v_mov_b32 v{VT+j}, -1")
    for j in range(JS):
        a(f"""
        s_add_u32 s10, s23, {512*j}
        v_add_u32 v44, s10, v0
        v_cmp_gt_u32 vcc, s24, v44
        s_and_saveexec_b64 s[10:11], vcc
        s_cbranch_execz P2_A_DONE
        v_mov_b32 v45, {L_PREF}
        s_mov_b32 s12, 1024
        """)
        a.lab(f"P2_BS{j}")
        a(f"""
        v_add_u32 v46, s12, v45
        ds_read_b32 v47, v46
        s_waitcnt lgkmcnt(0)
        v_cmp_le_u32 vcc, v47, v44
        s_lshr_b32 s12, s12, 1
        s_cmp_ge_u32 s12, 4
        v_cndmask_b32 v45, v45, v46, vcc
        s_cbranch_scc1 P2_BS{j}
        ds_read_b32 v46, v45
        ds_read_b32 v47, v45 offset:2048
        ds_read_b32 v45, v45 offset:4096
        s_waitcnt lgkmcnt(0)
        v_sub_u32 v46, v44, v46
        v_add_lshl_u32 v46, v47, v46, 2
        s_mov_b32 s12, {ENT_OFF}
        buffer_load_dword v{VT+j}, v46, s[40:43], s12 offen
        s_waitcnt vmcnt(0)
        v_bfe_u32 v{VD+j}, v{VT+j}, 14, 6
        v_lshlrev_b32 v{VD+j}, 2, v{VD+j}
        ds_add_rtn_u32 v{VR+j}, v{VD+j}, v43 offset:{L_NCNT}
        v_lshrrev_b32 v{VP+j}, 20, v{VT+j}
        v_add_lshl_u32 v{VP+j}, v{VP+j}, v45, 5
        v_and_b32 v{VE+j}, 0x3fff, v{VT+j}
        v_lshlrev_b32 v{VE+j}, 7, v{VE+j}
        """)
    a.lab("P2_A_DONE")
    a("s_mov_b64 exec, -1")
    a.stamp3(9)
    a(f"""
    v_lshlrev_b32 v44, 2, v1
    s_waitcnt lgkmcnt(0)
    s_barrier
    """)
    a.stamp3(10)
    a.stamp(2)
    a(f"""
    ds_read_b32 v45, v44 offset:{L_NCNT}
    ds_read_b32 v47, v41 offset:{L_FLAG}
    s_waitcnt lgkmcnt(0)
    v_add_u32 v32, 3, v45
    v_and_b32 v32, -4, v32
    v_mov_b32 v33, v32
    v_readfirstlane_b32 s14, v47
    """)
    a.wave_scan(33)
    a(f"""
    s_nop 0
    v_readlane_b32 s12, v33, 63
    v_add_u32 v34, -1, v33
    v_sub_u32 v33, v33, v32
    s_cmp_lg_u32 s24, 0
    s_cbranch_scc1 P2_CHK_DONE
    s_and_b32 s14, s14, 1
    s_cmp_gt_u32 s12, {SLOTS}
    s_cselect_b32 s14, 1, s14
    s_cmp_eq_u32 s14, 0
    s_cbranch_scc1 P2_CHK_DONE
    """)
    a(f"""
    v_cmp_gt_u32 vcc, {NCH}, v0
    s_mov_b64 s[10:11], vcc
    v_mul_u32_u24 v15, {CH}, v0
    v_lshlrev_b32 v44, 10, v0
    s_lshl_b32 s12, s4, 2
    s_add_u32 s12, s12, {HDR_OFF}
    buffer_load_dword v45, v44, s[40:43], s12 offen
    s_waitcnt vmcnt(0)
    v_lshrrev_b32 v46, 16, v45
    v_cndmask_b32 v46, 0, v46, s[10:11]
    v_and_b32 v45, 0xffff, v45
    v_add_u32 v9, v15, v45
    v_mov_b32 v14, v46
    """)
    a.wave_scan(14)
    a(f"""
    s_nop 0
    v_readlane_b32 s10, v14, 63
    s_lshl_b32 s11, s3, 2
    v_mov_b32 v44, s11
    s_nop 0
    v_mov_b32 v45, s10
    ds_write_b32 v44, v45 offset:{L_WT}
    s_waitcnt lgkmcnt(0)
    s_barrier
    v_and_b32 v44, 7, v1
    v_lshlrev_b32 v45, 2, v44
    ds_read_b32 v45, v45 offset:{L_WT}
    v_cmp_gt_u32 vcc, s3, v44
    v_cmp_gt_u32 s[10:11], 8, v1
    s_waitcnt lgkmcnt(0)
    v_cndmask_b32 v45, 0, v45, s[10:11]
    s_nop 1
    v_cndmask_b32 v47, 0, v45, vcc
    """)
    a.wave_scan(45, full=False)
    a.wave_scan(47, full=False)
    a(f"""
    s_nop 0
    v_readlane_b32 s24, v45, 15
    v_readlane_b32 s10, v47, 15
    v_sub_u32 v14, v14, v46
    s_nop 0
    v_add_u32 v14, s10, v14
    s_branch P2_ROUND
    """)
    a.lab("P2_CHK_DONE")
    for k in range(NK):
        for pos in range(4):
            j = 4 * k + pos
            if pos == 2:
                a(f"v_cmp_ne_u32 vcc, -1, v{VT+j}\ns_cbranch_vccz P2_B1_{k}")
            a(f"ds_bpermute_b32 v{VD+j}, v{VD+j}, v33")
        a.lab(f"P2_B1_{k}")
    a(f"""
    s_add_u32 s12, s12, 31
    s_lshr_b32 s12, s12, 5
    s_add_u32 s21, s12, 7
    s_sub_u32 s21, s21, s3
    s_lshr_b32 s21, s21, 3
    s_lshr_b32 s13, s12, 3
    s_and_b32 s14, s12, 7
    """)
    a(f"""
    s_mul_i32 s10, s3, s13
    s_min_u32 s11, s3, s14
    s_add_u32 s10, s10, s11
    s_lshl_b32 s10, s10, 7
    s_lshl_b32 s11, s21, 6
    v_bfe_u32 v53, v1, 3, 1
    v_mul_u32_u24 v53, s11, v53
    v_lshrrev_b32 v54, 4, v1
    v_lshl_add_u32 v53, v54, 4, v53
    v_add_u32 v{V_AS}, s10, v53
    v_bfe_u32 v53, v1, 2, 1
    v_mul_u32_u24 v53, s11, v53
    v_bfe_u32 v54, v1, 3, 2
    v_lshl_add_u32 v53, v54, 4, v53
    v_and_b32 v54, 3, v1
    v_lshl_add_u32 v53, v54, 2, v53
    v_add_u32 v{V_AP}, s10, v53
    v_lshrrev_b32 v53, 5, v1
    v_mul_u32_u24 v53, s11, v53
    v_add_u32 v53, s10, v53
    v_lshrrev_b32 v{V_AG}, 2, v53
    s_waitcnt lgkmcnt(0)
    """)
    a.stamp3(11)
    for k in range(NK):
        for pos in range(4):
            j = 4 * k + pos
            a(f"v_cmpx_ne_u32 vcc, -1, v{VT+j}")
            if pos >= 2:
                a(f"s_cbranch_execz P2_B2_{k}")
            a(f"""
            v_add_lshl_u32 v{VR+j}, v{VR+j}, v{VD+j}, 2
            ds_write2st64_b32 v{VR+j}, v{VE+j}, v{VP+j} offset0:{L_SRC//256} offset1:{L_POS//256}
            """)
        a.lab(f"P2_B2_{k}")
        a("s_mov_b64 exec, -1")
    a.stamp3(12)
    a.stamp(3)
    a("s_waitcnt vmcnt(0) lgkmcnt(0)")
    a.stamp(4)
    a("s_barrier")
    a.stamp(5)
    a.stamp3(13)
    if OPT["stamp"] == "1":
        a("s_memtime s[82:83]\ns_mov_b32 s86, s21")
    if "nomain" in OPT["abl"]:
        a("s_mov_b32 s21, 0")
    gen_fill1(a)
    a(f"""
    s_lshl_b32 s10, s3, 2
    v_add_u32 v64, s10, v33
    v_add_u32 v65, v33, v32
    v_lshlrev_b32 v66, 8, v1
    s_cmp_eq_u32 s3, 0
    s_cselect_b32 s11, 0, -1
    v_mov_b32 v67, s11
    """)
    a.lab("P2_G_L")
    a(f"""
    v_cmpx_lt_u32 vcc, v64, v65
    s_cbranch_execz P2_G_DONE
    ds_write2st64_b32 v64, v66, v67 offset0:{L_GT//256} offset1:{L_GM//256}
    v_add_u32 v64, 32, v64
    v_mov_b32 v67, -1
    s_branch P2_G_L
    """)
    a.lab("P2_G_DONE")
    a("s_mov_b64 exec, -1")
    a(f"""
    s_cmp_lg_u32 s25, 0
    s_cbranch_scc1 P2_PREP_A
    s_lshr_b32 s9, s3, 2
    s_lshl_b32 s10, s9, 12
    s_add_u32 s10, s10, {L_PX}
    s_sub_u32 s10, s10, s20
    """)
    for t in range(4):
        a(f"""
        v_add_u32 v{64+t}, s10, v{V_XR+t}
        ds_read_b128 v[{VX+4*t}:{VX+4*t+3}], v{64+t}
        """)
    a(f"""
    s_lshl_b32 s9, s9, 13
    s_and_b32 s10, s3, 1
    s_lshl_b32 s10, s10, 2
    s_add_u32 s9, s9, s10
    v_lshl_add_u32 v2, v{V_H16}, 6, v{V_N8}
    v_add_u32 v2, s9, v2
    s_waitcnt lgkmcnt(0)
    """)
    for t in range(4):
        c = "0" if t == 0 else f"v[{VAP}:{VAP+15}]"
        a(f"v_mfma_f32_32x32x16_bf16 v[{VAP}:{VAP+15}], v[{VX+4*t}:{VX+4*t+3}], v[{VF+4*t}:{VF+4*t+3}], {c}")
    a.lab("P2_PREP_A")
    a(f"""
    s_add_u32 s10, s13, 1
    s_mul_i32 s11, s14, s10
    s_lshl_b32 s11, s11, 1
    v_cvt_f32_u32 v68, s10
    v_cvt_f32_u32 v69, s13
    v_rcp_f32 v68, v68
    v_rcp_f32 v69, v69
    s_lshl_b32 s10, s14, 1
    v_lshrrev_b32 v64, 4, v33
    v_bfe_u32 v65, v34, 4, 9
    """)
    for v in (64, 65):
        a(f"""
        v_cmp_gt_u32 vcc, s11, v{v}
        v_subrev_u32 v70, s11, v{v}
        s_nop 0
        v_cndmask_b32 v70, v70, v{v}, vcc
        v_cndmask_b32 v71, v69, v68, vcc
        v_cvt_f32_u32 v70, v70
        v_add_f32 v70, 0.5, v70
        v_mul_f32 v70, v70, v71
        v_cvt_u32_f32 v70, v70
        v_add_u32 v71, s10, v70
        v_cndmask_b32 v{v}, v71, v70, vcc
        """)
    a(f"""
    v_sub_u32 v65, v65, v64
    v_add_u32 v65, 1, v65
    v_cmp_ne_u32 vcc, 0, v32
    v_lshrrev_b32 v66, 4, v0
    v_lshlrev_b32 v66, 2, v66
    v_cndmask_b32 v65, 0, v65, vcc
    v_and_b32 v64, 15, v64
    v_lshl_or_b32 v65, v64, 8, v65
    v_add_u32 v67, 128, v66
    ds_bpermute_b32 v7, v66, v65
    ds_bpermute_b32 v8, v67, v65
    s_cmp_lg_u32 s25, 0
    s_cbranch_scc1 P2_PREP_DONE
    s_bitcmp1_b32 s3, 1
    s_cbranch_scc1 P2_HU
    """)

    def dwrites(base):
        a("s_cmp_ge_u32 s3, 4\ns_cbranch_scc1 " + f"P2_DW1_{base}")
        for i in range(16):
            a(f"ds_write_b32 v2, v{VAP+i} offset:{base+(8*(i//4)+i%4)*256}")
        a(f"s_branch P2_DW2_{base}")
        a.lab(f"P2_DW1_{base}")
        for i in range(8):
            a(f"ds_write_b32 v2, v{VAP+i} offset:{base+(8*(i//4)+i%4)*256}")
        a("s_mov_b32 exec_hi, 0")
        for i in (8, 9):
            a(f"ds_write_b32 v2, v{VAP+i} offset:{base+(8*(i//4)+i%4)*256}")
        a("s_mov_b64 exec, -1")
        a.lab(f"P2_DW2_{base}")

    for i in range(16):
        a(f"v_mul_f32 v{VAP+i}, {NLOG2E:#x}, v{VAP+i}")
    a(f"v_max3_f32 v64, abs(v{VAP}), abs(v{VAP+1}), abs(v{VAP+2})")
    for i in range(3, 15, 2):
        a(f"v_max3_f32 v64, abs(v{VAP+i}), abs(v{VAP+i+1}), v64")
    a(f"""
    v_max_f32 v64, abs(v{VAP+15}), v64
    v_mov_b32 v65, 0x42700000
    v_cmp_lt_f32 s[10:11], v65, v64
    """)
    for i in range(0, 16, 2):
        a(f"""
        v_cmp_u_f32 vcc, v{VAP+i}, v{VAP+i+1}
        s_or_b64 s[10:11], s[10:11], vcc
        """)
    a(f"""
    s_cmp_eq_u64 s[10:11], 0
    s_cbranch_scc1 P2_EA_W
    v_mov_b32 v65, 2
    ds_or_b32 v41, v65 offset:{L_FLAG}
    s_branch P2_EA_W
    """)
    a.lab("P2_HU")
    a(f"v_add_u32 v2, {L_HU}, v2")
    for i in range(16):
        a(f"v_cvt_pk_bf16_f32 v{VAP+i}, v{VAP+i}, v{VAP+i}")
    for i in range(16):
        a(f"v_and_b32 v{VAP+i}, 0xffff0000, v{VAP+i}")
    dwrites(0)
    a.lab("P2_EA_W")
    a(f"""
    v_lshlrev_b32 v64, 4, v1
    v_add_u32 v64, {L_ACC}, v64
    """)
    for f in range(4, 18):
        a(f"ds_read_b128 {wfrag(f)}, v64 offset:{1024*f}")
    a(f"""
    s_waitcnt lgkmcnt(0)
    s_barrier
    ds_read_b32 v65, v41 offset:{L_FLAG}
    s_waitcnt lgkmcnt(0)
    v_readfirstlane_b32 s15, v65
    s_lshr_b32 s15, s15, 1
    s_bitcmp1_b32 s3, 1
    s_cbranch_scc1 P2_EA3
    s_cmp_lg_u32 s15, 0
    s_cbranch_scc1 P2_EA2_W
    """)
    for k in range(16):
        a(f"v_exp_f32 v{VAP+k}, v{VAP+k}")
    a("s_nop 0")
    a.lab("P2_EA2_W")
    dwrites(L_EA)
    a.lab("P2_EA3")
    for f in range(4):
        a(f"ds_read_b128 {wfrag(f)}, v64 offset:{1024*f}")
    a("s_mov_b32 s25, 1")
    a.lab("P2_PREP_DONE")
    a(f"""
    s_waitcnt lgkmcnt(0)
    s_barrier
    """)
    a.stamp3(14)
    a(f"""
    s_cmp_eq_u32 s21, 0
    s_cbranch_scc1 P2_MAIN_DONE
    """)
    gen_fill2(a)
    a.stamp(14)
    if OPT["stamp"] == "4":
        a("s_mov_b32 s70, 0\ns_mov_b32 s72, 0\ns_mov_b32 s74, 0\ns_memtime s[76:77]\ns_mov_b32 s80, s21")
    a(f"""
    s_cmp_lg_u32 s15, 0
    s_cbranch_scc1 P2_LOOPS
    """)
    gen_loop(a, False, "F")
    gen_loop(a, True, "S")
    a.lab("P2_FLUSH")
    for g in range(4):
        a(f"ds_write_b32 v{V_G+g}, v{V_ACC[1]+g} offset:{L_ACC+4}")
    a.lab("P2_MAIN_DONE")
    if OPT["stamp"] == "4":
        a("s_memtime s[78:79]")
    a.stamp(6)
    if OPT["stamp"] == "1":
        a("s_memtime s[84:85]\ns_getreg_b32 s88, hwreg(HW_REG_HW_ID)\ns_getreg_b32 s90, hwreg(HW_REG_XCC_ID)")
    a(f"""
    s_waitcnt vmcnt(0) lgkmcnt(0)
    s_barrier
    """)
    a.stamp(7)
    for h in range(2):
        a(f"""
        v_and_b32 v24, 0xff, v{7+h}
        v_and_b32 v25, 0xff00, v{7+h}
        v_add_u32 v25, v25, v3
        v_add_u32 v25, {L_ACC+8192*h}, v25
        """)
        a.lab(f"P2_FOLD{h}")
        a(f"""
        v_cmpx_lt_u32 vcc, 0, v24
        s_cbranch_execz P2_FOLD_DONE{h}
        ds_read_b128 v[32:35], v25
        v_add_u32 v24, -1, v24
        v_add_u32 v25, 0x100, v25
        s_waitcnt lgkmcnt(0)
        v_add_f32 v{V_RUN+4*h}, v{V_RUN+4*h}, v32
        v_add_f32 v{V_RUN+4*h+1}, v{V_RUN+4*h+1}, v33
        v_add_f32 v{V_RUN+4*h+2}, v{V_RUN+4*h+2}, v34
        v_add_f32 v{V_RUN+4*h+3}, v{V_RUN+4*h+3}, v35
        s_branch P2_FOLD{h}
        """)
        a.lab(f"P2_FOLD_DONE{h}")
        a("s_mov_b64 exec, -1")
    a(f"""
    s_add_u32 s23, s23, {512*JS}
    s_cmp_lt_u32 s23, s24
    s_cbranch_scc1 P2_ROUND
    v_lshrrev_b32 v5, 4, v0
    v_and_b32 v6, 15, v0
    v_lshlrev_b32 v5, 7, v5
    v_lshl_add_u32 v5, v6, 2, v5
    v_add_u32 v6, 0x1000, v5
    """)
    for h in range(2):
        R = V_RUN + 4 * h
        a(f"""
        v_add_u32 v24, {L_HU+8192*h}, v3
        ds_read_b128 v[32:35], v24
        v_cvt_pk_bf16_f32 v36, v{R}, v{R+2}
        v_cvt_pk_bf16_f32 v37, v{R+1}, v{R+3}
        v_lshlrev_b32 v28, 16, v36
        v_and_b32 v30, 0xffff0000, v36
        v_lshlrev_b32 v29, 16, v37
        v_and_b32 v31, 0xffff0000, v37
        s_waitcnt lgkmcnt(0)
        v_add_f32 v28, v28, v32
        v_add_f32 v29, v29, v33
        v_add_f32 v30, v30, v34
        v_add_f32 v31, v31, v35
        v_cvt_pk_bf16_f32 v36, v28, v30
        v_cvt_pk_bf16_f32 v37, v29, v31
        v_lshlrev_b32 v28, 16, v36
        v_and_b32 v30, 0xffff0000, v36
        v_lshlrev_b32 v29, 16, v37
        v_and_b32 v31, 0xffff0000, v37
        """)
        for k in range(4):
            a(f"v_mul_f32 v{32+k}, {NLOG2E:#x}, v{28+k}")
        for k in range(4):
            a(f"v_exp_f32 v{32+k}, v{32+k}")
        for k in range(4):
            a(f"v_add_f32 v{32+k}, 1.0, v{32+k}")
        for k in range(4):
            a(f"v_rcp_f32 v{32+k}, v{32+k}")
        for k in range(4):
            a(f"v_mul_f32 v{28+k}, v{28+k}, v{32+k}")
        a(f"""
        v_cvt_pk_bf16_f32 v{38+2*h}, v28, v30
        v_cvt_pk_bf16_f32 v{39+2*h}, v29, v31
        buffer_store_dword v{38+2*h}, v{5+h}, s[44:47], 0 offen
        buffer_store_dword v{39+2*h}, v{5+h}, s[44:47], 0 offen offset:64
        """)
    a.stamp(8)
    a.stamp_flush(15, 40, 8, DBG2_OFF)
    a.lab("P2_END")
    a("s_endpgm")
    return a.text()


HEAD = open("standalone__edge_featured_mpnn_egc__graph.s.ref").read().split("; Override launch")[0]


def kd(name, vgpr, sgpr):
    acc = (vgpr + 3) // 4 * 4
    return f""".amdhsa_kernel {name}
  .amdhsa_next_free_vgpr {vgpr}
  .amdhsa_next_free_sgpr {sgpr}
  .amdhsa_accum_offset {acc}
  .amdhsa_group_segment_fixed_size 0
  .amdhsa_kernarg_size 80
  .amdhsa_user_sgpr_count 2
  .amdhsa_user_sgpr_kernarg_segment_ptr 1
  .amdhsa_system_sgpr_workgroup_id_x 1
.end_amdhsa_kernel
"""


def main():
    out = HEAD
    out += f"; @launch kernel=p1_kernel grid=({NCH},1,1) block=(704,1,1) lds={P1_LDS}\n"
    out += f"; @launch kernel=p2_kernel grid=({NB},1,1) block=(512,1,1) lds={P2_LDS}\n"
    out += '.amdgcn_target "amdgcn-amd-amdhsa--gfx950"\n.text\n'
    out += ".globl p1_kernel\n.p2align 8\n.type p1_kernel,@function\n" + gen_p1()
    out += ".globl p2_kernel\n.p2align 8\n.type p2_kernel,@function\n" + gen_p2()
    out += '.section .rodata,"a"\n.p2align 6\n' + kd("p1_kernel", 64, 100) + ".p2align 6\n" + kd("p2_kernel", 256, 100)
    open(sys.argv[1], "w").write(out)


main()
```

```python
import sys

N = 12500; E = 800000
NCH = 320; CH = 2500
NK = NCH // 64
TROW = NCH * 128
NB = 256; NPB = 49; MUL = 21400
SUBN = 16
SLOTS = 4096
JS = 7
NLOG2E = 0xBFB8AA3B

T_OFF = 0x0
ENT_OFF = 0xA00000
HDR_OFF = 0xE00000
WF_OFF = 0xE80000
DBG1_OFF = 0x2C00000
DBG2_OFF = 0x2D00000
WS_SIZE = 0x3000000
NFRAG = 34

OPT = dict(p1_store="", p1_tstore="", p1_ld="nt", abl="", stamp="", prio_hi="1", prio_lo="0", xpf="0",
           p1_sched="[[0,1],[2,3],[4,5],[6]]", bunch="1", ne="4", e_pol="", epf1="0", epf2="0", epf_pol="", cpf="0")
for a_ in sys.argv[2:]:
    k_, v_ = a_.split("=")
    OPT[k_] = v_


class A:
    def __init__(self):
        self.l = []

    def __call__(self, s):
        for x in s.strip().split("\n"):
            self.l.append("    " + x.strip())

    def lab(self, s):
        self.l.append(s + ":")

    def srd(self, d, lo, hi, nrec, add=None):
        if add is None:
            self(f"s_mov_b32 s{d}, s{lo}\ns_mov_b32 s{d+1}, s{hi}")
        else:
            self(f"s_add_u32 s{d}, s{lo}, {add}\ns_addc_u32 s{d+1}, s{hi}, 0")
        self(f"s_mov_b32 s{d+2}, {nrec}\ns_mov_b32 s{d+3}, 0x20000")

    def wave_scan(self, v, full=True):
        for sh in (1, 2, 4, 8):
            self("s_nop 1")
            self(f"v_add_u32_dpp v{v}, v{v}, v{v} row_shr:{sh} row_mask:0xf bank_mask:0xf bound_ctrl:0")
        if full:
            self("s_nop 1")
            self(f"v_add_u32_dpp v{v}, v{v}, v{v} row_bcast:15 row_mask:0xa bank_mask:0xf")
            self("s_nop 1")
            self(f"v_add_u32_dpp v{v}, v{v}, v{v} row_bcast:31 row_mask:0xc bank_mask:0xf")

    def stamp(self, k):
        if OPT["stamp"] == "1":
            self(f"s_memrealtime s[{64+2*k}:{65+2*k}]")

    def stamp3(self, k):
        if OPT["stamp"] == "3":
            self(f"s_memtime s[{64+2*k}:{65+2*k}]")

    def stamp_flush(self, n, srd, nw, base):
        if not OPT["stamp"]:
            return
        self(f"""
        s_waitcnt lgkmcnt(0)
        s_mov_b64 exec, -1
        s_mul_i32 s10, s2, {nw}
        s_add_u32 s10, s10, s3
        s_lshl_b32 s10, s10, 6
        s_add_u32 s10, s10, {base}
        v_mov_b32 v1, 0
        """)
        for k in range(n):
            self(f"v_mov_b32 v2, s{64+2*k}\nbuffer_store_dword v2, v1, s[{srd}:{srd+3}], s10 offen offset:{4*k}\ns_nop 1")

    def text(self):
        return "\n".join(self.l) + "\n"


def sub_dl(j):
    return (1 if j < 10 else 8) + (j % 10) // 5, 6 * (j % 5)


def sub_src(j):
    return (3 if j < 10 else 10) + (j % 10) // 2, 16 * (j % 2)


P1_HIST = 0; P1_START = 1024; P1_ENT = 2048
P1_LDS = P1_ENT + CH * 4 + 256


def gen_p1():
    a = A()
    ST = OPT["p1_store"]; TST = OPT["p1_tstore"]; LD = OPT["p1_ld"]
    a.lab("p1_kernel")
    a(f"""
    s_cmp_ge_u32 s2, {NCH}
    s_cbranch_scc1 P1_END
    """)
    a.stamp(0)
    a(f"""
    s_load_dwordx16 s[16:31], s[0:1], 0
    s_load_dwordx4 s[32:35], s[0:1], 64
    v_and_b32 v1, 63, v0
    v_lshrrev_b32 v5, 6, v0
    v_lshlrev_b32 v2, 4, v0
    v_lshlrev_b32 v3, 2, v0
    v_readfirstlane_b32 s3, v5
    v_lshlrev_b32 v4, 4, v1
    v_mov_b32 v6, 0
    v_and_b32 v7, 0x3fc, v3
    ds_write_b32 v7, v6 offset:{P1_HIST}
    s_mul_i32 s4, s2, {CH*4}
    v_and_b32 v24, 31, v1
    v_lshrrev_b32 v25, 5, v1
    s_waitcnt lgkmcnt(0)
    """)
    a.srd(44, 22, 23, CH * 4, "s4")
    a.srd(40, 20, 21, CH * 4, "s4")
    a(f"""
    buffer_load_dwordx4 v[8:11], v2, s[44:47], 0 offen {LD}
    buffer_load_dwordx4 v[12:15], v2, s[40:43], 0 offen {LD}
    """)
    if OPT["epf1"] != "0":
        nl = 625 * int(OPT["epf1"]) // 8
        a(f"s_mul_i32 s5, s2, {CH*32}")
        a.srd(36, 18, 19, nl * 128, "s5")
        a(f"v_lshlrev_b32 v60, 7, v0\nbuffer_load_dword v61, v60, s[36:39], 0 offen {OPT['epf_pol']}")
    a.srd(48, 34, 35, WS_SIZE)
    a.srd(56, 28, 29, 2048 - 64)
    a(f"""
    v_lshlrev_b32 v26, 10, v25
    v_lshl_add_u32 v26, v24, 1, v26
    s_mov_b32 s14, 1.0
    s_cmp_lg_u32 s3, 10
    s_cbranch_scc1 P1_FL_DONE
    s_cmp_ge_u32 s2, {NFRAG}
    s_cbranch_scc1 P1_FL_DONE
    s_sub_u32 s5, s2, 2
    s_cmp_ge_u32 s2, 18
    s_cselect_b32 s5, s5, s2
    s_and_b32 s6, s5, 3
    s_lshl_b32 s6, s6, 11
    s_lshr_b32 s7, s5, 2
    s_and_b32 s7, s7, 1
    s_lshl_b32 s7, s7, 6
    s_add_u32 s6, s6, s7
    s_cmp_ge_u32 s2, 8
    s_cbranch_scc1 P1_FL1
    s_add_u32 s6, s6, 8192
    s_mov_b32 s14, {NLOG2E}
    s_branch P1_FL3
    """)
    a.lab("P1_FL1")
    a(f"""
    s_cmp_ge_u32 s2, 16
    s_cbranch_scc1 P1_FL2
    s_mov_b32 s56, s26
    s_mov_b32 s57, s27
    s_branch P1_FL3
    """)
    a.lab("P1_FL2")
    a(f"""
    s_cmp_ge_u32 s2, 26
    s_cselect_b32 s56, s24, s28
    s_cselect_b32 s57, s25, s29
    s_cmp_ge_u32 s2, 18
    s_cbranch_scc1 P1_FL3
    s_mov_b32 s14, {NLOG2E}
    s_and_b32 s6, s2, 1
    s_lshl_b32 s6, s6, 6
    s_add_u32 s6, s6, 16384
    """)
    a.lab("P1_FL3")
    a(f"""
    s_add_u32 s56, s56, s6
    s_addc_u32 s57, s57, 0
    """)
    for jj in range(8):
        a(f"buffer_load_ushort v{40+jj}, v26, s[56:59], 0 offen offset:{jj*128}")
    a("s_waitcnt vmcnt(0)")
    for jj in range(8):
        a(f"v_lshlrev_b32 v{40+jj}, 16, v{40+jj}")
    for jj in range(8):
        a(f"v_mul_f32 v{40+jj}, s14, v{40+jj}")
    for q in range(4):
        a(f"v_cvt_pk_bf16_f32 v{48+q}, v{40+2*q}, v{40+2*q+1}")
    a(f"""
    s_lshl_b32 s6, s2, 10
    s_add_u32 s6, s6, {WF_OFF}
    buffer_store_dwordx4 v[48:51], v4, s[48:51], s6 offen
    s_endpgm
    """)
    a.lab("P1_FL_DONE")
    if OPT["cpf"] != "0":
        a(f"""
        s_cmp_lg_u32 s3, 10
        s_cbranch_scc1 P1_CPF_DONE
        s_cmp_ge_u32 s2, {64+int(OPT["cpf"])}
        s_cbranch_scc1 P1_END
        s_getpc_b64 s[52:53]
        """)
        a.lab("P1_PC")
        a(f"""
        s_add_u32 s52, s52, p2_kernel-P1_PC
        s_addc_u32 s53, s53, 0
        s_mov_b32 s54, P2_LOOPS-p2_kernel
        s_mov_b32 s55, 0x20000
        v_lshlrev_b32 v40, 6, v1
        """)
        for k in range(8):
            a(f"buffer_load_dword v41, v40, s[52:55], 0 offen\nv_add_u32 v40, 0x1000, v40")
        a("s_endpgm")
        a.lab("P1_CPF_DONE")
    a(f"""
    s_cmp_ge_u32 s3, 10
    s_cbranch_scc1 P1_END
    v_cmp_gt_u32 vcc, {CH//4}, v0
    s_mov_b64 s[8:9], vcc
    v_mov_b32 v30, 1
    s_barrier
    s_waitcnt vmcnt({2 if OPT["epf1"] != "0" else 1})
    """)
    a.stamp(1)
    a("s_mov_b64 exec, s[8:9]")
    for e in range(4):
        a(f"""
        v_mul_u32_u24 v{16+e}, {MUL}, v{8+e}
        v_lshrrev_b32 v31, 20, v{16+e}
        v_lshlrev_b32 v{16+e}, 2, v31
        ds_add_rtn_u32 v{20+e}, v{16+e}, v30 offset:{P1_HIST}
        v_mul_u32_u24 v31, {NPB}, v31
        v_sub_u32 v{8+e}, v{8+e}, v31
        """)
    a("s_mov_b64 exec, -1\ns_waitcnt lgkmcnt(0)")
    a.stamp(2)
    a("s_barrier")
    a.stamp(3)
    a(f"""
    s_cmp_lg_u32 s3, 0
    s_cbranch_scc1 P1_SC_DONE
    ds_read_b128 v[32:35], v4 offset:{P1_HIST}
    s_waitcnt lgkmcnt(0)
    v_add_u32 v36, v32, v33
    v_add_u32 v37, v36, v34
    v_add_u32 v38, v37, v35
    v_mov_b32 v39, v38
    """)
    a.wave_scan(39)
    a(f"""
    v_sub_u32 v40, v39, v38
    v_add_u32 v41, v32, v40
    v_add_u32 v42, v36, v40
    v_add_u32 v43, v37, v40
    ds_write_b128 v4, v[40:43] offset:{P1_START}
    v_lshl_or_b32 v44, v32, 16, v40
    v_lshl_or_b32 v45, v33, 16, v41
    v_lshl_or_b32 v46, v34, 16, v42
    v_lshl_or_b32 v47, v35, 16, v43
    s_lshl_b32 s6, s2, 10
    s_add_u32 s6, s6, {HDR_OFF}
    buffer_store_dwordx4 v[44:47], v4, s[48:51], s6 offen
    """)
    a.lab("P1_SC_DONE")
    a(f"""
    s_waitcnt vmcnt({2 if OPT["epf1"] != "0" else 1})
    s_cmp_eq_u32 s3, 0
    s_cbranch_scc1 P1_W0
    s_waitcnt vmcnt({1 if OPT["epf1"] != "0" else 0})
    """)
    a.lab("P1_W0")
    for e in range(4):
        a(f"""
        v_lshl_or_b32 v{36+e}, v{8+e}, 14, v{12+e}
        v_add_u32 v31, {e}, v3
        v_lshl_or_b32 v{36+e}, v31, 20, v{36+e}
        """)
    a(f"""
    v_lshrrev_b32 v7, 3, v0
    v_lshlrev_b32 v6, 2, v7
    v_and_b32 v27, 7, v0
    s_waitcnt lgkmcnt(0)
    s_barrier
    """)
    a.stamp(4)
    for r in range(4):
        a(f"""
        ds_read_b32 v{40+r}, v6 offset:{P1_START+320*r}
        ds_read_b32 v{44+r}, v6 offset:{P1_HIST+320*r}
        """)
    a("s_mov_b64 exec, s[8:9]")
    for e in range(4):
        a(f"ds_read_b32 v{32+e}, v{16+e} offset:{P1_START}")
    for e in range(4):
        a(f"""
        s_waitcnt lgkmcnt(3)
        v_add_lshl_u32 v{32+e}, v{32+e}, v{20+e}, 2
        ds_write_b32 v{32+e}, v{36+e} offset:{P1_ENT}
        """)
    a("s_mov_b64 exec, -1")
    for r in range(4):
        a(f"""
        v_add_lshl_u32 v{40+r}, v{40+r}, v27, 2
        v_add_u32 v{40+r}, {P1_ENT}, v{40+r}
        v_sub_u32 v{48+r}, v{44+r}, v27
        """)
    a(f"""
    s_lshl_b32 s6, s2, 7
    s_add_u32 s6, s6, {T_OFF}
    s_add_u32 s10, s4, {ENT_OFF}
    v_mul_u32_u24 v28, {TROW}, v7
    v_lshl_or_b32 v28, v27, 4, v28
    s_waitcnt lgkmcnt(0)
    """)
    a.stamp(5)
    a("s_barrier")
    a.stamp(6)
    for r in range(3):
        a(f"""
        ds_read2_b32 v[{8+4*r}:{9+4*r}], v{40+r} offset0:0 offset1:8
        ds_read2_b32 v[{10+4*r}:{11+4*r}], v{40+r} offset0:16 offset1:24
        """)
    a(f"""
    ds_read_b128 v[32:35], v2 offset:{P1_ENT}
    s_cmp_ge_u32 s3, 2
    s_cbranch_scc1 P1_R2SKIP
    ds_read2_b32 v[20:21], v43 offset0:0 offset1:8
    ds_read2_b32 v[22:23], v43 offset0:16 offset1:24
    """)
    a.lab("P1_R2SKIP")
    for r in range(4):
        if r == 3:
            a(f"""
            s_mov_b64 exec, s[8:9]
            buffer_store_dwordx4 v[32:35], v2, s[48:51], s10 offen {ST}
            s_mov_b64 exec, -1
            s_cmp_ge_u32 s3, 2
            s_cbranch_scc1 P1_FIN
            """)
        for k in range(4):
            a(f"v_cmp_lt_i32 s[{16+2*k}:{17+2*k}], {8*k}, v{48+r}")
        a(f"v_cmp_lt_u32 vcc, 32, v{44+r}")
        a("s_waitcnt lgkmcnt(0)" if r == 0 else "s_nop 0")
        for k in range(4):
            a(f"v_cndmask_b32 v{8+4*r+k}, -1, v{8+4*r+k}, s[{16+2*k}:{17+2*k}]")
        a(f"""
        v_cndmask_b32 v{8+4*r}, v{8+4*r}, -2, vcc
        buffer_store_dwordx4 v[{8+4*r}:{11+4*r}], v28, s[48:51], s6 offen {TST}
        s_add_u32 s6, s6, {80*TROW}
        """)
    a.lab("P1_FIN")
    a.stamp(7)
    if OPT["stamp"]:
        a("s_waitcnt vmcnt(0)")
    a.stamp(8)
    a.stamp_flush(9, 48, 16, DBG1_OFF)
    a.lab("P1_END")
    a("s_endpgm")
    return a.text()


L_NCNT = 0; L_FLAG = 256; L_WT = 272
L_SRC = 512; L_POS = L_SRC + 16384; L_GT = L_POS + 16384; L_GM = L_GT + 4096; L_EA = L_GM + 4096
NROW = 50
L_ACC = L_EA + NROW * 256
L_XB = L_ACC + 18432
L_HU = L_XB + 65536
L_PX = L_HU + NROW * 256
P2_LDS = L_PX + 8192
assert P2_LDS <= 163840 and L_ACC + 4 < 65536 and (16 + NROW) * 256 <= 18432
SENT = 0x40000000

V_W = 184
V_Z0 = 64; V_H0 = 80; V_Z1 = 96; V_H1 = 112
V_XA = (128, 28); V_EA = (144, 44, 24, 56)
V_G = 148; V_GR = 152; V_EV = 156
V_SL = 164
V_ACC = (168, 52)
V_XR = 172
V_PS = 176
V_AS = 177; V_AP = 178; V_AG = 179
V_N8 = 181; V_H16 = 182; V_N8H = 183
V_K = (180, 10, 11, 12)
V_GE = 60
V_GM = 48
V_RUN = 16
NE = int(OPT["ne"])


def wfrag(f):
    return f"v[{V_W+4*f}:{V_W+4*f+3}]"


def mf_list(u, Z, H, ph):
    xa = V_XA[ph % 2]; ea = V_EA[ph % NE]
    l = [f"v_mfma_f32_32x32x16_bf16 v[{Z}:{Z+15}], v[{ea}:{ea+3}], {wfrag(16+u)}, 0"]
    for t in range(4):
        l.append(f"v_mfma_f32_32x32x16_bf16 v[{Z}:{Z+15}], v[{xa+4*t}:{xa+4*t+3}], {wfrag(u*4+t)}, v[{Z}:{Z+15}]")
    for t in range(4):
        c = "0" if t == 0 else f"v[{H}:{H+15}]"
        l.append(f"v_mfma_f32_32x32x16_bf16 v[{H}:{H+15}], v[{xa+4*t}:{xa+4*t+3}], {wfrag(8+u*4+t)}, {c}")
    return l


def body(ph, safe):
    out = []
    par = ph % 2
    npar = 1 - par
    PH = OPT["prio_hi"]; PL = OPT["prio_lo"]
    cnt = [0]
    bunch = OPT["bunch"] == "1"

    def lstamp():
        if OPT["stamp"] == "2" and ph == 1:
            out.append(f"s_memtime s[{64+2*cnt[0]}:{65+2*cnt[0]}]")
            cnt[0] += 1

    def trun(instrs, mf, fill):
        lstamp()
        if PH != PL:
            out.append(f"s_setprio {PH}")
        mf = list(mf)
        for k, x in enumerate(instrs):
            out.append(x)
            if k % 3 == 0 and mf:
                out.append(mf.pop(0))
            elif fill:
                if bunch:
                    out.extend(fill); del fill[:]
                else:
                    out.append(fill.pop(0))
        assert not mf
        if PH != PL:
            out.append(f"s_setprio {PL}")

    def half(u, Z, H, mf, fill, preF, postF, fillR, preM, postM):
        ev = lambda i: V_EV + 2 * (i // 4) + u
        if safe:
            if u == 0:
                out.append(("W", "ev3"))
            out.extend(f"v_add_f32 v{Z+i}, v{ev(i)}, v{Z+i}" for i in range(16))
        trun([f"v_exp_f32 v{Z+i}, v{Z+i}" for i in range(16)], mf[:5], fill)
        lstamp()
        out.extend(preF)
        if safe:
            out.extend(f"v_add_f32 v{Z+i}, 1.0, v{Z+i}" for i in range(16))
        else:
            out.extend(f"v_fma_f32 v{Z+i}, v{Z+i}, v{ev(i)}, 1.0" for i in range(16))
        out.extend(postF)
        fill.extend(fillR)
        trun([f"v_rcp_f32 v{Z+i}, v{Z+i}" for i in range(16)], mf[5:], fill)
        assert not fill, fill
        lstamp()
        out.extend(preM)
        A_ = V_ACC[u]
        for g in range(4):
            out.append(f"v_and_b32 v{A_+g}, v{A_+(g+3)%4}, v{V_GM+g}")
            out.extend(f"v_fmac_f32 v{A_+g}, v{Z+4*g+k}, v{H+4*g+k}" for k in range(4))
        out.extend(postM)

    def accw(u):
        return [("L", f"ds_write_b32 v{V_G+g}, v{V_ACC[u]+g} offset:{L_ACC+4*u}", None) for g in range(4)]

    xa = V_XA[npar]
    fill = [f"s_cmp_gt_u32 s21, {NE}", "s_cselect_b32 s58, s18, 0",
            f"buffer_load_dwordx4 v[{V_EA[ph]}:{V_EA[ph]+3}], v{V_PS}, s[56:59], 0 offen {OPT['e_pol']}"] + accw(1)
    fill.append(("L", f"ds_read_b128 v[{V_GM}:{V_GM+3}], v{V_AG} offset:{L_GM+16*ph}", "gm"))
    preF = [f"v_add_u32 v{V_G+g}, v{V_GR+g}, v{V_N8H}" for g in range(4)] + ([] if safe else [("W", "ev3")])
    fillR = [f"s_waitcnt vmcnt({5 if NE == 2 else 6})"]
    for t in range(4):
        fillR.append(("L", f"ds_read_b128 v[{xa+4*t}:{xa+4*t+3}], v{V_XR+t} offset:{npar*4096}", f"xa{t}"))
    fillR += [("L", f"ds_read_b128 v[{V_SL}:{V_SL+3}], v{V_AS} offset:{L_SRC+64*(3+ph)}", "sl"),
              ("L", f"ds_read_b128 v[{V_GR}:{V_GR+3}], v{V_AG} offset:{L_GT+16*(1+ph)}", "gr"),
              ("L", f"ds_read_b32 v{V_PS}, v{V_AP} offset:{L_POS+64*(NE+1+ph)}", "pos"),
              "s_cmp_gt_u32 s21, 3", "s_cselect_b32 s38, s19, 0", f"s_add_u32 m0, s20, {npar*4096}"]
    postM = [("W", "sl")] + [f"v_or_b32 v{V_SL+j}, v{V_SL+j}, v{V_K[j]}" for j in range(4)]
    half(0, V_Z0, V_H0, mf_list(1, V_Z1, V_H1, ph), fill, preF, [], fillR, [("W", "gm")], postM)
    fill = []
    aw = accw(0)
    for j in range(4):
        fill.append(f"buffer_load_dwordx4 v{V_SL+j}, s[36:39], 0 offen lds")
        if j < 3:
            fill.append(f"s_add_u32 m0, s20, {npar*4096+(j+1)*1024}")
        fill.append(aw[j])
    postF = [("W", "pos")] + [f"v_add_u32 v{V_GE+g}, v{V_GR+g}, v{V_N8}" for g in range(4)]
    postF.append(f"v_add_u32 v{V_PS}, v{V_PS}, v{V_H16}")
    fillR = [("L", f"ds_read_b64 v[{V_EV+2*g}:{V_EV+2*g+1}], v{V_GE+g} offset:{L_EA}", f"ev{g}") for g in range(4)]
    half(1, V_Z1, V_H1, mf_list(0, V_Z0, V_H0, ph + 1), fill, [], postF, fillR, [], [])
    lstamp()
    if "nomfma" in OPT["abl"]:
        out = [x for x in out if not (isinstance(x, str) and "mfma" in x)]
    if "novalu" in OPT["abl"]:
        out = [x for x in out if not (isinstance(x, str) and any(k in x for k in ("v_exp", "v_rcp", "v_fma", "v_fmac")))]
    return out


def instrument(items):
    out = []
    for x in items:
        acc = None
        if isinstance(x, str):
            if x.startswith("s_waitcnt vmcnt"): acc = 70
            elif x.startswith("buffer_load") and "lds" not in x: acc = 71
            elif x.startswith("buffer_load"): acc = 72
        if acc:
            out += ["s_memtime s[64:65]", "s_waitcnt lgkmcnt(0)", x, "s_memtime s[66:67]", "s_waitcnt lgkmcnt(0)",
                    "s_sub_u32 s68, s66, s64", f"s_add_u32 s{acc+2*(acc-70)+4-0 if False else {70:70,71:72,72:74}[acc]}, s{ {70:70,71:72,72:74}[acc] }, s68"]
        else:
            out.append(x)
    return out


def resolve(prev, cur):
    seq = prev + cur
    res = []
    for i, x in enumerate(seq):
        if i < len(prev):
            continue
        if isinstance(x, str):
            res.append(x)
        elif x[0] == "L":
            res.append(x[1])
        else:
            n = 0
            k = i - 1
            while not (isinstance(seq[k], tuple) and seq[k][0] == "L" and seq[k][2] == x[1]):
                if isinstance(seq[k], tuple) and seq[k][0] == "L":
                    n += 1
                k -= 1
                assert k >= 0, x
            res.append(f"s_waitcnt lgkmcnt({min(n, 15)})")
    return res


def gen_fill1(a):
    EP = OPT['e_pol']
    a(f"ds_read_b128 v[{V_SL}:{V_SL+3}], v{V_AS} offset:{L_SRC}")
    for k in range(NE):
        a(f"ds_read_b32 v{V_GE+k}, v{V_AP} offset:{L_POS+64*k}")
    a(f"""
    ds_read_b128 v[{V_ACC[0]}:{V_ACC[0]+3}], v{V_AS} offset:{L_SRC+64}
    ds_read_b32 v{V_PS}, v{V_AP} offset:{L_POS+64*NE}
    s_waitcnt lgkmcnt(2)
    """)

    def eld(k):
        a(f"""
        s_cmp_gt_u32 s21, {k}
        s_cselect_b32 s58, s18, 0
        v_add_u32 v{V_GE+k}, v{V_GE+k}, v{V_H16}
        buffer_load_dwordx4 v[{V_EA[k]}:{V_EA[k]+3}], v{V_GE+k}, s[56:59], 0 offen {EP}
        """)
    eld(0)
    xld(a, 0, V_SL, 0)
    eld(1)
    if NE == 4:
        eld(2)
    a("s_waitcnt lgkmcnt(0)")
    xld(a, 1, V_ACC[0], 1)
    if NE == 4:
        eld(3)
    a(f"""
    v_add_u32 v{V_PS}, v{V_PS}, v{V_H16}
    ds_read_b128 v[{V_SL}:{V_SL+3}], v{V_AS} offset:{L_SRC+128}
    """)


def xld(a, b, vb, k):
    a(f"s_cmp_gt_u32 s21, {k}\ns_cselect_b32 s38, s19, 0")
    for j in range(4):
        a(f"""
        s_add_u32 m0, s20, {b*4096+j*1024}
        v_or_b32 v{vb+j}, v{vb+j}, v{V_K[j]}
        buffer_load_dwordx4 v{vb+j}, s[36:39], 0 offen lds
        """)


def gen_fill2(a):
    xa = V_XA[0]
    a(f"""
    ds_read_b128 v[{V_GR}:{V_GR+3}], v{V_AG} offset:{L_GT}
    v_mov_b32 v{V_ACC[0]+3}, 0
    v_mov_b32 v{V_ACC[1]+3}, 0
    s_waitcnt lgkmcnt(0)
    """)
    for g in range(4):
        a(f"""
        v_add_u32 v{V_GE+g}, v{V_GR+g}, v{V_N8}
        v_add_u32 v{V_G+g}, v{V_GR+g}, v{V_N8H}
        ds_read_b64 v[{V_EV+2*g}:{V_EV+2*g+1}], v{V_GE+g} offset:{L_EA}
        """)
    a(f"s_waitcnt vmcnt({5 if NE == 2 else 7})")
    for t in range(4):
        a(f"ds_read_b128 v[{xa+4*t}:{xa+4*t+3}], v{V_XR+t}")
    a("s_waitcnt lgkmcnt(0)")
    xld(a, 0, V_SL, 2)
    for m in mf_list(0, V_Z0, V_H0, 0):
        a(m)
    a("s_nop 7\ns_nop 7")


def gen_loop(a, safe, tag):
    bs = [body(p, safe) for p in range(NE)]
    a.lab(f"P2_LOOP{tag}")
    for p in range(NE):
        rs = resolve(bs[p - 1], bs[p])
        if OPT["stamp"] == "4":
            rs = instrument(rs)
        for x in rs:
            a(x)
        if p < NE - 1:
            a(f"""
            s_sub_u32 s21, s21, 1
            s_cmp_eq_u32 s21, 0
            s_cbranch_scc1 P2_FLUSH
            """)
    a(f"""
    v_add_u32 v{V_AS}, {64*NE}, v{V_AS}
    v_add_u32 v{V_AP}, {64*NE}, v{V_AP}
    v_add_u32 v{V_AG}, {16*NE}, v{V_AG}
    s_sub_u32 s21, s21, 1
    s_cmp_lg_u32 s21, 0
    s_cbranch_scc1 P2_LOOP{tag}
    s_branch P2_FLUSH
    """)


def gen_p2():
    a = A()
    VT = 64
    VP = 84
    VR = 104
    VD = 124
    VE = 144
    VF = 200
    VX = 216
    VAP = 184
    a.lab("p2_kernel")
    a(f"""
    s_cmp_ge_u32 s2, {NB}
    s_cbranch_scc1 P2_END
    """)
    a.stamp(0)
    a.stamp3(0)
    a(f"""
    s_load_dwordx4 s[16:19], s[0:1], 0
    s_load_dwordx2 s[12:13], s[0:1], 56
    s_load_dwordx2 s[34:35], s[0:1], 72
    s_and_b32 s4, s2, 7
    s_lshl_b32 s4, s4, 5
    s_lshr_b32 s5, s2, 3
    s_add_u32 s4, s4, s5
    v_and_b32 v1, 63, v0
    v_lshrrev_b32 v5, 6, v0
    v_lshlrev_b32 v3, 4, v0
    v_lshlrev_b32 v4, 2, v0
    v_readfirstlane_b32 s3, v5
    s_mul_i32 s8, s4, {TROW}
    s_add_u32 s8, s8, {T_OFF}
    s_mul_i32 s6, s4, {NPB*128}
    v_and_b32 v56, 31, v1
    v_lshrrev_b32 v57, 5, v1
    v_and_b32 v58, 7, v1
    v_lshlrev_b32 v59, 2, v57
    v_xor_b32 v58, v58, v59
    v_lshlrev_b32 v{V_K[0]}, 4, v58
    s_waitcnt lgkmcnt(0)
    """)
    a.stamp3(1)
    a.srd(40, 34, 35, WS_SIZE)
    for k in range(NK):
        a(f"buffer_load_dwordx4 v[{VT+4*k}:{VT+4*k+3}], v3, s[40:43], s8 offen\ns_add_u32 s8, s8, 8192")
    a.srd(36, 16, 17, N * 128)
    a.srd(56, 18, 19, E * 32)
    if OPT["epf2"] != "0":
        f1 = 625 * int(OPT["epf1"]) // 8
        a(f"""
        v_add_u32 v60, {f1}, v0
        v_cmp_gt_u32 vcc, 625, v60
        v_lshlrev_b32 v60, 7, v60
        s_mul_i32 s9, s2, {CH*32}
        s_mov_b64 exec, vcc
        buffer_load_dword v61, v60, s[56:59], s9 offen {OPT['epf_pol']}
        s_add_u32 s9, s9, {256*CH*32}
        buffer_load_dword v61, v60, s[56:59], s9 offen {OPT['epf_pol']}
        s_mov_b64 exec, -1
        """)
    a(f"""
    s_add_u32 s44, s12, s6
    s_addc_u32 s45, s13, 0
    s_sub_u32 s46, {N*128}, s6
    s_min_u32 s46, s46, {NPB*128}
    s_mov_b32 s47, 0x20000
    s_mov_b32 s19, {0 if "nox" in OPT["abl"] else N*128}
    s_mov_b32 s18, {0 if "noe" in OPT["abl"] else E*32}
    """)
    NLD = 0
    a.stamp3(2)
    a(f"""
    s_lshl_b32 s20, s3, 13
    s_add_u32 s20, s20, {L_XB}
    v_lshlrev_b32 v{V_N8}, 3, v56
    v_lshlrev_b32 v{V_H16}, 4, v57
    v_lshrrev_b32 v58, 5, v0
    v_lshl_add_u32 v{V_N8H}, v58, 8, v{V_N8}
    v_xor_b32 v{V_K[1]}, 16, v{V_K[0]}
    v_xor_b32 v{V_K[2]}, 32, v{V_K[0]}
    v_xor_b32 v{V_K[3]}, 48, v{V_K[0]}
    v_and_b32 v58, 3, v56
    v_lshrrev_b32 v59, 2, v56
    v_lshl_add_u32 v59, v58, 3, v59
    v_lshlrev_b32 v59, 7, v59
    v_add_u32 v59, s20, v59
    v_lshrrev_b32 v60, 4, v56
    v_lshl_add_u32 v58, v60, 2, v58
    v_xor_b32 v58, v58, v57
    """)
    for t in range(4):
        a(f"""
        v_xor_b32 v60, {2*t}, v58
        v_lshl_add_u32 v{V_XR+t}, v60, 4, v59
        """)
    for k in range(8):
        a(f"v_mov_b32 v{V_RUN+k}, 0")
    a(f"""
    ds_write_b32 v{V_RUN}, v{V_RUN} offset:{L_FLAG}
    s_mov_b32 s23, 0
    s_mov_b32 s24, 0
    s_mov_b32 s25, 0
    s_mov_b32 s15, 0
    """)
    a.lab("P2_ROUND")
    a(f"""
    v_mov_b32 v32, {SENT}
    v_mov_b32 v33, {SENT}
    v_mov_b32 v34, {SENT}
    v_mov_b32 v35, {SENT}
    ds_write_b128 v3, v[32:35] offset:{L_SRC}
    ds_write_b128 v3, v[32:35] offset:{L_SRC+8192}
    ds_write_b128 v3, v[32:35] offset:{L_POS}
    ds_write_b128 v3, v[32:35] offset:{L_POS+8192}
    v_mov_b32 v36, {(NROW-1)*256}
    v_mov_b32 v37, {(NROW-1)*256}
    v_lshlrev_b32 v40, 3, v0
    ds_write_b64 v40, v[36:37] offset:{L_GT}
    v_mov_b32 v38, -1
    v_mov_b32 v39, -1
    ds_write_b64 v40, v[38:39] offset:{L_GM}
    v_mov_b32 v41, 0
    v_and_b32 v42, 0xfc, v4
    ds_write_b32 v42, v41 offset:{L_NCNT}
    v_mov_b32 v43, 1
    s_cmp_lg_u32 s24, 0
    s_cbranch_scc1 P2_SLOW
    """)
    a(f"""
    v_lshrrev_b32 v44, 3, v0
    v_mul_u32_u24 v13, {CH}, v44
    """)
    a.stamp3(3)
    a("s_waitcnt lgkmcnt(0)\ns_barrier")
    a.stamp3(4)
    for k in range(NK):
        a(f"s_waitcnt vmcnt({NK-1-k+(2 if OPT['epf2'] != '0' else 0)})")
        if k == 0:
            a.stamp(1)
        if k < 4:
            a.stamp3(5 + k)
        a(f"""
        v_cmp_eq_u32 vcc, -2, v{VT+4*k}
        s_cbranch_vccz P2_NOOVF{k}
        ds_or_b32 v41, v43 offset:{L_FLAG}
        s_branch P2_A_LD
        """)
        a.lab(f"P2_NOOVF{k}")
        for pos in range(4):
            j = 4 * k + pos
            a(f"v_cmpx_ne_u32 vcc, -1, v{VT+j}")
            if pos >= 2:
                a(f"s_cbranch_execz P2_A{k}")
            a(f"""
            v_bfe_u32 v{VD+j}, v{VT+j}, 14, 6
            v_lshlrev_b32 v{VD+j}, 2, v{VD+j}
            ds_add_rtn_u32 v{VR+j}, v{VD+j}, v43 offset:{L_NCNT}
            v_lshrrev_b32 v{VP+j}, 20, v{VT+j}
            v_add_lshl_u32 v{VP+j}, v{VP+j}, v13, 5
            v_and_b32 v{VE+j}, 0x3fff, v{VT+j}
            v_lshlrev_b32 v{VE+j}, 7, v{VE+j}
            """)
        a.lab(f"P2_A{k}")
        a(f"""
        s_mov_b64 exec, -1
        v_add_u32 v13, {64*CH}, v13
        """)
    a.lab("P2_A_LD")
    a("s_mov_b64 exec, -1")
    if OPT["xpf"] == "1":
        a(f"""
        s_mul_i32 s9, s5, {391*128}
        v_lshlrev_b32 v26, 7, v0
        v_cmp_gt_u32 vcc, 391, v0
        s_mov_b64 exec, vcc
        buffer_load_dword v28, v26, s[36:39], s9 offen
        s_mov_b64 exec, -1
        """)
    a(f"""
    s_and_b32 s9, s3, 3
    s_lshl_b32 s10, s9, 4
    v_xor_b32 v26, s10, v{V_K[0]}
    v_lshrrev_b32 v27, 3, v1
    v_lshl_add_u32 v26, v27, 9, v26
    s_lshr_b32 s10, s3, 2
    s_lshl_b32 s10, s10, 12
    s_lshl_b32 s11, s9, 7
    s_add_u32 s10, s10, s11
    s_add_u32 s10, s10, s6
    s_lshl_b32 s11, s3, 10
    s_add_u32 m0, s11, {L_PX}
    v_lshlrev_b32 v27, 4, v1
    buffer_load_dwordx4 v26, s[36:39], s10 offen lds
    s_add_u32 m0, s11, {L_ACC}
    s_add_u32 s10, s11, {WF_OFF}
    buffer_load_dwordx4 v27, s[40:43], s10 offen lds
    s_add_u32 m0, s11, {L_ACC+8192}
    s_add_u32 s10, s11, {WF_OFF+8192}
    buffer_load_dwordx4 v27, s[40:43], s10 offen lds
    s_and_b32 s11, s11, 0x400
    s_add_u32 m0, s11, {L_ACC+16384}
    s_add_u32 s10, s11, {WF_OFF+16384}
    buffer_load_dwordx4 v27, s[40:43], s10 offen lds
    s_lshl_b32 s9, s9, 12
    s_add_u32 s9, s9, {WF_OFF+18*1024}
    """)
    for t in range(4):
        a(f"buffer_load_dwordx4 v[{VF+4*t}:{VF+4*t+3}], v27, s[40:43], s9 offen offset:{1024*t}")
    a("s_branch P2_A_DONE")
    L_PREF = L_XB
    a.lab("P2_SLOW")
    a(f"""
    v_add_u32 v44, {L_PREF}, v4
    ds_write_b32 v44, v14
    ds_write_b32 v44, v9 offset:2048
    ds_write_b32 v44, v15 offset:4096
    s_waitcnt lgkmcnt(0)
    s_barrier
    """)
    for j in range(4 * NK):
        a(f"v_mov_b32 v{VT+j}, -1")
    for j in range(JS):
        a(f"""
        s_add_u32 s10, s23, {512*j}
        v_add_u32 v44, s10, v0
        v_cmp_gt_u32 vcc, s24, v44
        s_and_saveexec_b64 s[10:11], vcc
        s_cbranch_execz P2_A_DONE
        v_mov_b32 v45, {L_PREF}
        s_mov_b32 s12, 1024
        """)
        a.lab(f"P2_BS{j}")
        a(f"""
        v_add_u32 v46, s12, v45
        ds_read_b32 v47, v46
        s_waitcnt lgkmcnt(0)
        v_cmp_le_u32 vcc, v47, v44
        s_lshr_b32 s12, s12, 1
        s_cmp_ge_u32 s12, 4
        v_cndmask_b32 v45, v45, v46, vcc
        s_cbranch_scc1 P2_BS{j}
        ds_read_b32 v46, v45
        ds_read_b32 v47, v45 offset:2048
        ds_read_b32 v45, v45 offset:4096
        s_waitcnt lgkmcnt(0)
        v_sub_u32 v46, v44, v46
        v_add_lshl_u32 v46, v47, v46, 2
        s_mov_b32 s12, {ENT_OFF}
        buffer_load_dword v{VT+j}, v46, s[40:43], s12 offen
        s_waitcnt vmcnt(0)
        v_bfe_u32 v{VD+j}, v{VT+j}, 14, 6
        v_lshlrev_b32 v{VD+j}, 2, v{VD+j}
        ds_add_rtn_u32 v{VR+j}, v{VD+j}, v43 offset:{L_NCNT}
        v_lshrrev_b32 v{VP+j}, 20, v{VT+j}
        v_add_lshl_u32 v{VP+j}, v{VP+j}, v45, 5
        v_and_b32 v{VE+j}, 0x3fff, v{VT+j}
        v_lshlrev_b32 v{VE+j}, 7, v{VE+j}
        """)
    a.lab("P2_A_DONE")
    a("s_mov_b64 exec, -1")
    a.stamp3(9)
    a(f"""
    v_lshlrev_b32 v44, 2, v1
    s_waitcnt lgkmcnt(0)
    s_barrier
    """)
    a.stamp3(10)
    a.stamp(2)
    a(f"""
    ds_read_b32 v45, v44 offset:{L_NCNT}
    ds_read_b32 v47, v41 offset:{L_FLAG}
    s_waitcnt lgkmcnt(0)
    v_add_u32 v32, 3, v45
    v_and_b32 v32, -4, v32
    v_mov_b32 v33, v32
    v_readfirstlane_b32 s14, v47
    """)
    a.wave_scan(33)
    a(f"""
    s_nop 0
    v_readlane_b32 s12, v33, 63
    v_add_u32 v34, -1, v33
    v_sub_u32 v33, v33, v32
    s_cmp_lg_u32 s24, 0
    s_cbranch_scc1 P2_CHK_DONE
    s_and_b32 s14, s14, 1
    s_cmp_gt_u32 s12, {SLOTS}
    s_cselect_b32 s14, 1, s14
    s_cmp_eq_u32 s14, 0
    s_cbranch_scc1 P2_CHK_DONE
    """)
    a(f"""
    v_cmp_gt_u32 vcc, {NCH}, v0
    s_mov_b64 s[10:11], vcc
    v_mul_u32_u24 v15, {CH}, v0
    v_lshlrev_b32 v44, 10, v0
    s_lshl_b32 s12, s4, 2
    s_add_u32 s12, s12, {HDR_OFF}
    buffer_load_dword v45, v44, s[40:43], s12 offen
    s_waitcnt vmcnt(0)
    v_lshrrev_b32 v46, 16, v45
    v_cndmask_b32 v46, 0, v46, s[10:11]
    v_and_b32 v45, 0xffff, v45
    v_add_u32 v9, v15, v45
    v_mov_b32 v14, v46
    """)
    a.wave_scan(14)
    a(f"""
    s_nop 0
    v_readlane_b32 s10, v14, 63
    s_lshl_b32 s11, s3, 2
    v_mov_b32 v44, s11
    s_nop 0
    v_mov_b32 v45, s10
    ds_write_b32 v44, v45 offset:{L_WT}
    s_waitcnt lgkmcnt(0)
    s_barrier
    v_and_b32 v44, 7, v1
    v_lshlrev_b32 v45, 2, v44
    ds_read_b32 v45, v45 offset:{L_WT}
    v_cmp_gt_u32 vcc, s3, v44
    v_cmp_gt_u32 s[10:11], 8, v1
    s_waitcnt lgkmcnt(0)
    v_cndmask_b32 v45, 0, v45, s[10:11]
    s_nop 1
    v_cndmask_b32 v47, 0, v45, vcc
    """)
    a.wave_scan(45, full=False)
    a.wave_scan(47, full=False)
    a(f"""
    s_nop 0
    v_readlane_b32 s24, v45, 15
    v_readlane_b32 s10, v47, 15
    v_sub_u32 v14, v14, v46
    s_nop 0
    v_add_u32 v14, s10, v14
    s_branch P2_ROUND
    """)
    a.lab("P2_CHK_DONE")
    for k in range(NK):
        for pos in range(4):
            j = 4 * k + pos
            if pos == 2:
                a(f"v_cmp_ne_u32 vcc, -1, v{VT+j}\ns_cbranch_vccz P2_B1_{k}")
            a(f"ds_bpermute_b32 v{VD+j}, v{VD+j}, v33")
        a.lab(f"P2_B1_{k}")
    a(f"""
    s_add_u32 s12, s12, 31
    s_lshr_b32 s12, s12, 5
    s_add_u32 s21, s12, 7
    s_sub_u32 s21, s21, s3
    s_lshr_b32 s21, s21, 3
    s_lshr_b32 s13, s12, 3
    s_and_b32 s14, s12, 7
    """)
    a(f"""
    s_mul_i32 s10, s3, s13
    s_min_u32 s11, s3, s14
    s_add_u32 s10, s10, s11
    s_lshl_b32 s10, s10, 7
    s_lshl_b32 s11, s21, 6
    v_bfe_u32 v53, v1, 3, 1
    v_mul_u32_u24 v53, s11, v53
    v_lshrrev_b32 v54, 4, v1
    v_lshl_add_u32 v53, v54, 4, v53
    v_add_u32 v{V_AS}, s10, v53
    v_bfe_u32 v53, v1, 2, 1
    v_mul_u32_u24 v53, s11, v53
    v_bfe_u32 v54, v1, 3, 2
    v_lshl_add_u32 v53, v54, 4, v53
    v_and_b32 v54, 3, v1
    v_lshl_add_u32 v53, v54, 2, v53
    v_add_u32 v{V_AP}, s10, v53
    v_lshrrev_b32 v53, 5, v1
    v_mul_u32_u24 v53, s11, v53
    v_add_u32 v53, s10, v53
    v_lshrrev_b32 v{V_AG}, 2, v53
    s_waitcnt lgkmcnt(0)
    """)
    a.stamp3(11)
    for k in range(NK):
        for pos in range(4):
            j = 4 * k + pos
            a(f"v_cmpx_ne_u32 vcc, -1, v{VT+j}")
            if pos >= 2:
                a(f"s_cbranch_execz P2_B2_{k}")
            a(f"""
            v_add_lshl_u32 v{VR+j}, v{VR+j}, v{VD+j}, 2
            ds_write2st64_b32 v{VR+j}, v{VE+j}, v{VP+j} offset0:{L_SRC//256} offset1:{L_POS//256}
            """)
        a.lab(f"P2_B2_{k}")
        a("s_mov_b64 exec, -1")
    a.stamp3(12)
    a.stamp(3)
    a("s_waitcnt vmcnt(0) lgkmcnt(0)")
    a.stamp(4)
    a("s_barrier")
    a.stamp(5)
    a.stamp3(13)
    if OPT["stamp"] == "1":
        a("s_memtime s[82:83]\ns_mov_b32 s86, s21")
    if "nomain" in OPT["abl"]:
        a("s_mov_b32 s21, 0")
    gen_fill1(a)
    a(f"""
    s_lshl_b32 s10, s3, 2
    v_add_u32 v64, s10, v33
    v_add_u32 v65, v33, v32
    v_lshlrev_b32 v66, 8, v1
    s_cmp_eq_u32 s3, 0
    s_cselect_b32 s11, 0, -1
    v_mov_b32 v67, s11
    """)
    a.lab("P2_G_L")
    a(f"""
    v_cmpx_lt_u32 vcc, v64, v65
    s_cbranch_execz P2_G_DONE
    ds_write2st64_b32 v64, v66, v67 offset0:{L_GT//256} offset1:{L_GM//256}
    v_add_u32 v64, 32, v64
    v_mov_b32 v67, -1
    s_branch P2_G_L
    """)
    a.lab("P2_G_DONE")
    a("s_mov_b64 exec, -1")
    a(f"""
    s_cmp_lg_u32 s25, 0
    s_cbranch_scc1 P2_PREP_A
    s_lshr_b32 s9, s3, 2
    s_lshl_b32 s10, s9, 12
    s_add_u32 s10, s10, {L_PX}
    s_sub_u32 s10, s10, s20
    """)
    for t in range(4):
        a(f"""
        v_add_u32 v{64+t}, s10, v{V_XR+t}
        ds_read_b128 v[{VX+4*t}:{VX+4*t+3}], v{64+t}
        """)
    a(f"""
    s_lshl_b32 s9, s9, 13
    s_and_b32 s10, s3, 1
    s_lshl_b32 s10, s10, 2
    s_add_u32 s9, s9, s10
    v_lshl_add_u32 v2, v{V_H16}, 6, v{V_N8}
    v_add_u32 v2, s9, v2
    s_waitcnt lgkmcnt(0)
    """)
    for t in range(4):
        c = "0" if t == 0 else f"v[{VAP}:{VAP+15}]"
        a(f"v_mfma_f32_32x32x16_bf16 v[{VAP}:{VAP+15}], v[{VX+4*t}:{VX+4*t+3}], v[{VF+4*t}:{VF+4*t+3}], {c}")
    a.lab("P2_PREP_A")
    a(f"""
    s_add_u32 s10, s13, 1
    s_mul_i32 s11, s14, s10
    s_lshl_b32 s11, s11, 1
    v_cvt_f32_u32 v68, s10
    v_cvt_f32_u32 v69, s13
    v_rcp_f32 v68, v68
    v_rcp_f32 v69, v69
    s_lshl_b32 s10, s14, 1
    v_lshrrev_b32 v64, 4, v33
    v_bfe_u32 v65, v34, 4, 9
    """)
    for v in (64, 65):
        a(f"""
        v_cmp_gt_u32 vcc, s11, v{v}
        v_subrev_u32 v70, s11, v{v}
        s_nop 0
        v_cndmask_b32 v70, v70, v{v}, vcc
        v_cndmask_b32 v71, v69, v68, vcc
        v_cvt_f32_u32 v70, v70
        v_add_f32 v70, 0.5, v70
        v_mul_f32 v70, v70, v71
        v_cvt_u32_f32 v70, v70
        v_add_u32 v71, s10, v70
        v_cndmask_b32 v{v}, v71, v70, vcc
        """)
    a(f"""
    v_sub_u32 v65, v65, v64
    v_add_u32 v65, 1, v65
    v_cmp_ne_u32 vcc, 0, v32
    v_lshrrev_b32 v66, 4, v0
    v_lshlrev_b32 v66, 2, v66
    v_cndmask_b32 v65, 0, v65, vcc
    v_and_b32 v64, 15, v64
    v_lshl_or_b32 v65, v64, 8, v65
    v_add_u32 v67, 128, v66
    ds_bpermute_b32 v7, v66, v65
    ds_bpermute_b32 v8, v67, v65
    s_cmp_lg_u32 s25, 0
    s_cbranch_scc1 P2_PREP_DONE
    s_bitcmp1_b32 s3, 1
    s_cbranch_scc1 P2_HU
    """)

    def dwrites(base):
        a("s_cmp_ge_u32 s3, 4\ns_cbranch_scc1 " + f"P2_DW1_{base}")
        for i in range(16):
            a(f"ds_write_b32 v2, v{VAP+i} offset:{base+(8*(i//4)+i%4)*256}")
        a(f"s_branch P2_DW2_{base}")
        a.lab(f"P2_DW1_{base}")
        for i in range(8):
            a(f"ds_write_b32 v2, v{VAP+i} offset:{base+(8*(i//4)+i%4)*256}")
        a("s_mov_b32 exec_hi, 0")
        for i in (8, 9):
            a(f"ds_write_b32 v2, v{VAP+i} offset:{base+(8*(i//4)+i%4)*256}")
        a("s_mov_b64 exec, -1")
        a.lab(f"P2_DW2_{base}")

    for i in range(16):
        a(f"v_mul_f32 v{VAP+i}, {NLOG2E:#x}, v{VAP+i}")
    a(f"v_max3_f32 v64, abs(v{VAP}), abs(v{VAP+1}), abs(v{VAP+2})")
    for i in range(3, 15, 2):
        a(f"v_max3_f32 v64, abs(v{VAP+i}), abs(v{VAP+i+1}), v64")
    a(f"""
    v_max_f32 v64, abs(v{VAP+15}), v64
    v_mov_b32 v65, 0x42700000
    v_cmp_lt_f32 s[10:11], v65, v64
    """)
    for i in range(0, 16, 2):
        a(f"""
        v_cmp_u_f32 vcc, v{VAP+i}, v{VAP+i+1}
        s_or_b64 s[10:11], s[10:11], vcc
        """)
    a(f"""
    s_cmp_eq_u64 s[10:11], 0
    s_cbranch_scc1 P2_EA_W
    v_mov_b32 v65, 2
    ds_or_b32 v41, v65 offset:{L_FLAG}
    s_branch P2_EA_W
    """)
    a.lab("P2_HU")
    a(f"v_add_u32 v2, {L_HU}, v2")
    for i in range(16):
        a(f"v_cvt_pk_bf16_f32 v{VAP+i}, v{VAP+i}, v{VAP+i}")
    for i in range(16):
        a(f"v_and_b32 v{VAP+i}, 0xffff0000, v{VAP+i}")
    dwrites(0)
    a.lab("P2_EA_W")
    a(f"""
    v_lshlrev_b32 v64, 4, v1
    v_add_u32 v64, {L_ACC}, v64
    """)
    for f in range(4, 18):
        a(f"ds_read_b128 {wfrag(f)}, v64 offset:{1024*f}")
    a(f"""
    s_waitcnt lgkmcnt(0)
    s_barrier
    ds_read_b32 v65, v41 offset:{L_FLAG}
    s_waitcnt lgkmcnt(0)
    v_readfirstlane_b32 s15, v65
    s_lshr_b32 s15, s15, 1
    s_bitcmp1_b32 s3, 1
    s_cbranch_scc1 P2_EA3
    s_cmp_lg_u32 s15, 0
    s_cbranch_scc1 P2_EA2_W
    """)
    for k in range(16):
        a(f"v_exp_f32 v{VAP+k}, v{VAP+k}")
    a("s_nop 0")
    a.lab("P2_EA2_W")
    dwrites(L_EA)
    a.lab("P2_EA3")
    for f in range(4):
        a(f"ds_read_b128 {wfrag(f)}, v64 offset:{1024*f}")
    a("s_mov_b32 s25, 1")
    a.lab("P2_PREP_DONE")
    a(f"""
    s_waitcnt lgkmcnt(0)
    s_barrier
    """)
    a.stamp3(14)
    a(f"""
    s_cmp_eq_u32 s21, 0
    s_cbranch_scc1 P2_MAIN_DONE
    """)
    gen_fill2(a)
    a.stamp(14)
    if OPT["stamp"] == "4":
        a("s_mov_b32 s70, 0\ns_mov_b32 s72, 0\ns_mov_b32 s74, 0\ns_memtime s[76:77]\ns_mov_b32 s80, s21")
    a(f"""
    s_cmp_lg_u32 s15, 0
    s_cbranch_scc1 P2_LOOPS
    """)
    gen_loop(a, False, "F")
    gen_loop(a, True, "S")
    a.lab("P2_FLUSH")
    for g in range(4):
        a(f"ds_write_b32 v{V_G+g}, v{V_ACC[1]+g} offset:{L_ACC+4}")
    a.lab("P2_MAIN_DONE")
    if OPT["stamp"] == "4":
        a("s_memtime s[78:79]")
    a.stamp(6)
    if OPT["stamp"] == "1":
        a("s_memtime s[84:85]\ns_getreg_b32 s88, hwreg(HW_REG_HW_ID)\ns_getreg_b32 s90, hwreg(HW_REG_XCC_ID)")
    a(f"""
    s_waitcnt vmcnt(0) lgkmcnt(0)
    s_barrier
    """)
    a.stamp(7)
    for h in range(2):
        a(f"""
        v_and_b32 v24, 0xff, v{7+h}
        v_and_b32 v25, 0xff00, v{7+h}
        v_add_u32 v25, v25, v3
        v_add_u32 v25, {L_ACC+8192*h}, v25
        """)
        a.lab(f"P2_FOLD{h}")
        a(f"""
        v_cmpx_lt_u32 vcc, 0, v24
        s_cbranch_execz P2_FOLD_DONE{h}
        ds_read_b128 v[32:35], v25
        v_add_u32 v24, -1, v24
        v_add_u32 v25, 0x100, v25
        s_waitcnt lgkmcnt(0)
        v_add_f32 v{V_RUN+4*h}, v{V_RUN+4*h}, v32
        v_add_f32 v{V_RUN+4*h+1}, v{V_RUN+4*h+1}, v33
        v_add_f32 v{V_RUN+4*h+2}, v{V_RUN+4*h+2}, v34
        v_add_f32 v{V_RUN+4*h+3}, v{V_RUN+4*h+3}, v35
        s_branch P2_FOLD{h}
        """)
        a.lab(f"P2_FOLD_DONE{h}")
        a("s_mov_b64 exec, -1")
    a(f"""
    s_add_u32 s23, s23, {512*JS}
    s_cmp_lt_u32 s23, s24
    s_cbranch_scc1 P2_ROUND
    v_lshrrev_b32 v5, 4, v0
    v_and_b32 v6, 15, v0
    v_lshlrev_b32 v5, 7, v5
    v_lshl_add_u32 v5, v6, 2, v5
    v_add_u32 v6, 0x1000, v5
    """)
    for h in range(2):
        R = V_RUN + 4 * h
        a(f"""
        v_add_u32 v24, {L_HU+8192*h}, v3
        ds_read_b128 v[32:35], v24
        v_cvt_pk_bf16_f32 v36, v{R}, v{R+2}
        v_cvt_pk_bf16_f32 v37, v{R+1}, v{R+3}
        v_lshlrev_b32 v28, 16, v36
        v_and_b32 v30, 0xffff0000, v36
        v_lshlrev_b32 v29, 16, v37
        v_and_b32 v31, 0xffff0000, v37
        s_waitcnt lgkmcnt(0)
        v_add_f32 v28, v28, v32
        v_add_f32 v29, v29, v33
        v_add_f32 v30, v30, v34
        v_add_f32 v31, v31, v35
        v_cvt_pk_bf16_f32 v36, v28, v30
        v_cvt_pk_bf16_f32 v37, v29, v31
        v_lshlrev_b32 v28, 16, v36
        v_and_b32 v30, 0xffff0000, v36
        v_lshlrev_b32 v29, 16, v37
        v_and_b32 v31, 0xffff0000, v37
        """)
        for k in range(4):
            a(f"v_mul_f32 v{32+k}, {NLOG2E:#x}, v{28+k}")
        for k in range(4):
            a(f"v_exp_f32 v{32+k}, v{32+k}")
        for k in range(4):
            a(f"v_add_f32 v{32+k}, 1.0, v{32+k}")
        for k in range(4):
            a(f"v_rcp_f32 v{32+k}, v{32+k}")
        for k in range(4):
            a(f"v_mul_f32 v{28+k}, v{28+k}, v{32+k}")
        a(f"""
        v_cvt_pk_bf16_f32 v{38+2*h}, v28, v30
        v_cvt_pk_bf16_f32 v{39+2*h}, v29, v31
        buffer_store_dword v{38+2*h}, v{5+h}, s[44:47], 0 offen
        buffer_store_dword v{39+2*h}, v{5+h}, s[44:47], 0 offen offset:64
        """)
    a.stamp(8)
    a.stamp_flush(15, 40, 8, DBG2_OFF)
    a.lab("P2_END")
    a("s_endpgm")
    return a.text()


HEAD = open("standalone__edge_featured_mpnn_egc__graph.s.ref").read().split("; Override launch")[0]


def kd(name, vgpr, sgpr):
    acc = (vgpr + 3) // 4 * 4
    return f""".amdhsa_kernel {name}
  .amdhsa_next_free_vgpr {vgpr}
  .amdhsa_next_free_sgpr {sgpr}
  .amdhsa_accum_offset {acc}
  .amdhsa_group_segment_fixed_size 0
  .amdhsa_kernarg_size 80
  .amdhsa_user_sgpr_count 2
  .amdhsa_user_sgpr_kernarg_segment_ptr 1
  .amdhsa_system_sgpr_workgroup_id_x 1
.end_amdhsa_kernel
"""


def main():
    out = HEAD
    out += f"; @launch kernel=p1_kernel grid=({NCH},1,1) block=(704,1,1) lds={P1_LDS}\n"
    out += f"; @launch kernel=p2_kernel grid=({NB},1,1) block=(512,1,1) lds={P2_LDS}\n"
    out += '.amdgcn_target "amdgcn-amd-amdhsa--gfx950"\n.text\n'
    out += ".globl p1_kernel\n.p2align 8\n.type p1_kernel,@function\n" + gen_p1()
    out += ".globl p2_kernel\n.p2align 8\n.type p2_kernel,@function\n" + gen_p2()
    out += '.section .rodata,"a"\n.p2align 6\n' + kd("p1_kernel", 64, 100) + ".p2align 6\n" + kd("p2_kernel", 256, 100)
    open(sys.argv[1], "w").write(out)


main()
```

```python
import sys

N = 12500; E = 800000
NCH = 320; CH = 2500
NK = NCH // 64
TROW = NCH * 128
NB = 256; NPB = 49; MUL = 21400
SUBN = 16
SLOTS = 4096
JS = 7
NLOG2E = 0xBFB8AA3B

T_OFF = 0x0
ENT_OFF = 0xA00000
HDR_OFF = 0xE00000
WF_OFF = 0xE80000
DBG1_OFF = 0x2C00000
DBG2_OFF = 0x2D00000
WS_SIZE = 0x3000000
NFRAG = 34

OPT = dict(p1_store="", p1_tstore="", p1_ld="nt", abl="", stamp="", prio_hi="1", prio_lo="0", xpf="0",
           p1_sched="[[0,1],[2,3],[4,5],[6]]", bunch="1", ne="4", e_pol="", epf1="0", epf2="0", epf_pol="", cpf="0")
for a_ in sys.argv[2:]:
    k_, v_ = a_.split("=")
    OPT[k_] = v_


class A:
    def __init__(self):
        self.l = []

    def __call__(self, s):
        for x in s.strip().split("\n"):
            self.l.append("    " + x.strip())

    def lab(self, s):
        self.l.append(s + ":")

    def srd(self, d, lo, hi, nrec, add=None):
        if add is None:
            self(f"s_mov_b32 s{d}, s{lo}\ns_mov_b32 s{d+1}, s{hi}")
        else:
            self(f"s_add_u32 s{d}, s{lo}, {add}\ns_addc_u32 s{d+1}, s{hi}, 0")
        self(f"s_mov_b32 s{d+2}, {nrec}\ns_mov_b32 s{d+3}, 0x20000")

    def wave_scan(self, v, full=True):
        for sh in (1, 2, 4, 8):
            self("s_nop 1")
            self(f"v_add_u32_dpp v{v}, v{v}, v{v} row_shr:{sh} row_mask:0xf bank_mask:0xf bound_ctrl:0")
        if full:
            self("s_nop 1")
            self(f"v_add_u32_dpp v{v}, v{v}, v{v} row_bcast:15 row_mask:0xa bank_mask:0xf")
            self("s_nop 1")
            self(f"v_add_u32_dpp v{v}, v{v}, v{v} row_bcast:31 row_mask:0xc bank_mask:0xf")

    def stamp(self, k):
        if OPT["stamp"] == "1":
            self(f"s_memrealtime s[{64+2*k}:{65+2*k}]")

    def stamp3(self, k):
        if OPT["stamp"] == "3":
            self(f"s_memtime s[{64+2*k}:{65+2*k}]")

    def stamp_flush(self, n, srd, nw, base):
        if not OPT["stamp"]:
            return
        self(f"""
        s_waitcnt lgkmcnt(0)
        s_mov_b64 exec, -1
        s_mul_i32 s10, s2, {nw}
        s_add_u32 s10, s10, s3
        s_lshl_b32 s10, s10, 6
        s_add_u32 s10, s10, {base}
        v_mov_b32 v1, 0
        """)
        for k in range(n):
            self(f"v_mov_b32 v2, s{64+2*k}\nbuffer_store_dword v2, v1, s[{srd}:{srd+3}], s10 offen offset:{4*k}\ns_nop 1")

    def text(self):
        return "\n".join(self.l) + "\n"


def sub_dl(j):
    return (1 if j < 10 else 8) + (j % 10) // 5, 6 * (j % 5)


def sub_src(j):
    return (3 if j < 10 else 10) + (j % 10) // 2, 16 * (j % 2)


P1_HIST = 0; P1_START = 1024; P1_ENT = 2048
P1_LDS = P1_ENT + CH * 4 + 256


def gen_p1():
    a = A()
    ST = OPT["p1_store"]; TST = OPT["p1_tstore"]; LD = OPT["p1_ld"]
    a.lab("p1_kernel")
    a(f"""
    s_cmp_ge_u32 s2, {NCH}
    s_cbranch_scc1 P1_END
    """)
    a.stamp(0)
    a(f"""
    s_load_dwordx16 s[16:31], s[0:1], 0
    s_load_dwordx4 s[32:35], s[0:1], 64
    v_and_b32 v1, 63, v0
    v_lshrrev_b32 v5, 6, v0
    v_lshlrev_b32 v2, 4, v0
    v_lshlrev_b32 v3, 2, v0
    v_readfirstlane_b32 s3, v5
    v_lshlrev_b32 v4, 4, v1
    v_mov_b32 v6, 0
    v_and_b32 v7, 0x3fc, v3
    ds_write_b32 v7, v6 offset:{P1_HIST}
    s_mul_i32 s4, s2, {CH*4}
    v_and_b32 v24, 31, v1
    v_lshrrev_b32 v25, 5, v1
    s_waitcnt lgkmcnt(0)
    """)
    a.srd(44, 22, 23, CH * 4, "s4")
    a.srd(40, 20, 21, CH * 4, "s4")
    a(f"""
    buffer_load_dwordx4 v[8:11], v2, s[44:47], 0 offen {LD}
    buffer_load_dwordx4 v[12:15], v2, s[40:43], 0 offen {LD}
    """)
    if OPT["epf1"] != "0":
        nl = 625 * int(OPT["epf1"]) // 8
        a(f"s_mul_i32 s5, s2, {CH*32}")
        a.srd(36, 18, 19, nl * 128, "s5")
        a(f"v_lshlrev_b32 v60, 7, v0\nbuffer_load_dword v61, v60, s[36:39], 0 offen {OPT['epf_pol']}")
    a.srd(48, 34, 35, WS_SIZE)
    a.srd(56, 28, 29, 2048 - 64)
    a(f"""
    v_lshlrev_b32 v26, 10, v25
    v_lshl_add_u32 v26, v24, 1, v26
    s_mov_b32 s14, 1.0
    s_cmp_lg_u32 s3, 10
    s_cbranch_scc1 P1_FL_DONE
    s_cmp_ge_u32 s2, {NFRAG}
    s_cbranch_scc1 P1_FL_DONE
    s_sub_u32 s5, s2, 2
    s_cmp_ge_u32 s2, 18
    s_cselect_b32 s5, s5, s2
    s_and_b32 s6, s5, 3
    s_lshl_b32 s6, s6, 11
    s_lshr_b32 s7, s5, 2
    s_and_b32 s7, s7, 1
    s_lshl_b32 s7, s7, 6
    s_add_u32 s6, s6, s7
    s_cmp_ge_u32 s2, 8
    s_cbranch_scc1 P1_FL1
    s_add_u32 s6, s6, 8192
    s_mov_b32 s14, {NLOG2E}
    s_branch P1_FL3
    """)
    a.lab("P1_FL1")
    a(f"""
    s_cmp_ge_u32 s2, 16
    s_cbranch_scc1 P1_FL2
    s_mov_b32 s56, s26
    s_mov_b32 s57, s27
    s_branch P1_FL3
    """)
    a.lab("P1_FL2")
    a(f"""
    s_cmp_ge_u32 s2, 26
    s_cselect_b32 s56, s24, s28
    s_cselect_b32 s57, s25, s29
    s_cmp_ge_u32 s2, 18
    s_cbranch_scc1 P1_FL3
    s_mov_b32 s14, {NLOG2E}
    s_and_b32 s6, s2, 1
    s_lshl_b32 s6, s6, 6
    s_add_u32 s6, s6, 16384
    """)
    a.lab("P1_FL3")
    a(f"""
    s_add_u32 s56, s56, s6
    s_addc_u32 s57, s57, 0
    """)
    for jj in range(8):
        a(f"buffer_load_ushort v{40+jj}, v26, s[56:59], 0 offen offset:{jj*128}")
    a("s_waitcnt vmcnt(0)")
    for jj in range(8):
        a(f"v_lshlrev_b32 v{40+jj}, 16, v{40+jj}")
    for jj in range(8):
        a(f"v_mul_f32 v{40+jj}, s14, v{40+jj}")
    for q in range(4):
        a(f"v_cvt_pk_bf16_f32 v{48+q}, v{40+2*q}, v{40+2*q+1}")
    a(f"""
    s_lshl_b32 s6, s2, 10
    s_add_u32 s6, s6, {WF_OFF}
    buffer_store_dwordx4 v[48:51], v4, s[48:51], s6 offen
    s_endpgm
    """)
    a.lab("P1_FL_DONE")
    if OPT["cpf"] != "0":
        a(f"""
        s_cmp_lg_u32 s3, 10
        s_cbranch_scc1 P1_CPF_DONE
        s_cmp_ge_u32 s2, {64+int(OPT["cpf"])}
        s_cbranch_scc1 P1_END
        s_getpc_b64 s[52:53]
        """)
        a.lab("P1_PC")
        a(f"""
        s_add_u32 s52, s52, p2_kernel-P1_PC
        s_addc_u32 s53, s53, 0
        s_mov_b32 s54, P2_END-p2_kernel
        s_mov_b32 s55, 0x20000
        v_lshlrev_b32 v40, 6, v1
        """)
        for k in range(5):
            a(f"buffer_load_dword v41, v40, s[52:55], 0 offen\nv_add_u32 v40, 0x1000, v40")
        a("s_endpgm")
        a.lab("P1_CPF_DONE")
    a(f"""
    s_cmp_ge_u32 s3, 10
    s_cbranch_scc1 P1_END
    v_cmp_gt_u32 vcc, {CH//4}, v0
    s_mov_b64 s[8:9], vcc
    v_mov_b32 v30, 1
    s_barrier
    s_waitcnt vmcnt({2 if OPT["epf1"] != "0" else 1})
    """)
    a.stamp(1)
    a("s_mov_b64 exec, s[8:9]")
    for e in range(4):
        a(f"""
        v_mul_u32_u24 v{16+e}, {MUL}, v{8+e}
        v_lshrrev_b32 v31, 20, v{16+e}
        v_lshlrev_b32 v{16+e}, 2, v31
        ds_add_rtn_u32 v{20+e}, v{16+e}, v30 offset:{P1_HIST}
        v_mul_u32_u24 v31, {NPB}, v31
        v_sub_u32 v{8+e}, v{8+e}, v31
        """)
    a("s_mov_b64 exec, -1\ns_waitcnt lgkmcnt(0)")
    a.stamp(2)
    a("s_barrier")
    a.stamp(3)
    a(f"""
    s_cmp_lg_u32 s3, 0
    s_cbranch_scc1 P1_SC_DONE
    ds_read_b128 v[32:35], v4 offset:{P1_HIST}
    s_waitcnt lgkmcnt(0)
    v_add_u32 v36, v32, v33
    v_add_u32 v37, v36, v34
    v_add_u32 v38, v37, v35
    v_mov_b32 v39, v38
    """)
    a.wave_scan(39)
    a(f"""
    v_sub_u32 v40, v39, v38
    v_add_u32 v41, v32, v40
    v_add_u32 v42, v36, v40
    v_add_u32 v43, v37, v40
    ds_write_b128 v4, v[40:43] offset:{P1_START}
    v_lshl_or_b32 v44, v32, 16, v40
    v_lshl_or_b32 v45, v33, 16, v41
    v_lshl_or_b32 v46, v34, 16, v42
    v_lshl_or_b32 v47, v35, 16, v43
    s_lshl_b32 s6, s2, 10
    s_add_u32 s6, s6, {HDR_OFF}
    buffer_store_dwordx4 v[44:47], v4, s[48:51], s6 offen
    """)
    a.lab("P1_SC_DONE")
    a(f"""
    s_waitcnt vmcnt({2 if OPT["epf1"] != "0" else 1})
    s_cmp_eq_u32 s3, 0
    s_cbranch_scc1 P1_W0
    s_waitcnt vmcnt({1 if OPT["epf1"] != "0" else 0})
    """)
    a.lab("P1_W0")
    for e in range(4):
        a(f"""
        v_lshl_or_b32 v{36+e}, v{8+e}, 14, v{12+e}
        v_add_u32 v31, {e}, v3
        v_lshl_or_b32 v{36+e}, v31, 20, v{36+e}
        """)
    a(f"""
    v_lshrrev_b32 v7, 3, v0
    v_lshlrev_b32 v6, 2, v7
    v_and_b32 v27, 7, v0
    s_waitcnt lgkmcnt(0)
    s_barrier
    """)
    a.stamp(4)
    for r in range(4):
        a(f"""
        ds_read_b32 v{40+r}, v6 offset:{P1_START+320*r}
        ds_read_b32 v{44+r}, v6 offset:{P1_HIST+320*r}
        """)
    a("s_mov_b64 exec, s[8:9]")
    for e in range(4):
        a(f"ds_read_b32 v{32+e}, v{16+e} offset:{P1_START}")
    for e in range(4):
        a(f"""
        s_waitcnt lgkmcnt(3)
        v_add_lshl_u32 v{32+e}, v{32+e}, v{20+e}, 2
        ds_write_b32 v{32+e}, v{36+e} offset:{P1_ENT}
        """)
    a("s_mov_b64 exec, -1")
    for r in range(4):
        a(f"""
        v_add_lshl_u32 v{40+r}, v{40+r}, v27, 2
        v_add_u32 v{40+r}, {P1_ENT}, v{40+r}
        v_sub_u32 v{48+r}, v{44+r}, v27
        """)
    a(f"""
    s_lshl_b32 s6, s2, 7
    s_add_u32 s6, s6, {T_OFF}
    s_add_u32 s10, s4, {ENT_OFF}
    v_mul_u32_u24 v28, {TROW}, v7
    v_lshl_or_b32 v28, v27, 4, v28
    s_waitcnt lgkmcnt(0)
    """)
    a.stamp(5)
    a("s_barrier")
    a.stamp(6)
    for r in range(3):
        a(f"""
        ds_read2_b32 v[{8+4*r}:{9+4*r}], v{40+r} offset0:0 offset1:8
        ds_read2_b32 v[{10+4*r}:{11+4*r}], v{40+r} offset0:16 offset1:24
        """)
    a(f"""
    ds_read_b128 v[32:35], v2 offset:{P1_ENT}
    s_cmp_ge_u32 s3, 2
    s_cbranch_scc1 P1_R2SKIP
    ds_read2_b32 v[20:21], v43 offset0:0 offset1:8
    ds_read2_b32 v[22:23], v43 offset0:16 offset1:24
    """)
    a.lab("P1_R2SKIP")
    for r in range(4):
        if r == 3:
            a(f"""
            s_mov_b64 exec, s[8:9]
            buffer_store_dwordx4 v[32:35], v2, s[48:51], s10 offen {ST}
            s_mov_b64 exec, -1
            s_cmp_ge_u32 s3, 2
            s_cbranch_scc1 P1_FIN
            """)
        for k in range(4):
            a(f"v_cmp_lt_i32 s[{16+2*k}:{17+2*k}], {8*k}, v{48+r}")
        a(f"v_cmp_lt_u32 vcc, 32, v{44+r}")
        a("s_waitcnt lgkmcnt(0)" if r == 0 else "s_nop 0")
        for k in range(4):
            a(f"v_cndmask_b32 v{8+4*r+k}, -1, v{8+4*r+k}, s[{16+2*k}:{17+2*k}]")
        a(f"""
        v_cndmask_b32 v{8+4*r}, v{8+4*r}, -2, vcc
        buffer_store_dwordx4 v[{8+4*r}:{11+4*r}], v28, s[48:51], s6 offen {TST}
        s_add_u32 s6, s6, {80*TROW}
        """)
    a.lab("P1_FIN")
    a.stamp(7)
    if OPT["stamp"]:
        a("s_waitcnt vmcnt(0)")
    a.stamp(8)
    a.stamp_flush(9, 48, 16, DBG1_OFF)
    a.lab("P1_END")
    a("s_endpgm")
    return a.text()


L_NCNT = 0; L_FLAG = 256; L_WT = 272
L_SRC = 512; L_POS = L_SRC + 16384; L_GT = L_POS + 16384; L_GM = L_GT + 4096; L_EA = L_GM + 4096
NROW = 50
L_ACC = L_EA + NROW * 256
L_XB = L_ACC + 18432
L_HU = L_XB + 65536
L_PX = L_HU + NROW * 256
P2_LDS = L_PX + 8192
assert P2_LDS <= 163840 and L_ACC + 4 < 65536 and (16 + NROW) * 256 <= 18432
SENT = 0x40000000

V_W = 184
V_Z0 = 64; V_H0 = 80; V_Z1 = 96; V_H1 = 112
V_XA = (128, 28); V_EA = (144, 44, 24, 56)
V_G = 148; V_GR = 152; V_EV = 156
V_SL = 164
V_ACC = (168, 52)
V_XR = 172
V_PS = 176
V_AS = 177; V_AP = 178; V_AG = 179
V_N8 = 181; V_H16 = 182; V_N8H = 183
V_K = (180, 10, 11, 12)
V_GE = 60
V_GM = 48
V_RUN = 16
NE = int(OPT["ne"])


def wfrag(f):
    return f"v[{V_W+4*f}:{V_W+4*f+3}]"


def mf_list(u, Z, H, ph):
    xa = V_XA[ph % 2]; ea = V_EA[ph % NE]
    l = [f"v_mfma_f32_32x32x16_bf16 v[{Z}:{Z+15}], v[{ea}:{ea+3}], {wfrag(16+u)}, 0"]
    for t in range(4):
        l.append(f"v_mfma_f32_32x32x16_bf16 v[{Z}:{Z+15}], v[{xa+4*t}:{xa+4*t+3}], {wfrag(u*4+t)}, v[{Z}:{Z+15}]")
    for t in range(4):
        c = "0" if t == 0 else f"v[{H}:{H+15}]"
        l.append(f"v_mfma_f32_32x32x16_bf16 v[{H}:{H+15}], v[{xa+4*t}:{xa+4*t+3}], {wfrag(8+u*4+t)}, {c}")
    return l


def body(ph, safe):
    out = []
    par = ph % 2
    npar = 1 - par
    PH = OPT["prio_hi"]; PL = OPT["prio_lo"]
    cnt = [0]
    bunch = OPT["bunch"] == "1"

    def lstamp():
        if OPT["stamp"] == "2" and ph == 1:
            out.append(f"s_memtime s[{64+2*cnt[0]}:{65+2*cnt[0]}]")
            cnt[0] += 1

    def trun(instrs, mf, fill):
        lstamp()
        if PH != PL:
            out.append(f"s_setprio {PH}")
        mf = list(mf)
        for k, x in enumerate(instrs):
            out.append(x)
            if k % 3 == 0 and mf:
                out.append(mf.pop(0))
            elif fill:
                if bunch:
                    out.extend(fill); del fill[:]
                else:
                    out.append(fill.pop(0))
        assert not mf
        if PH != PL:
            out.append(f"s_setprio {PL}")

    def half(u, Z, H, mf, fill, preF, postF, fillR, preM, postM):
        ev = lambda i: V_EV + 2 * (i // 4) + u
        if safe:
            if u == 0:
                out.append(("W", "ev3"))
            out.extend(f"v_add_f32 v{Z+i}, v{ev(i)}, v{Z+i}" for i in range(16))
        trun([f"v_exp_f32 v{Z+i}, v{Z+i}" for i in range(16)], mf[:5], fill)
        lstamp()
        out.extend(preF)
        if safe:
            out.extend(f"v_add_f32 v{Z+i}, 1.0, v{Z+i}" for i in range(16))
        else:
            out.extend(f"v_fma_f32 v{Z+i}, v{Z+i}, v{ev(i)}, 1.0" for i in range(16))
        out.extend(postF)
        fill.extend(fillR)
        trun([f"v_rcp_f32 v{Z+i}, v{Z+i}" for i in range(16)], mf[5:], fill)
        assert not fill, fill
        lstamp()
        out.extend(preM)
        A_ = V_ACC[u]
        for g in range(4):
            out.append(f"v_and_b32 v{A_+g}, v{A_+(g+3)%4}, v{V_GM+g}")
            out.extend(f"v_fmac_f32 v{A_+g}, v{Z+4*g+k}, v{H+4*g+k}" for k in range(4))
        out.extend(postM)

    def accw(u):
        return [("L", f"ds_write_b32 v{V_G+g}, v{V_ACC[u]+g} offset:{L_ACC+4*u}", None) for g in range(4)]

    xa = V_XA[npar]
    fill = [f"s_cmp_gt_u32 s21, {NE}", "s_cselect_b32 s58, s18, 0",
            f"buffer_load_dwordx4 v[{V_EA[ph]}:{V_EA[ph]+3}], v{V_PS}, s[56:59], 0 offen {OPT['e_pol']}"] + accw(1)
    fill.append(("L", f"ds_read_b128 v[{V_GM}:{V_GM+3}], v{V_AG} offset:{L_GM+16*ph}", "gm"))
    preF = [f"v_add_u32 v{V_G+g}, v{V_GR+g}, v{V_N8H}" for g in range(4)] + ([] if safe else [("W", "ev3")])
    fillR = [f"s_waitcnt vmcnt({5 if NE == 2 else 6})"]
    for t in range(4):
        fillR.append(("L", f"ds_read_b128 v[{xa+4*t}:{xa+4*t+3}], v{V_XR+t} offset:{npar*4096}", f"xa{t}"))
    fillR += [("L", f"ds_read_b128 v[{V_SL}:{V_SL+3}], v{V_AS} offset:{L_SRC+64*(3+ph)}", "sl"),
              ("L", f"ds_read_b128 v[{V_GR}:{V_GR+3}], v{V_AG} offset:{L_GT+16*(1+ph)}", "gr"),
              ("L", f"ds_read_b32 v{V_PS}, v{V_AP} offset:{L_POS+64*(NE+1+ph)}", "pos"),
              "s_cmp_gt_u32 s21, 3", "s_cselect_b32 s38, s19, 0", f"s_add_u32 m0, s20, {npar*4096}"]
    postM = [("W", "sl")] + [f"v_or_b32 v{V_SL+j}, v{V_SL+j}, v{V_K[j]}" for j in range(4)]
    half(0, V_Z0, V_H0, mf_list(1, V_Z1, V_H1, ph), fill, preF, [], fillR, [("W", "gm")], postM)
    fill = []
    aw = accw(0)
    for j in range(4):
        fill.append(f"buffer_load_dwordx4 v{V_SL+j}, s[36:39], 0 offen lds")
        if j < 3:
            fill.append(f"s_add_u32 m0, s20, {npar*4096+(j+1)*1024}")
        fill.append(aw[j])
    postF = [("W", "pos")] + [f"v_add_u32 v{V_GE+g}, v{V_GR+g}, v{V_N8}" for g in range(4)]
    postF.append(f"v_add_u32 v{V_PS}, v{V_PS}, v{V_H16}")
    fillR = [("L", f"ds_read_b64 v[{V_EV+2*g}:{V_EV+2*g+1}], v{V_GE+g} offset:{L_EA}", f"ev{g}") for g in range(4)]
    half(1, V_Z1, V_H1, mf_list(0, V_Z0, V_H0, ph + 1), fill, [], postF, fillR, [], [])
    lstamp()
    if "nomfma" in OPT["abl"]:
        out = [x for x in out if not (isinstance(x, str) and "mfma" in x)]
    if "novalu" in OPT["abl"]:
        out = [x for x in out if not (isinstance(x, str) and any(k in x for k in ("v_exp", "v_rcp", "v_fma", "v_fmac")))]
    return out


def instrument(items):
    out = []
    for x in items:
        acc = None
        if isinstance(x, str):
            if x.startswith("s_waitcnt vmcnt"): acc = 70
            elif x.startswith("buffer_load") and "lds" not in x: acc = 71
            elif x.startswith("buffer_load"): acc = 72
        if acc:
            out += ["s_memtime s[64:65]", "s_waitcnt lgkmcnt(0)", x, "s_memtime s[66:67]", "s_waitcnt lgkmcnt(0)",
                    "s_sub_u32 s68, s66, s64", f"s_add_u32 s{acc+2*(acc-70)+4-0 if False else {70:70,71:72,72:74}[acc]}, s{ {70:70,71:72,72:74}[acc] }, s68"]
        else:
            out.append(x)
    return out


def resolve(prev, cur):
    seq = prev + cur
    res = []
    for i, x in enumerate(seq):
        if i < len(prev):
            continue
        if isinstance(x, str):
            res.append(x)
        elif x[0] == "L":
            res.append(x[1])
        else:
            n = 0
            k = i - 1
            while not (isinstance(seq[k], tuple) and seq[k][0] == "L" and seq[k][2] == x[1]):
                if isinstance(seq[k], tuple) and seq[k][0] == "L":
                    n += 1
                k -= 1
                assert k >= 0, x
            res.append(f"s_waitcnt lgkmcnt({min(n, 15)})")
    return res


def gen_fill1(a):
    EP = OPT['e_pol']
    a(f"ds_read_b128 v[{V_SL}:{V_SL+3}], v{V_AS} offset:{L_SRC}")
    for k in range(NE):
        a(f"ds_read_b32 v{V_GE+k}, v{V_AP} offset:{L_POS+64*k}")
    a(f"""
    ds_read_b128 v[{V_ACC[0]}:{V_ACC[0]+3}], v{V_AS} offset:{L_SRC+64}
    ds_read_b32 v{V_PS}, v{V_AP} offset:{L_POS+64*NE}
    s_waitcnt lgkmcnt(2)
    """)

    def eld(k):
        a(f"""
        s_cmp_gt_u32 s21, {k}
        s_cselect_b32 s58, s18, 0
        v_add_u32 v{V_GE+k}, v{V_GE+k}, v{V_H16}
        buffer_load_dwordx4 v[{V_EA[k]}:{V_EA[k]+3}], v{V_GE+k}, s[56:59], 0 offen {EP}
        """)
    eld(0)
    xld(a, 0, V_SL, 0)
    eld(1)
    if NE == 4:
        eld(2)
    a("s_waitcnt lgkmcnt(0)")
    xld(a, 1, V_ACC[0], 1)
    if NE == 4:
        eld(3)
    a(f"""
    v_add_u32 v{V_PS}, v{V_PS}, v{V_H16}
    ds_read_b128 v[{V_SL}:{V_SL+3}], v{V_AS} offset:{L_SRC+128}
    """)


def xld(a, b, vb, k):
    a(f"s_cmp_gt_u32 s21, {k}\ns_cselect_b32 s38, s19, 0")
    for j in range(4):
        a(f"""
        s_add_u32 m0, s20, {b*4096+j*1024}
        v_or_b32 v{vb+j}, v{vb+j}, v{V_K[j]}
        buffer_load_dwordx4 v{vb+j}, s[36:39], 0 offen lds
        """)


def gen_fill2(a):
    xa = V_XA[0]
    a(f"""
    ds_read_b128 v[{V_GR}:{V_GR+3}], v{V_AG} offset:{L_GT}
    v_mov_b32 v{V_ACC[0]+3}, 0
    v_mov_b32 v{V_ACC[1]+3}, 0
    s_waitcnt lgkmcnt(0)
    """)
    for g in range(4):
        a(f"""
        v_add_u32 v{V_GE+g}, v{V_GR+g}, v{V_N8}
        v_add_u32 v{V_G+g}, v{V_GR+g}, v{V_N8H}
        ds_read_b64 v[{V_EV+2*g}:{V_EV+2*g+1}], v{V_GE+g} offset:{L_EA}
        """)
    a(f"s_waitcnt vmcnt({5 if NE == 2 else 7})")
    for t in range(4):
        a(f"ds_read_b128 v[{xa+4*t}:{xa+4*t+3}], v{V_XR+t}")
    a("s_waitcnt lgkmcnt(0)")
    xld(a, 0, V_SL, 2)
    for m in mf_list(0, V_Z0, V_H0, 0):
        a(m)
    a("s_nop 7\ns_nop 7")


def gen_loop(a, safe, tag):
    bs = [body(p, safe) for p in range(NE)]
    a.lab(f"P2_LOOP{tag}")
    for p in range(NE):
        rs = resolve(bs[p - 1], bs[p])
        if OPT["stamp"] == "4":
            rs = instrument(rs)
        for x in rs:
            a(x)
        if p < NE - 1:
            a(f"""
            s_sub_u32 s21, s21, 1
            s_cmp_eq_u32 s21, 0
            s_cbranch_scc1 P2_FLUSH
            """)
    a(f"""
    v_add_u32 v{V_AS}, {64*NE}, v{V_AS}
    v_add_u32 v{V_AP}, {64*NE}, v{V_AP}
    v_add_u32 v{V_AG}, {16*NE}, v{V_AG}
    s_sub_u32 s21, s21, 1
    s_cmp_lg_u32 s21, 0
    s_cbranch_scc1 P2_LOOP{tag}
    s_branch P2_FLUSH
    """)


def gen_p2():
    a = A()
    VT = 64
    VP = 84
    VR = 104
    VD = 124
    VE = 144
    VF = 200
    VX = 216
    VAP = 184
    a.lab("p2_kernel")
    a(f"""
    s_cmp_ge_u32 s2, {NB}
    s_cbranch_scc1 P2_END
    """)
    a.stamp(0)
    a.stamp3(0)
    a(f"""
    s_load_dwordx4 s[16:19], s[0:1], 0
    s_load_dwordx2 s[12:13], s[0:1], 56
    s_load_dwordx2 s[34:35], s[0:1], 72
    s_and_b32 s4, s2, 7
    s_lshl_b32 s4, s4, 5
    s_lshr_b32 s5, s2, 3
    s_add_u32 s4, s4, s5
    v_and_b32 v1, 63, v0
    v_lshrrev_b32 v5, 6, v0
    v_lshlrev_b32 v3, 4, v0
    v_lshlrev_b32 v4, 2, v0
    v_readfirstlane_b32 s3, v5
    s_mul_i32 s8, s4, {TROW}
    s_add_u32 s8, s8, {T_OFF}
    s_mul_i32 s6, s4, {NPB*128}
    v_and_b32 v56, 31, v1
    v_lshrrev_b32 v57, 5, v1
    v_and_b32 v58, 7, v1
    v_lshlrev_b32 v59, 2, v57
    v_xor_b32 v58, v58, v59
    v_lshlrev_b32 v{V_K[0]}, 4, v58
    s_waitcnt lgkmcnt(0)
    """)
    a.stamp3(1)
    a.srd(40, 34, 35, WS_SIZE)
    for k in range(NK):
        a(f"buffer_load_dwordx4 v[{VT+4*k}:{VT+4*k+3}], v3, s[40:43], s8 offen\ns_add_u32 s8, s8, 8192")
    a.srd(36, 16, 17, N * 128)
    a.srd(56, 18, 19, E * 32)
    if OPT["epf2"] != "0":
        f1 = 625 * int(OPT["epf1"]) // 8
        a(f"""
        v_add_u32 v60, {f1}, v0
        v_cmp_gt_u32 vcc, 625, v60
        v_lshlrev_b32 v60, 7, v60
        s_mul_i32 s9, s2, {CH*32}
        s_mov_b64 exec, vcc
        buffer_load_dword v61, v60, s[56:59], s9 offen {OPT['epf_pol']}
        s_add_u32 s9, s9, {256*CH*32}
        buffer_load_dword v61, v60, s[56:59], s9 offen {OPT['epf_pol']}
        s_mov_b64 exec, -1
        """)
    if OPT["xpf"] == "2":
        a(f"""
        s_mul_i32 s9, s5, {391*128}
        v_lshlrev_b32 v26, 7, v0
        v_cmp_gt_u32 vcc, 391, v0
        s_mov_b64 exec, vcc
        buffer_load_dword v28, v26, s[36:39], s9 offen
        s_mov_b64 exec, -1
        """)
    a(f"""
    s_add_u32 s44, s12, s6
    s_addc_u32 s45, s13, 0
    s_sub_u32 s46, {N*128}, s6
    s_min_u32 s46, s46, {NPB*128}
    s_mov_b32 s47, 0x20000
    s_mov_b32 s19, {0 if "nox" in OPT["abl"] else N*128}
    s_mov_b32 s18, {0 if "noe" in OPT["abl"] else E*32}
    """)
    NLD = 0
    a.stamp3(2)
    a(f"""
    s_lshl_b32 s20, s3, 13
    s_add_u32 s20, s20, {L_XB}
    v_lshlrev_b32 v{V_N8}, 3, v56
    v_lshlrev_b32 v{V_H16}, 4, v57
    v_lshrrev_b32 v58, 5, v0
    v_lshl_add_u32 v{V_N8H}, v58, 8, v{V_N8}
    v_xor_b32 v{V_K[1]}, 16, v{V_K[0]}
    v_xor_b32 v{V_K[2]}, 32, v{V_K[0]}
    v_xor_b32 v{V_K[3]}, 48, v{V_K[0]}
    v_and_b32 v58, 3, v56
    v_lshrrev_b32 v59, 2, v56
    v_lshl_add_u32 v59, v58, 3, v59
    v_lshlrev_b32 v59, 7, v59
    v_add_u32 v59, s20, v59
    v_lshrrev_b32 v60, 4, v56
    v_lshl_add_u32 v58, v60, 2, v58
    v_xor_b32 v58, v58, v57
    """)
    for t in range(4):
        a(f"""
        v_xor_b32 v60, {2*t}, v58
        v_lshl_add_u32 v{V_XR+t}, v60, 4, v59
        """)
    for k in range(8):
        a(f"v_mov_b32 v{V_RUN+k}, 0")
    a(f"""
    ds_write_b32 v{V_RUN}, v{V_RUN} offset:{L_FLAG}
    s_mov_b32 s23, 0
    s_mov_b32 s24, 0
    s_mov_b32 s25, 0
    s_mov_b32 s15, 0
    """)
    a.lab("P2_ROUND")
    a(f"""
    v_mov_b32 v32, {SENT}
    v_mov_b32 v33, {SENT}
    v_mov_b32 v34, {SENT}
    v_mov_b32 v35, {SENT}
    ds_write_b128 v3, v[32:35] offset:{L_SRC}
    ds_write_b128 v3, v[32:35] offset:{L_SRC+8192}
    ds_write_b128 v3, v[32:35] offset:{L_POS}
    ds_write_b128 v3, v[32:35] offset:{L_POS+8192}
    v_mov_b32 v36, {(NROW-1)*256}
    v_mov_b32 v37, {(NROW-1)*256}
    v_lshlrev_b32 v40, 3, v0
    ds_write_b64 v40, v[36:37] offset:{L_GT}
    v_mov_b32 v38, -1
    v_mov_b32 v39, -1
    ds_write_b64 v40, v[38:39] offset:{L_GM}
    v_mov_b32 v41, 0
    v_and_b32 v42, 0xfc, v4
    ds_write_b32 v42, v41 offset:{L_NCNT}
    v_mov_b32 v43, 1
    s_cmp_lg_u32 s24, 0
    s_cbranch_scc1 P2_SLOW
    """)
    a(f"""
    v_lshrrev_b32 v44, 3, v0
    v_mul_u32_u24 v13, {CH}, v44
    """)
    a.stamp3(3)
    a("s_waitcnt lgkmcnt(0)\ns_barrier")
    a.stamp3(4)
    for k in range(NK):
        a(f"s_waitcnt vmcnt({NK-1-k+(2 if OPT['epf2'] != '0' else 0)+(1 if OPT['xpf'] == '2' else 0)})")
        if k == 0:
            a.stamp(1)
        if k < 4:
            a.stamp3(5 + k)
        a(f"""
        v_cmp_eq_u32 vcc, -2, v{VT+4*k}
        s_cbranch_vccz P2_NOOVF{k}
        ds_or_b32 v41, v43 offset:{L_FLAG}
        s_branch P2_A_LD
        """)
        a.lab(f"P2_NOOVF{k}")
        for pos in range(4):
            j = 4 * k + pos
            a(f"v_cmpx_ne_u32 vcc, -1, v{VT+j}")
            if pos >= 2:
                a(f"s_cbranch_execz P2_A{k}")
            a(f"""
            v_bfe_u32 v{VD+j}, v{VT+j}, 14, 6
            v_lshlrev_b32 v{VD+j}, 2, v{VD+j}
            ds_add_rtn_u32 v{VR+j}, v{VD+j}, v43 offset:{L_NCNT}
            v_lshrrev_b32 v{VP+j}, 20, v{VT+j}
            v_add_lshl_u32 v{VP+j}, v{VP+j}, v13, 5
            v_and_b32 v{VE+j}, 0x3fff, v{VT+j}
            v_lshlrev_b32 v{VE+j}, 7, v{VE+j}
            """)
        a.lab(f"P2_A{k}")
        a(f"""
        s_mov_b64 exec, -1
        v_add_u32 v13, {64*CH}, v13
        """)
    a.lab("P2_A_LD")
    a("s_mov_b64 exec, -1")
    if OPT["xpf"] == "1":
        a(f"""
        s_mul_i32 s9, s5, {391*128}
        v_lshlrev_b32 v26, 7, v0
        v_cmp_gt_u32 vcc, 391, v0
        s_mov_b64 exec, vcc
        buffer_load_dword v28, v26, s[36:39], s9 offen
        s_mov_b64 exec, -1
        """)
    a(f"""
    s_and_b32 s9, s3, 3
    s_lshl_b32 s10, s9, 4
    v_xor_b32 v26, s10, v{V_K[0]}
    v_lshrrev_b32 v27, 3, v1
    v_lshl_add_u32 v26, v27, 9, v26
    s_lshr_b32 s10, s3, 2
    s_lshl_b32 s10, s10, 12
    s_lshl_b32 s11, s9, 7
    s_add_u32 s10, s10, s11
    s_add_u32 s10, s10, s6
    s_lshl_b32 s11, s3, 10
    s_add_u32 m0, s11, {L_PX}
    v_lshlrev_b32 v27, 4, v1
    buffer_load_dwordx4 v26, s[36:39], s10 offen lds
    s_add_u32 m0, s11, {L_ACC}
    s_add_u32 s10, s11, {WF_OFF}
    buffer_load_dwordx4 v27, s[40:43], s10 offen lds
    s_add_u32 m0, s11, {L_ACC+8192}
    s_add_u32 s10, s11, {WF_OFF+8192}
    buffer_load_dwordx4 v27, s[40:43], s10 offen lds
    s_and_b32 s11, s11, 0x400
    s_add_u32 m0, s11, {L_ACC+16384}
    s_add_u32 s10, s11, {WF_OFF+16384}
    buffer_load_dwordx4 v27, s[40:43], s10 offen lds
    s_lshl_b32 s9, s9, 12
    s_add_u32 s9, s9, {WF_OFF+18*1024}
    """)
    for t in range(4):
        a(f"buffer_load_dwordx4 v[{VF+4*t}:{VF+4*t+3}], v27, s[40:43], s9 offen offset:{1024*t}")
    a("s_branch P2_A_DONE")
    L_PREF = L_XB
    a.lab("P2_SLOW")
    a(f"""
    v_add_u32 v44, {L_PREF}, v4
    ds_write_b32 v44, v14
    ds_write_b32 v44, v9 offset:2048
    ds_write_b32 v44, v15 offset:4096
    s_waitcnt lgkmcnt(0)
    s_barrier
    """)
    for j in range(4 * NK):
        a(f"v_mov_b32 v{VT+j}, -1")
    for j in range(JS):
        a(f"""
        s_add_u32 s10, s23, {512*j}
        v_add_u32 v44, s10, v0
        v_cmp_gt_u32 vcc, s24, v44
        s_and_saveexec_b64 s[10:11], vcc
        s_cbranch_execz P2_A_DONE
        v_mov_b32 v45, {L_PREF}
        s_mov_b32 s12, 1024
        """)
        a.lab(f"P2_BS{j}")
        a(f"""
        v_add_u32 v46, s12, v45
        ds_read_b32 v47, v46
        s_waitcnt lgkmcnt(0)
        v_cmp_le_u32 vcc, v47, v44
        s_lshr_b32 s12, s12, 1
        s_cmp_ge_u32 s12, 4
        v_cndmask_b32 v45, v45, v46, vcc
        s_cbranch_scc1 P2_BS{j}
        ds_read_b32 v46, v45
        ds_read_b32 v47, v45 offset:2048
        ds_read_b32 v45, v45 offset:4096
        s_waitcnt lgkmcnt(0)
        v_sub_u32 v46, v44, v46
        v_add_lshl_u32 v46, v47, v46, 2
        s_mov_b32 s12, {ENT_OFF}
        buffer_load_dword v{VT+j}, v46, s[40:43], s12 offen
        s_waitcnt vmcnt(0)
        v_bfe_u32 v{VD+j}, v{VT+j}, 14, 6
        v_lshlrev_b32 v{VD+j}, 2, v{VD+j}
        ds_add_rtn_u32 v{VR+j}, v{VD+j}, v43 offset:{L_NCNT}
        v_lshrrev_b32 v{VP+j}, 20, v{VT+j}
        v_add_lshl_u32 v{VP+j}, v{VP+j}, v45, 5
        v_and_b32 v{VE+j}, 0x3fff, v{VT+j}
        v_lshlrev_b32 v{VE+j}, 7, v{VE+j}
        """)
    a.lab("P2_A_DONE")
    a("s_mov_b64 exec, -1")
    a.stamp3(9)
    a(f"""
    v_lshlrev_b32 v44, 2, v1
    s_waitcnt lgkmcnt(0)
    s_barrier
    """)
    a.stamp3(10)
    a.stamp(2)
    a(f"""
    ds_read_b32 v45, v44 offset:{L_NCNT}
    ds_read_b32 v47, v41 offset:{L_FLAG}
    s_waitcnt lgkmcnt(0)
    v_add_u32 v32, 3, v45
    v_and_b32 v32, -4, v32
    v_mov_b32 v33, v32
    v_readfirstlane_b32 s14, v47
    """)
    a.wave_scan(33)
    a(f"""
    s_nop 0
    v_readlane_b32 s12, v33, 63
    v_add_u32 v34, -1, v33
    v_sub_u32 v33, v33, v32
    s_cmp_lg_u32 s24, 0
    s_cbranch_scc1 P2_CHK_DONE
    s_and_b32 s14, s14, 1
    s_cmp_gt_u32 s12, {SLOTS}
    s_cselect_b32 s14, 1, s14
    s_cmp_eq_u32 s14, 0
    s_cbranch_scc1 P2_CHK_DONE
    """)
    a(f"""
    v_cmp_gt_u32 vcc, {NCH}, v0
    s_mov_b64 s[10:11], vcc
    v_mul_u32_u24 v15, {CH}, v0
    v_lshlrev_b32 v44, 10, v0
    s_lshl_b32 s12, s4, 2
    s_add_u32 s12, s12, {HDR_OFF}
    buffer_load_dword v45, v44, s[40:43], s12 offen
    s_waitcnt vmcnt(0)
    v_lshrrev_b32 v46, 16, v45
    v_cndmask_b32 v46, 0, v46, s[10:11]
    v_and_b32 v45, 0xffff, v45
    v_add_u32 v9, v15, v45
    v_mov_b32 v14, v46
    """)
    a.wave_scan(14)
    a(f"""
    s_nop 0
    v_readlane_b32 s10, v14, 63
    s_lshl_b32 s11, s3, 2
    v_mov_b32 v44, s11
    s_nop 0
    v_mov_b32 v45, s10
    ds_write_b32 v44, v45 offset:{L_WT}
    s_waitcnt lgkmcnt(0)
    s_barrier
    v_and_b32 v44, 7, v1
    v_lshlrev_b32 v45, 2, v44
    ds_read_b32 v45, v45 offset:{L_WT}
    v_cmp_gt_u32 vcc, s3, v44
    v_cmp_gt_u32 s[10:11], 8, v1
    s_waitcnt lgkmcnt(0)
    v_cndmask_b32 v45, 0, v45, s[10:11]
    s_nop 1
    v_cndmask_b32 v47, 0, v45, vcc
    """)
    a.wave_scan(45, full=False)
    a.wave_scan(47, full=False)
    a(f"""
    s_nop 0
    v_readlane_b32 s24, v45, 15
    v_readlane_b32 s10, v47, 15
    v_sub_u32 v14, v14, v46
    s_nop 0
    v_add_u32 v14, s10, v14
    s_branch P2_ROUND
    """)
    a.lab("P2_CHK_DONE")
    for k in range(NK):
        for pos in range(4):
            j = 4 * k + pos
            if pos == 2:
                a(f"v_cmp_ne_u32 vcc, -1, v{VT+j}\ns_cbranch_vccz P2_B1_{k}")
            a(f"ds_bpermute_b32 v{VD+j}, v{VD+j}, v33")
        a.lab(f"P2_B1_{k}")
    a(f"""
    s_add_u32 s12, s12, 31
    s_lshr_b32 s12, s12, 5
    s_add_u32 s21, s12, 7
    s_sub_u32 s21, s21, s3
    s_lshr_b32 s21, s21, 3
    s_lshr_b32 s13, s12, 3
    s_and_b32 s14, s12, 7
    """)
    a(f"""
    s_mul_i32 s10, s3, s13
    s_min_u32 s11, s3, s14
    s_add_u32 s10, s10, s11
    s_lshl_b32 s10, s10, 7
    s_lshl_b32 s11, s21, 6
    v_bfe_u32 v53, v1, 3, 1
    v_mul_u32_u24 v53, s11, v53
    v_lshrrev_b32 v54, 4, v1
    v_lshl_add_u32 v53, v54, 4, v53
    v_add_u32 v{V_AS}, s10, v53
    v_bfe_u32 v53, v1, 2, 1
    v_mul_u32_u24 v53, s11, v53
    v_bfe_u32 v54, v1, 3, 2
    v_lshl_add_u32 v53, v54, 4, v53
    v_and_b32 v54, 3, v1
    v_lshl_add_u32 v53, v54, 2, v53
    v_add_u32 v{V_AP}, s10, v53
    v_lshrrev_b32 v53, 5, v1
    v_mul_u32_u24 v53, s11, v53
    v_add_u32 v53, s10, v53
    v_lshrrev_b32 v{V_AG}, 2, v53
    s_waitcnt lgkmcnt(0)
    """)
    a.stamp3(11)
    for k in range(NK):
        for pos in range(4):
            j = 4 * k + pos
            a(f"v_cmpx_ne_u32 vcc, -1, v{VT+j}")
            if pos >= 2:
                a(f"s_cbranch_execz P2_B2_{k}")
            a(f"""
            v_add_lshl_u32 v{VR+j}, v{VR+j}, v{VD+j}, 2
            ds_write2st64_b32 v{VR+j}, v{VE+j}, v{VP+j} offset0:{L_SRC//256} offset1:{L_POS//256}
            """)
        a.lab(f"P2_B2_{k}")
        a("s_mov_b64 exec, -1")
    a.stamp3(12)
    a.stamp(3)
    a("s_waitcnt vmcnt(0) lgkmcnt(0)")
    a.stamp(4)
    a("s_barrier")
    a.stamp(5)
    a.stamp3(13)
    if OPT["stamp"] == "1":
        a("s_memtime s[82:83]\ns_mov_b32 s86, s21")
    if "nomain" in OPT["abl"]:
        a("s_mov_b32 s21, 0")
    gen_fill1(a)
    a(f"""
    s_lshl_b32 s10, s3, 2
    v_add_u32 v64, s10, v33
    v_add_u32 v65, v33, v32
    v_lshlrev_b32 v66, 8, v1
    s_cmp_eq_u32 s3, 0
    s_cselect_b32 s11, 0, -1
    v_mov_b32 v67, s11
    """)
    a.lab("P2_G_L")
    a(f"""
    v_cmpx_lt_u32 vcc, v64, v65
    s_cbranch_execz P2_G_DONE
    ds_write2st64_b32 v64, v66, v67 offset0:{L_GT//256} offset1:{L_GM//256}
    v_add_u32 v64, 32, v64
    v_mov_b32 v67, -1
    s_branch P2_G_L
    """)
    a.lab("P2_G_DONE")
    a("s_mov_b64 exec, -1")
    a(f"""
    s_cmp_lg_u32 s25, 0
    s_cbranch_scc1 P2_PREP_A
    s_lshr_b32 s9, s3, 2
    s_lshl_b32 s10, s9, 12
    s_add_u32 s10, s10, {L_PX}
    s_sub_u32 s10, s10, s20
    """)
    for t in range(4):
        a(f"""
        v_add_u32 v{64+t}, s10, v{V_XR+t}
        ds_read_b128 v[{VX+4*t}:{VX+4*t+3}], v{64+t}
        """)
    a(f"""
    s_lshl_b32 s9, s9, 13
    s_and_b32 s10, s3, 1
    s_lshl_b32 s10, s10, 2
    s_add_u32 s9, s9, s10
    v_lshl_add_u32 v2, v{V_H16}, 6, v{V_N8}
    v_add_u32 v2, s9, v2
    s_waitcnt lgkmcnt(0)
    """)
    for t in range(4):
        c = "0" if t == 0 else f"v[{VAP}:{VAP+15}]"
        a(f"v_mfma_f32_32x32x16_bf16 v[{VAP}:{VAP+15}], v[{VX+4*t}:{VX+4*t+3}], v[{VF+4*t}:{VF+4*t+3}], {c}")
    a.lab("P2_PREP_A")
    a(f"""
    s_add_u32 s10, s13, 1
    s_mul_i32 s11, s14, s10
    s_lshl_b32 s11, s11, 1
    v_cvt_f32_u32 v68, s10
    v_cvt_f32_u32 v69, s13
    v_rcp_f32 v68, v68
    v_rcp_f32 v69, v69
    s_lshl_b32 s10, s14, 1
    v_lshrrev_b32 v64, 4, v33
    v_bfe_u32 v65, v34, 4, 9
    """)
    for v in (64, 65):
        a(f"""
        v_cmp_gt_u32 vcc, s11, v{v}
        v_subrev_u32 v70, s11, v{v}
        s_nop 0
        v_cndmask_b32 v70, v70, v{v}, vcc
        v_cndmask_b32 v71, v69, v68, vcc
        v_cvt_f32_u32 v70, v70
        v_add_f32 v70, 0.5, v70
        v_mul_f32 v70, v70, v71
        v_cvt_u32_f32 v70, v70
        v_add_u32 v71, s10, v70
        v_cndmask_b32 v{v}, v71, v70, vcc
        """)
    a(f"""
    v_sub_u32 v65, v65, v64
    v_add_u32 v65, 1, v65
    v_cmp_ne_u32 vcc, 0, v32
    v_lshrrev_b32 v66, 4, v0
    v_lshlrev_b32 v66, 2, v66
    v_cndmask_b32 v65, 0, v65, vcc
    v_and_b32 v64, 15, v64
    v_lshl_or_b32 v65, v64, 8, v65
    v_add_u32 v67, 128, v66
    ds_bpermute_b32 v7, v66, v65
    ds_bpermute_b32 v8, v67, v65
    s_cmp_lg_u32 s25, 0
    s_cbranch_scc1 P2_PREP_DONE
    s_bitcmp1_b32 s3, 1
    s_cbranch_scc1 P2_HU
    """)

    def dwrites(base):
        a("s_cmp_ge_u32 s3, 4\ns_cbranch_scc1 " + f"P2_DW1_{base}")
        for i in range(16):
            a(f"ds_write_b32 v2, v{VAP+i} offset:{base+(8*(i//4)+i%4)*256}")
        a(f"s_branch P2_DW2_{base}")
        a.lab(f"P2_DW1_{base}")
        for i in range(8):
            a(f"ds_write_b32 v2, v{VAP+i} offset:{base+(8*(i//4)+i%4)*256}")
        a("s_mov_b32 exec_hi, 0")
        for i in (8, 9):
            a(f"ds_write_b32 v2, v{VAP+i} offset:{base+(8*(i//4)+i%4)*256}")
        a("s_mov_b64 exec, -1")
        a.lab(f"P2_DW2_{base}")

    for i in range(16):
        a(f"v_mul_f32 v{VAP+i}, {NLOG2E:#x}, v{VAP+i}")
    a(f"v_max3_f32 v64, abs(v{VAP}), abs(v{VAP+1}), abs(v{VAP+2})")
    for i in range(3, 15, 2):
        a(f"v_max3_f32 v64, abs(v{VAP+i}), abs(v{VAP+i+1}), v64")
    a(f"""
    v_max_f32 v64, abs(v{VAP+15}), v64
    v_mov_b32 v65, 0x42700000
    v_cmp_lt_f32 s[10:11], v65, v64
    """)
    for i in range(0, 16, 2):
        a(f"""
        v_cmp_u_f32 vcc, v{VAP+i}, v{VAP+i+1}
        s_or_b64 s[10:11], s[10:11], vcc
        """)
    a(f"""
    s_cmp_eq_u64 s[10:11], 0
    s_cbranch_scc1 P2_EA_W
    v_mov_b32 v65, 2
    ds_or_b32 v41, v65 offset:{L_FLAG}
    s_branch P2_EA_W
    """)
    a.lab("P2_HU")
    a(f"v_add_u32 v2, {L_HU}, v2")
    for i in range(16):
        a(f"v_cvt_pk_bf16_f32 v{VAP+i}, v{VAP+i}, v{VAP+i}")
    for i in range(16):
        a(f"v_and_b32 v{VAP+i}, 0xffff0000, v{VAP+i}")
    dwrites(0)
    a.lab("P2_EA_W")
    a(f"""
    v_lshlrev_b32 v64, 4, v1
    v_add_u32 v64, {L_ACC}, v64
    """)
    for f in range(4, 18):
        a(f"ds_read_b128 {wfrag(f)}, v64 offset:{1024*f}")
    a(f"""
    s_waitcnt lgkmcnt(0)
    s_barrier
    ds_read_b32 v65, v41 offset:{L_FLAG}
    s_waitcnt lgkmcnt(0)
    v_readfirstlane_b32 s15, v65
    s_lshr_b32 s15, s15, 1
    s_bitcmp1_b32 s3, 1
    s_cbranch_scc1 P2_EA3
    s_cmp_lg_u32 s15, 0
    s_cbranch_scc1 P2_EA2_W
    """)
    for k in range(16):
        a(f"v_exp_f32 v{VAP+k}, v{VAP+k}")
    a("s_nop 0")
    a.lab("P2_EA2_W")
    dwrites(L_EA)
    a.lab("P2_EA3")
    for f in range(4):
        a(f"ds_read_b128 {wfrag(f)}, v64 offset:{1024*f}")
    a("s_mov_b32 s25, 1")
    a.lab("P2_PREP_DONE")
    a(f"""
    s_waitcnt lgkmcnt(0)
    s_barrier
    """)
    a.stamp3(14)
    a(f"""
    s_cmp_eq_u32 s21, 0
    s_cbranch_scc1 P2_MAIN_DONE
    """)
    gen_fill2(a)
    a.stamp(14)
    if OPT["stamp"] == "4":
        a("s_mov_b32 s70, 0\ns_mov_b32 s72, 0\ns_mov_b32 s74, 0\ns_memtime s[76:77]\ns_mov_b32 s80, s21")
    a(f"""
    s_cmp_lg_u32 s15, 0
    s_cbranch_scc1 P2_LOOPS
    """)
    gen_loop(a, False, "F")
    gen_loop(a, True, "S")
    a.lab("P2_FLUSH")
    for g in range(4):
        a(f"ds_write_b32 v{V_G+g}, v{V_ACC[1]+g} offset:{L_ACC+4}")
    a.lab("P2_MAIN_DONE")
    if OPT["stamp"] == "4":
        a("s_memtime s[78:79]")
    a.stamp(6)
    if OPT["stamp"] == "1":
        a("s_memtime s[84:85]\ns_getreg_b32 s88, hwreg(HW_REG_HW_ID)\ns_getreg_b32 s90, hwreg(HW_REG_XCC_ID)")
    a(f"""
    s_waitcnt vmcnt(0) lgkmcnt(0)
    s_barrier
    """)
    a.stamp(7)
    for h in range(2):
        a(f"""
        v_and_b32 v24, 0xff, v{7+h}
        v_and_b32 v25, 0xff00, v{7+h}
        v_add_u32 v25, v25, v3
        v_add_u32 v25, {L_ACC+8192*h}, v25
        """)
        a.lab(f"P2_FOLD{h}")
        a(f"""
        v_cmpx_lt_u32 vcc, 0, v24
        s_cbranch_execz P2_FOLD_DONE{h}
        ds_read_b128 v[32:35], v25
        v_add_u32 v24, -1, v24
        v_add_u32 v25, 0x100, v25
        s_waitcnt lgkmcnt(0)
        v_add_f32 v{V_RUN+4*h}, v{V_RUN+4*h}, v32
        v_add_f32 v{V_RUN+4*h+1}, v{V_RUN+4*h+1}, v33
        v_add_f32 v{V_RUN+4*h+2}, v{V_RUN+4*h+2}, v34
        v_add_f32 v{V_RUN+4*h+3}, v{V_RUN+4*h+3}, v35
        s_branch P2_FOLD{h}
        """)
        a.lab(f"P2_FOLD_DONE{h}")
        a("s_mov_b64 exec, -1")
    a(f"""
    s_add_u32 s23, s23, {512*JS}
    s_cmp_lt_u32 s23, s24
    s_cbranch_scc1 P2_ROUND
    v_lshrrev_b32 v5, 4, v0
    v_and_b32 v6, 15, v0
    v_lshlrev_b32 v5, 7, v5
    v_lshl_add_u32 v5, v6, 2, v5
    v_add_u32 v6, 0x1000, v5
    """)
    for h in range(2):
        R = V_RUN + 4 * h
        a(f"""
        v_add_u32 v24, {L_HU+8192*h}, v3
        ds_read_b128 v[32:35], v24
        v_cvt_pk_bf16_f32 v36, v{R}, v{R+2}
        v_cvt_pk_bf16_f32 v37, v{R+1}, v{R+3}
        v_lshlrev_b32 v28, 16, v36
        v_and_b32 v30, 0xffff0000, v36
        v_lshlrev_b32 v29, 16, v37
        v_and_b32 v31, 0xffff0000, v37
        s_waitcnt lgkmcnt(0)
        v_add_f32 v28, v28, v32
        v_add_f32 v29, v29, v33
        v_add_f32 v30, v30, v34
        v_add_f32 v31, v31, v35
        v_cvt_pk_bf16_f32 v36, v28, v30
        v_cvt_pk_bf16_f32 v37, v29, v31
        v_lshlrev_b32 v28, 16, v36
        v_and_b32 v30, 0xffff0000, v36
        v_lshlrev_b32 v29, 16, v37
        v_and_b32 v31, 0xffff0000, v37
        """)
        for k in range(4):
            a(f"v_mul_f32 v{32+k}, {NLOG2E:#x}, v{28+k}")
        for k in range(4):
            a(f"v_exp_f32 v{32+k}, v{32+k}")
        for k in range(4):
            a(f"v_add_f32 v{32+k}, 1.0, v{32+k}")
        for k in range(4):
            a(f"v_rcp_f32 v{32+k}, v{32+k}")
        for k in range(4):
            a(f"v_mul_f32 v{28+k}, v{28+k}, v{32+k}")
        a(f"""
        v_cvt_pk_bf16_f32 v{38+2*h}, v28, v30
        v_cvt_pk_bf16_f32 v{39+2*h}, v29, v31
        buffer_store_dword v{38+2*h}, v{5+h}, s[44:47], 0 offen
        buffer_store_dword v{39+2*h}, v{5+h}, s[44:47], 0 offen offset:64
        """)
    a.stamp(8)
    a.stamp_flush(15, 40, 8, DBG2_OFF)
    a.lab("P2_END")
    a("s_endpgm")
    return a.text()


HEAD = open("standalone__edge_featured_mpnn_egc__graph.s.ref").read().split("; Override launch")[0]


def kd(name, vgpr, sgpr):
    acc = (vgpr + 3) // 4 * 4
    return f""".amdhsa_kernel {name}
  .amdhsa_next_free_vgpr {vgpr}
  .amdhsa_next_free_sgpr {sgpr}
  .amdhsa_accum_offset {acc}
  .amdhsa_group_segment_fixed_size 0
  .amdhsa_kernarg_size 80
  .amdhsa_user_sgpr_count 2
  .amdhsa_user_sgpr_kernarg_segment_ptr 1
  .amdhsa_system_sgpr_workgroup_id_x 1
.end_amdhsa_kernel
"""


def main():
    out = HEAD
    out += f"; @launch kernel=p1_kernel grid=({NCH},1,1) block=(704,1,1) lds={P1_LDS}\n"
    out += f"; @launch kernel=p2_kernel grid=({NB},1,1) block=(512,1,1) lds={P2_LDS}\n"
    out += '.amdgcn_target "amdgcn-amd-amdhsa--gfx950"\n.text\n'
    out += ".globl p1_kernel\n.p2align 8\n.type p1_kernel,@function\n" + gen_p1()
    out += ".globl p2_kernel\n.p2align 8\n.type p2_kernel,@function\n" + gen_p2()
    out += '.section .rodata,"a"\n.p2align 6\n' + kd("p1_kernel", 64, 100) + ".p2align 6\n" + kd("p2_kernel", 256, 100)
    open(sys.argv[1], "w").write(out)


main()
```

```python
import sys

N = 12500; E = 800000
NCH = 320; CH = 2500
NK = NCH // 64
TROW = NCH * 128
NB = 256; NPB = 49; MUL = 21400
SUBN = 16
SLOTS = 4096
JS = 7
NLOG2E = 0xBFB8AA3B

T_OFF = 0x0
ENT_OFF = 0xA00000
HDR_OFF = 0xE00000
WF_OFF = 0xE80000
DBG1_OFF = 0x2C00000
DBG2_OFF = 0x2D00000
WS_SIZE = 0x3000000
NFRAG = 34

OPT = dict(p1_store="", p1_tstore="", p1_ld="nt", abl="", stamp="", prio_hi="1", prio_lo="0", xpf="0",
           p1_sched="[[0,1],[2,3],[4,5],[6]]", bunch="1", ne="4", e_pol="", epf1="0", epf2="0", epf_pol="", cpf="16", fsplit="1", cpf2="0", cpf1="0")
for a_ in sys.argv[2:]:
    k_, v_ = a_.split("=")
    OPT[k_] = v_


class A:
    def __init__(self):
        self.l = []

    def __call__(self, s):
        for x in s.strip().split("\n"):
            self.l.append("    " + x.strip())

    def lab(self, s):
        self.l.append(s + ":")

    def srd(self, d, lo, hi, nrec, add=None):
        if add is None:
            self(f"s_mov_b32 s{d}, s{lo}\ns_mov_b32 s{d+1}, s{hi}")
        else:
            self(f"s_add_u32 s{d}, s{lo}, {add}\ns_addc_u32 s{d+1}, s{hi}, 0")
        self(f"s_mov_b32 s{d+2}, {nrec}\ns_mov_b32 s{d+3}, 0x20000")

    def wave_scan(self, v, full=True):
        for sh in (1, 2, 4, 8):
            self("s_nop 1")
            self(f"v_add_u32_dpp v{v}, v{v}, v{v} row_shr:{sh} row_mask:0xf bank_mask:0xf bound_ctrl:0")
        if full:
            self("s_nop 1")
            self(f"v_add_u32_dpp v{v}, v{v}, v{v} row_bcast:15 row_mask:0xa bank_mask:0xf")
            self("s_nop 1")
            self(f"v_add_u32_dpp v{v}, v{v}, v{v} row_bcast:31 row_mask:0xc bank_mask:0xf")

    def stamp(self, k):
        if OPT["stamp"] == "1":
            self(f"s_memrealtime s[{64+2*k}:{65+2*k}]")

    def stamp5(self, k):
        if OPT["stamp"] == "5":
            self(f"s_memtime s[{64+2*k}:{65+2*k}]")

    def stamp3(self, k):
        if OPT["stamp"] == "3":
            self(f"s_memtime s[{64+2*k}:{65+2*k}]")

    def stamp_flush(self, n, srd, nw, base):
        if not OPT["stamp"]:
            return
        self(f"""
        s_waitcnt lgkmcnt(0)
        s_mov_b64 exec, -1
        s_mul_i32 s10, s2, {nw}
        s_add_u32 s10, s10, s3
        s_lshl_b32 s10, s10, 6
        s_add_u32 s10, s10, {base}
        v_mov_b32 v1, 0
        """)
        for k in range(n):
            self(f"v_mov_b32 v2, s{64+2*k}\nbuffer_store_dword v2, v1, s[{srd}:{srd+3}], s10 offen offset:{4*k}\ns_nop 1")

    def text(self):
        return "\n".join(self.l) + "\n"


def sub_dl(j):
    return (1 if j < 10 else 8) + (j % 10) // 5, 6 * (j % 5)


def sub_src(j):
    return (3 if j < 10 else 10) + (j % 10) // 2, 16 * (j % 2)


P1_HIST = 0; P1_START = 1024; P1_ENT = 2048
P1_LDS = P1_ENT + CH * 4 + 256


def gen_p1():
    a = A()
    ST = OPT["p1_store"]; TST = OPT["p1_tstore"]; LD = OPT["p1_ld"]
    a.lab("p1_kernel")
    a(f"""
    s_cmp_ge_u32 s2, {NCH}
    s_cbranch_scc1 P1_END
    """)
    a.stamp(0)
    if OPT["cpf1"] != "0":
        a("s_getpc_b64 s[52:53]")
        a.lab("P1_PC0")
        a(f"""
        s_mov_b32 s54, P1_END-P1_PC0
        s_mov_b32 s55, 0x20000
        v_lshlrev_b32 v62, 7, v0
        buffer_load_dword v63, v62, s[52:55], 0 offen
        """)
    a(f"""
    s_load_dwordx16 s[16:31], s[0:1], 0
    s_load_dwordx4 s[32:35], s[0:1], 64
    v_and_b32 v1, 63, v0
    v_lshrrev_b32 v5, 6, v0
    v_lshlrev_b32 v2, 4, v0
    v_lshlrev_b32 v3, 2, v0
    v_readfirstlane_b32 s3, v5
    v_lshlrev_b32 v4, 4, v1
    v_mov_b32 v6, 0
    v_and_b32 v7, 0x3fc, v3
    ds_write_b32 v7, v6 offset:{P1_HIST}
    s_mul_i32 s4, s2, {CH*4}
    v_and_b32 v24, 31, v1
    v_lshrrev_b32 v25, 5, v1
    s_waitcnt lgkmcnt(0)
    """)
    a.srd(44, 22, 23, CH * 4, "s4")
    a.srd(40, 20, 21, CH * 4, "s4")
    a(f"""
    buffer_load_dwordx4 v[8:11], v2, s[44:47], 0 offen {LD}
    buffer_load_dwordx4 v[12:15], v2, s[40:43], 0 offen {LD}
    """)
    if OPT["epf1"] != "0":
        nl = 625 * int(OPT["epf1"]) // 8
        a(f"s_mul_i32 s5, s2, {CH*32}")
        a.srd(36, 18, 19, nl * 128, "s5")
        a(f"v_lshlrev_b32 v60, 7, v0\nbuffer_load_dword v61, v60, s[36:39], 0 offen {OPT['epf_pol']}")
    a.srd(48, 34, 35, WS_SIZE)
    a.srd(56, 28, 29, 2048 - 64)
    a(f"""
    v_lshlrev_b32 v26, 10, v25
    v_lshl_add_u32 v26, v24, 1, v26
    s_mov_b32 s14, 1.0
    s_cmp_lg_u32 s3, 10
    s_cbranch_scc1 P1_FL_DONE
    s_cmp_ge_u32 s2, {NFRAG}
    s_cbranch_scc1 P1_FL_DONE
    s_sub_u32 s5, s2, 2
    s_cmp_ge_u32 s2, 18
    s_cselect_b32 s5, s5, s2
    s_and_b32 s6, s5, 3
    s_lshl_b32 s6, s6, 11
    s_lshr_b32 s7, s5, 2
    s_and_b32 s7, s7, 1
    s_lshl_b32 s7, s7, 6
    s_add_u32 s6, s6, s7
    s_cmp_ge_u32 s2, 8
    s_cbranch_scc1 P1_FL1
    s_add_u32 s6, s6, 8192
    s_mov_b32 s14, {NLOG2E}
    s_branch P1_FL3
    """)
    a.lab("P1_FL1")
    a(f"""
    s_cmp_ge_u32 s2, 16
    s_cbranch_scc1 P1_FL2
    s_mov_b32 s56, s26
    s_mov_b32 s57, s27
    s_branch P1_FL3
    """)
    a.lab("P1_FL2")
    a(f"""
    s_cmp_ge_u32 s2, 26
    s_cselect_b32 s56, s24, s28
    s_cselect_b32 s57, s25, s29
    s_cmp_ge_u32 s2, 18
    s_cbranch_scc1 P1_FL3
    s_mov_b32 s14, {NLOG2E}
    s_and_b32 s6, s2, 1
    s_lshl_b32 s6, s6, 6
    s_add_u32 s6, s6, 16384
    """)
    a.lab("P1_FL3")
    a(f"""
    s_add_u32 s56, s56, s6
    s_addc_u32 s57, s57, 0
    """)
    for jj in range(8):
        a(f"buffer_load_ushort v{40+jj}, v26, s[56:59], 0 offen offset:{jj*128}")
    a("s_waitcnt vmcnt(0)")
    for jj in range(8):
        a(f"v_lshlrev_b32 v{40+jj}, 16, v{40+jj}")
    for jj in range(8):
        a(f"v_mul_f32 v{40+jj}, s14, v{40+jj}")
    for q in range(4):
        a(f"v_cvt_pk_bf16_f32 v{48+q}, v{40+2*q}, v{40+2*q+1}")
    a(f"""
    s_lshl_b32 s6, s2, 10
    s_add_u32 s6, s6, {WF_OFF}
    buffer_store_dwordx4 v[48:51], v4, s[48:51], s6 offen
    s_endpgm
    """)
    a.lab("P1_FL_DONE")
    if OPT["cpf"] != "0":
        a(f"""
        s_cmp_lg_u32 s3, 10
        s_cbranch_scc1 P1_CPF_DONE
        s_cmp_ge_u32 s2, {64+int(OPT["cpf"])}
        s_cbranch_scc1 P1_END
        s_getpc_b64 s[52:53]
        """)
        a.lab("P1_PC")
        a(f"""
        s_add_u32 s52, s52, p2_kernel-P1_PC
        s_addc_u32 s53, s53, 0
        s_mov_b32 s54, P2_END-p2_kernel
        s_mov_b32 s55, 0x20000
        v_lshlrev_b32 v40, 6, v1
        """)
        for k in range(5):
            a(f"buffer_load_dword v41, v40, s[52:55], 0 offen\nv_add_u32 v40, 0x1000, v40")
        a("s_endpgm")
        a.lab("P1_CPF_DONE")
    a(f"""
    s_cmp_ge_u32 s3, 10
    s_cbranch_scc1 P1_END
    v_cmp_gt_u32 vcc, {CH//4}, v0
    s_mov_b64 s[8:9], vcc
    v_mov_b32 v30, 1
    s_barrier
    s_waitcnt vmcnt({2 if OPT["epf1"] != "0" else 1})
    """)
    a.stamp(1)
    a("s_mov_b64 exec, s[8:9]")
    for e in range(4):
        a(f"""
        v_mul_u32_u24 v{16+e}, {MUL}, v{8+e}
        v_lshrrev_b32 v31, 20, v{16+e}
        v_lshlrev_b32 v{16+e}, 2, v31
        ds_add_rtn_u32 v{20+e}, v{16+e}, v30 offset:{P1_HIST}
        v_mul_u32_u24 v31, {NPB}, v31
        v_sub_u32 v{8+e}, v{8+e}, v31
        """)
    a("s_mov_b64 exec, -1\ns_waitcnt lgkmcnt(0)")
    a.stamp(2)
    a("s_barrier")
    a.stamp(3)
    a(f"""
    s_cmp_lg_u32 s3, 0
    s_cbranch_scc1 P1_SC_DONE
    ds_read_b128 v[32:35], v4 offset:{P1_HIST}
    s_waitcnt lgkmcnt(0)
    v_add_u32 v36, v32, v33
    v_add_u32 v37, v36, v34
    v_add_u32 v38, v37, v35
    v_mov_b32 v39, v38
    """)
    a.wave_scan(39)
    a(f"""
    v_sub_u32 v40, v39, v38
    v_add_u32 v41, v32, v40
    v_add_u32 v42, v36, v40
    v_add_u32 v43, v37, v40
    ds_write_b128 v4, v[40:43] offset:{P1_START}
    v_lshl_or_b32 v44, v32, 16, v40
    v_lshl_or_b32 v45, v33, 16, v41
    v_lshl_or_b32 v46, v34, 16, v42
    v_lshl_or_b32 v47, v35, 16, v43
    s_lshl_b32 s6, s2, 10
    s_add_u32 s6, s6, {HDR_OFF}
    buffer_store_dwordx4 v[44:47], v4, s[48:51], s6 offen
    """)
    a.lab("P1_SC_DONE")
    a(f"""
    s_waitcnt vmcnt({2 if OPT["epf1"] != "0" else 1})
    s_cmp_eq_u32 s3, 0
    s_cbranch_scc1 P1_W0
    s_waitcnt vmcnt({1 if OPT["epf1"] != "0" else 0})
    """)
    a.lab("P1_W0")
    for e in range(4):
        a(f"""
        v_lshl_or_b32 v{36+e}, v{8+e}, 14, v{12+e}
        v_add_u32 v31, {e}, v3
        v_lshl_or_b32 v{36+e}, v31, 20, v{36+e}
        """)
    a(f"""
    v_lshrrev_b32 v7, 3, v0
    v_lshlrev_b32 v6, 2, v7
    v_and_b32 v27, 7, v0
    s_waitcnt lgkmcnt(0)
    s_barrier
    """)
    a.stamp(4)
    for r in range(4):
        a(f"""
        ds_read_b32 v{40+r}, v6 offset:{P1_START+320*r}
        ds_read_b32 v{44+r}, v6 offset:{P1_HIST+320*r}
        """)
    a("s_mov_b64 exec, s[8:9]")
    for e in range(4):
        a(f"ds_read_b32 v{32+e}, v{16+e} offset:{P1_START}")
    for e in range(4):
        a(f"""
        s_waitcnt lgkmcnt(3)
        v_add_lshl_u32 v{32+e}, v{32+e}, v{20+e}, 2
        ds_write_b32 v{32+e}, v{36+e} offset:{P1_ENT}
        """)
    a("s_mov_b64 exec, -1")
    for r in range(4):
        a(f"""
        v_add_lshl_u32 v{40+r}, v{40+r}, v27, 2
        v_add_u32 v{40+r}, {P1_ENT}, v{40+r}
        v_sub_u32 v{48+r}, v{44+r}, v27
        """)
    a(f"""
    s_lshl_b32 s6, s2, 7
    s_add_u32 s6, s6, {T_OFF}
    s_add_u32 s10, s4, {ENT_OFF}
    v_mul_u32_u24 v28, {TROW}, v7
    v_lshl_or_b32 v28, v27, 4, v28
    s_waitcnt lgkmcnt(0)
    """)
    a.stamp(5)
    a("s_barrier")
    a.stamp(6)
    for r in range(3):
        a(f"""
        ds_read2_b32 v[{8+4*r}:{9+4*r}], v{40+r} offset0:0 offset1:8
        ds_read2_b32 v[{10+4*r}:{11+4*r}], v{40+r} offset0:16 offset1:24
        """)
    a(f"""
    ds_read_b128 v[32:35], v2 offset:{P1_ENT}
    s_cmp_ge_u32 s3, 2
    s_cbranch_scc1 P1_R2SKIP
    ds_read2_b32 v[20:21], v43 offset0:0 offset1:8
    ds_read2_b32 v[22:23], v43 offset0:16 offset1:24
    """)
    a.lab("P1_R2SKIP")
    for r in range(4):
        if r == 3:
            a(f"""
            s_mov_b64 exec, s[8:9]
            buffer_store_dwordx4 v[32:35], v2, s[48:51], s10 offen {ST}
            s_mov_b64 exec, -1
            s_cmp_ge_u32 s3, 2
            s_cbranch_scc1 P1_FIN
            """)
        for k in range(4):
            a(f"v_cmp_lt_i32 s[{16+2*k}:{17+2*k}], {8*k}, v{48+r}")
        a(f"v_cmp_lt_u32 vcc, 32, v{44+r}")
        a("s_waitcnt lgkmcnt(0)" if r == 0 else "s_nop 0")
        for k in range(4):
            a(f"v_cndmask_b32 v{8+4*r+k}, -1, v{8+4*r+k}, s[{16+2*k}:{17+2*k}]")
        a(f"""
        v_cndmask_b32 v{8+4*r}, v{8+4*r}, -2, vcc
        buffer_store_dwordx4 v[{8+4*r}:{11+4*r}], v28, s[48:51], s6 offen {TST}
        s_add_u32 s6, s6, {80*TROW}
        """)
    a.lab("P1_FIN")
    a.stamp(7)
    if OPT["stamp"]:
        a("s_waitcnt vmcnt(0)")
    a.stamp(8)
    a.stamp_flush(9, 48, 16, DBG1_OFF)
    a.lab("P1_END")
    a("s_endpgm")
    return a.text()


L_NCNT = 0; L_FLAG = 256; L_WT = 272
L_SRC = 512; L_POS = L_SRC + 16384; L_GT = L_POS + 16384; L_GM = L_GT + 4096; L_EA = L_GM + 4096
NROW = 50
L_ACC = L_EA + NROW * 256
L_XB = L_ACC + 18432
L_HU = L_XB + 65536
L_PX = L_HU + NROW * 256
P2_LDS = L_PX + 8192
assert P2_LDS <= 163840 and L_ACC + 4 < 65536 and (16 + NROW) * 256 <= 18432
SENT = 0x40000000

V_W = 184
V_Z0 = 64; V_H0 = 80; V_Z1 = 96; V_H1 = 112
V_XA = (128, 28); V_EA = (144, 44, 24, 56)
V_G = 148; V_GR = 152; V_EV = 156
V_SL = 164
V_ACC = (168, 52)
V_XR = 172
V_PS = 176
V_AS = 177; V_AP = 178; V_AG = 179
V_N8 = 181; V_H16 = 182; V_N8H = 183
V_K = (180, 10, 11, 12)
V_GE = 60
V_GM = 48
V_RUN = 16
NE = int(OPT["ne"])


def wfrag(f):
    return f"v[{V_W+4*f}:{V_W+4*f+3}]"


def mf_list(u, Z, H, ph):
    xa = V_XA[ph % 2]; ea = V_EA[ph % NE]
    l = [f"v_mfma_f32_32x32x16_bf16 v[{Z}:{Z+15}], v[{ea}:{ea+3}], {wfrag(16+u)}, 0"]
    for t in range(4):
        l.append(f"v_mfma_f32_32x32x16_bf16 v[{Z}:{Z+15}], v[{xa+4*t}:{xa+4*t+3}], {wfrag(u*4+t)}, v[{Z}:{Z+15}]")
    for t in range(4):
        c = "0" if t == 0 else f"v[{H}:{H+15}]"
        l.append(f"v_mfma_f32_32x32x16_bf16 v[{H}:{H+15}], v[{xa+4*t}:{xa+4*t+3}], {wfrag(8+u*4+t)}, {c}")
    return l


def body(ph, safe):
    out = []
    par = ph % 2
    npar = 1 - par
    PH = OPT["prio_hi"]; PL = OPT["prio_lo"]
    cnt = [0]
    bunch = OPT["bunch"] == "1"

    def lstamp():
        if OPT["stamp"] == "2" and ph == 1:
            out.append(f"s_memtime s[{64+2*cnt[0]}:{65+2*cnt[0]}]")
            cnt[0] += 1

    def trun(instrs, mf, fill):
        lstamp()
        if PH != PL:
            out.append(f"s_setprio {PH}")
        mf = list(mf)
        for k, x in enumerate(instrs):
            out.append(x)
            if k % 3 == 0 and mf:
                out.append(mf.pop(0))
            elif fill:
                if bunch:
                    out.extend(fill); del fill[:]
                else:
                    out.append(fill.pop(0))
        assert not mf
        if PH != PL:
            out.append(f"s_setprio {PL}")

    def half(u, Z, H, mf, fill, preF, postF, fillR, preM, postM):
        ev = lambda i: V_EV + 2 * (i // 4) + u
        if safe:
            if u == 0:
                out.append(("W", "ev3"))
            out.extend(f"v_add_f32 v{Z+i}, v{ev(i)}, v{Z+i}" for i in range(16))
        trun([f"v_exp_f32 v{Z+i}, v{Z+i}" for i in range(16)], mf[:5], fill)
        lstamp()
        out.extend(preF)
        if safe:
            out.extend(f"v_add_f32 v{Z+i}, 1.0, v{Z+i}" for i in range(16))
        else:
            out.extend(f"v_fma_f32 v{Z+i}, v{Z+i}, v{ev(i)}, 1.0" for i in range(16))
        out.extend(postF)
        fill.extend(fillR)
        trun([f"v_rcp_f32 v{Z+i}, v{Z+i}" for i in range(16)], mf[5:], fill)
        assert not fill, fill
        lstamp()
        out.extend(preM)
        A_ = V_ACC[u]
        for g in range(4):
            out.append(f"v_and_b32 v{A_+g}, v{A_+(g+3)%4}, v{V_GM+g}")
            out.extend(f"v_fmac_f32 v{A_+g}, v{Z+4*g+k}, v{H+4*g+k}" for k in range(4))
        out.extend(postM)

    def accw(u):
        return [("L", f"ds_write_b32 v{V_G+g}, v{V_ACC[u]+g} offset:{L_ACC+4*u}", None) for g in range(4)]

    xa = V_XA[npar]
    fill = [f"s_cmp_gt_u32 s21, {NE}", "s_cselect_b32 s58, s18, 0",
            f"buffer_load_dwordx4 v[{V_EA[ph]}:{V_EA[ph]+3}], v{V_PS}, s[56:59], 0 offen {OPT['e_pol']}"] + accw(1)
    fill.append(("L", f"ds_read_b128 v[{V_GM}:{V_GM+3}], v{V_AG} offset:{L_GM+16*ph}", "gm"))
    preF = [f"v_add_u32 v{V_G+g}, v{V_GR+g}, v{V_N8H}" for g in range(4)] + ([] if safe else [("W", "ev3")])
    fillR = [f"s_waitcnt vmcnt({5 if NE == 2 else 6})"]
    for t in range(4):
        fillR.append(("L", f"ds_read_b128 v[{xa+4*t}:{xa+4*t+3}], v{V_XR+t} offset:{npar*4096}", f"xa{t}"))
    fillR += [("L", f"ds_read_b128 v[{V_SL}:{V_SL+3}], v{V_AS} offset:{L_SRC+64*(3+ph)}", "sl"),
              ("L", f"ds_read_b128 v[{V_GR}:{V_GR+3}], v{V_AG} offset:{L_GT+16*(1+ph)}", "gr"),
              ("L", f"ds_read_b32 v{V_PS}, v{V_AP} offset:{L_POS+64*(NE+1+ph)}", "pos"),
              "s_cmp_gt_u32 s21, 3", "s_cselect_b32 s38, s19, 0", f"s_add_u32 m0, s20, {npar*4096}"]
    postM = [("W", "sl")] + [f"v_or_b32 v{V_SL+j}, v{V_SL+j}, v{V_K[j]}" for j in range(4)]
    half(0, V_Z0, V_H0, mf_list(1, V_Z1, V_H1, ph), fill, preF, [], fillR, [("W", "gm")], postM)
    fill = []
    aw = accw(0)
    for j in range(4):
        fill.append(f"buffer_load_dwordx4 v{V_SL+j}, s[36:39], 0 offen lds")
        if j < 3:
            fill.append(f"s_add_u32 m0, s20, {npar*4096+(j+1)*1024}")
        fill.append(aw[j])
    postF = [("W", "pos")] + [f"v_add_u32 v{V_GE+g}, v{V_GR+g}, v{V_N8}" for g in range(4)]
    postF.append(f"v_add_u32 v{V_PS}, v{V_PS}, v{V_H16}")
    fillR = [("L", f"ds_read_b64 v[{V_EV+2*g}:{V_EV+2*g+1}], v{V_GE+g} offset:{L_EA}", f"ev{g}") for g in range(4)]
    half(1, V_Z1, V_H1, mf_list(0, V_Z0, V_H0, ph + 1), fill, [], postF, fillR, [], [])
    lstamp()
    if "nomfma" in OPT["abl"]:
        out = [x for x in out if not (isinstance(x, str) and "mfma" in x)]
    if "novalu" in OPT["abl"]:
        out = [x for x in out if not (isinstance(x, str) and any(k in x for k in ("v_exp", "v_rcp", "v_fma", "v_fmac")))]
    return out


def instrument(items):
    out = []
    for x in items:
        acc = None
        if isinstance(x, str):
            if x.startswith("s_waitcnt vmcnt"): acc = 70
            elif x.startswith("buffer_load") and "lds" not in x: acc = 71
            elif x.startswith("buffer_load"): acc = 72
        if acc:
            out += ["s_memtime s[64:65]", "s_waitcnt lgkmcnt(0)", x, "s_memtime s[66:67]", "s_waitcnt lgkmcnt(0)",
                    "s_sub_u32 s68, s66, s64", f"s_add_u32 s{acc+2*(acc-70)+4-0 if False else {70:70,71:72,72:74}[acc]}, s{ {70:70,71:72,72:74}[acc] }, s68"]
        else:
            out.append(x)
    return out


def resolve(prev, cur):
    seq = prev + cur
    res = []
    for i, x in enumerate(seq):
        if i < len(prev):
            continue
        if isinstance(x, str):
            res.append(x)
        elif x[0] == "L":
            res.append(x[1])
        else:
            n = 0
            k = i - 1
            while not (isinstance(seq[k], tuple) and seq[k][0] == "L" and seq[k][2] == x[1]):
                if isinstance(seq[k], tuple) and seq[k][0] == "L":
                    n += 1
                k -= 1
                assert k >= 0, x
            res.append(f"s_waitcnt lgkmcnt({min(n, 15)})")
    return res


def eld(a, k):
    a(f"""
    s_cmp_gt_u32 s21, {k}
    s_cselect_b32 s58, s18, 0
    v_add_u32 v{V_GE+k}, v{V_GE+k}, v{V_H16}
    buffer_load_dwordx4 v[{V_EA[k]}:{V_EA[k]+3}], v{V_GE+k}, s[56:59], 0 offen {OPT['e_pol']}
    """)


def gen_fill1(a, part):
    if part == 0:
        a(f"ds_read_b128 v[{V_SL}:{V_SL+3}], v{V_AS} offset:{L_SRC}")
        for k in range(NE):
            a(f"ds_read_b32 v{V_GE+k}, v{V_AP} offset:{L_POS+64*k}")
        a(f"""
        ds_read_b128 v[{V_ACC[0]}:{V_ACC[0]+3}], v{V_AS} offset:{L_SRC+64}
        ds_read_b32 v{V_PS}, v{V_AP} offset:{L_POS+64*NE}
        s_waitcnt lgkmcnt({NE+1})
        """)
        eld(a, 0)
        xld(a, 0, V_SL, 0)
        a(f"ds_read_b128 v[{V_SL}:{V_SL+3}], v{V_AS} offset:{L_SRC+128}")
    elif part == 1:
        eld(a, 1)
        eld(a, 2)
        xld(a, 1, V_ACC[0], 1)
    else:
        eld(a, 3)
        a(f"v_add_u32 v{V_PS}, v{V_PS}, v{V_H16}")


def xld(a, b, vb, k):
    a(f"s_cmp_gt_u32 s21, {k}\ns_cselect_b32 s38, s19, 0")
    for j in range(4):
        a(f"""
        s_add_u32 m0, s20, {b*4096+j*1024}
        v_or_b32 v{vb+j}, v{vb+j}, v{V_K[j]}
        buffer_load_dwordx4 v{vb+j}, s[36:39], 0 offen lds
        """)


def gen_fill2(a):
    xa = V_XA[0]
    a(f"""
    ds_read_b128 v[{V_GR}:{V_GR+3}], v{V_AG} offset:{L_GT}
    v_mov_b32 v{V_ACC[0]+3}, 0
    v_mov_b32 v{V_ACC[1]+3}, 0
    s_waitcnt lgkmcnt(0)
    """)
    for g in range(4):
        a(f"""
        v_add_u32 v{V_GE+g}, v{V_GR+g}, v{V_N8}
        v_add_u32 v{V_G+g}, v{V_GR+g}, v{V_N8H}
        ds_read_b64 v[{V_EV+2*g}:{V_EV+2*g+1}], v{V_GE+g} offset:{L_EA}
        """)
    a.stamp5(8)
    a(f"s_waitcnt vmcnt({5 if NE == 2 else 7})")
    a.stamp5(9)
    for t in range(4):
        a(f"ds_read_b128 v[{xa+4*t}:{xa+4*t+3}], v{V_XR+t}")
    a("s_waitcnt lgkmcnt(0)")
    a.stamp5(10)
    xld(a, 0, V_SL, 2)
    a.stamp5(11)
    for m in mf_list(0, V_Z0, V_H0, 0):
        a(m)
    a("s_nop 7\ns_nop 7")
    a.stamp5(12)
    a.stamp5(13)
    a.stamp5(14)


def gen_loop(a, safe, tag):
    bs = [body(p, safe) for p in range(NE)]
    a.lab(f"P2_LOOP{tag}")
    for p in range(NE):
        rs = resolve(bs[p - 1], bs[p])
        if OPT["stamp"] == "4":
            rs = instrument(rs)
        for x in rs:
            a(x)
        if p < NE - 1:
            a(f"""
            s_sub_u32 s21, s21, 1
            s_cmp_eq_u32 s21, 0
            s_cbranch_scc1 P2_FLUSH
            """)
    a(f"""
    v_add_u32 v{V_AS}, {64*NE}, v{V_AS}
    v_add_u32 v{V_AP}, {64*NE}, v{V_AP}
    v_add_u32 v{V_AG}, {16*NE}, v{V_AG}
    s_sub_u32 s21, s21, 1
    s_cmp_lg_u32 s21, 0
    s_cbranch_scc1 P2_LOOP{tag}
    s_branch P2_FLUSH
    """)


def gen_p2():
    a = A()
    VT = 64
    VP = 84
    VR = 104
    VD = 124
    VE = 144
    VF = 200
    VX = 216
    VAP = 184
    a.lab("p2_kernel")
    a(f"""
    s_cmp_ge_u32 s2, {NB}
    s_cbranch_scc1 P2_END
    """)
    a.stamp(0)
    a.stamp3(0)
    if OPT["cpf2"] != "0":
        a("s_getpc_b64 s[52:53]")
        a.lab("P2_PC")
        a(f"""
        s_mov_b32 s54, P2_END-P2_PC
        s_mov_b32 s55, 0x20000
        v_lshlrev_b32 v28, 7, v0
        buffer_load_dword v29, v28, s[52:55], 0 offen
        """)
    a(f"""
    s_load_dwordx4 s[16:19], s[0:1], 0
    s_load_dwordx2 s[12:13], s[0:1], 56
    s_load_dwordx2 s[34:35], s[0:1], 72
    s_and_b32 s4, s2, 7
    s_lshl_b32 s4, s4, 5
    s_lshr_b32 s5, s2, 3
    s_add_u32 s4, s4, s5
    v_and_b32 v1, 63, v0
    v_lshrrev_b32 v5, 6, v0
    v_lshlrev_b32 v3, 4, v0
    v_lshlrev_b32 v4, 2, v0
    v_readfirstlane_b32 s3, v5
    s_mul_i32 s8, s4, {TROW}
    s_add_u32 s8, s8, {T_OFF}
    s_mul_i32 s6, s4, {NPB*128}
    v_and_b32 v56, 31, v1
    v_lshrrev_b32 v57, 5, v1
    v_and_b32 v58, 7, v1
    v_lshlrev_b32 v59, 2, v57
    v_xor_b32 v58, v58, v59
    v_lshlrev_b32 v{V_K[0]}, 4, v58
    s_waitcnt lgkmcnt(0)
    """)
    a.stamp3(1)
    a.srd(40, 34, 35, WS_SIZE)
    for k in range(NK):
        a(f"buffer_load_dwordx4 v[{VT+4*k}:{VT+4*k+3}], v3, s[40:43], s8 offen\ns_add_u32 s8, s8, 8192")
    a.srd(36, 16, 17, N * 128)
    a.srd(56, 18, 19, E * 32)
    if OPT["epf2"] != "0":
        f1 = 625 * int(OPT["epf1"]) // 8
        a(f"""
        v_add_u32 v60, {f1}, v0
        v_cmp_gt_u32 vcc, 625, v60
        v_lshlrev_b32 v60, 7, v60
        s_mul_i32 s9, s2, {CH*32}
        s_mov_b64 exec, vcc
        buffer_load_dword v61, v60, s[56:59], s9 offen {OPT['epf_pol']}
        s_add_u32 s9, s9, {256*CH*32}
        buffer_load_dword v61, v60, s[56:59], s9 offen {OPT['epf_pol']}
        s_mov_b64 exec, -1
        """)
    if OPT["xpf"] == "2":
        a(f"""
        s_mul_i32 s9, s5, {391*128}
        v_lshlrev_b32 v26, 7, v0
        v_cmp_gt_u32 vcc, 391, v0
        s_mov_b64 exec, vcc
        buffer_load_dword v28, v26, s[36:39], s9 offen
        s_mov_b64 exec, -1
        """)
    a(f"""
    s_add_u32 s44, s12, s6
    s_addc_u32 s45, s13, 0
    s_sub_u32 s46, {N*128}, s6
    s_min_u32 s46, s46, {NPB*128}
    s_mov_b32 s47, 0x20000
    s_mov_b32 s19, {0 if "nox" in OPT["abl"] else N*128}
    s_mov_b32 s18, {0 if "noe" in OPT["abl"] else E*32}
    """)
    NLD = 0
    a.stamp3(2)
    a(f"""
    s_lshl_b32 s20, s3, 13
    s_add_u32 s20, s20, {L_XB}
    v_lshlrev_b32 v{V_N8}, 3, v56
    v_lshlrev_b32 v{V_H16}, 4, v57
    v_lshrrev_b32 v58, 5, v0
    v_lshl_add_u32 v{V_N8H}, v58, 8, v{V_N8}
    v_xor_b32 v{V_K[1]}, 16, v{V_K[0]}
    v_xor_b32 v{V_K[2]}, 32, v{V_K[0]}
    v_xor_b32 v{V_K[3]}, 48, v{V_K[0]}
    v_and_b32 v58, 3, v56
    v_lshrrev_b32 v59, 2, v56
    v_lshl_add_u32 v59, v58, 3, v59
    v_lshlrev_b32 v59, 7, v59
    v_add_u32 v59, s20, v59
    v_lshrrev_b32 v60, 4, v56
    v_lshl_add_u32 v58, v60, 2, v58
    v_xor_b32 v58, v58, v57
    """)
    for t in range(4):
        a(f"""
        v_xor_b32 v60, {2*t}, v58
        v_lshl_add_u32 v{V_XR+t}, v60, 4, v59
        """)
    for k in range(8):
        a(f"v_mov_b32 v{V_RUN+k}, 0")
    a(f"""
    ds_write_b32 v{V_RUN}, v{V_RUN} offset:{L_FLAG}
    s_mov_b32 s23, 0
    s_mov_b32 s24, 0
    s_mov_b32 s25, 0
    s_mov_b32 s15, 0
    """)
    a.lab("P2_ROUND")
    a(f"""
    v_mov_b32 v32, {SENT}
    v_mov_b32 v33, {SENT}
    v_mov_b32 v34, {SENT}
    v_mov_b32 v35, {SENT}
    ds_write_b128 v3, v[32:35] offset:{L_SRC}
    ds_write_b128 v3, v[32:35] offset:{L_SRC+8192}
    ds_write_b128 v3, v[32:35] offset:{L_POS}
    ds_write_b128 v3, v[32:35] offset:{L_POS+8192}
    v_mov_b32 v36, {(NROW-1)*256}
    v_mov_b32 v37, {(NROW-1)*256}
    v_lshlrev_b32 v40, 3, v0
    ds_write_b64 v40, v[36:37] offset:{L_GT}
    v_mov_b32 v38, -1
    v_mov_b32 v39, -1
    ds_write_b64 v40, v[38:39] offset:{L_GM}
    v_mov_b32 v41, 0
    v_and_b32 v42, 0xfc, v4
    ds_write_b32 v42, v41 offset:{L_NCNT}
    v_mov_b32 v43, 1
    s_cmp_lg_u32 s24, 0
    s_cbranch_scc1 P2_SLOW
    """)
    a(f"""
    v_lshrrev_b32 v44, 3, v0
    v_mul_u32_u24 v13, {CH}, v44
    """)
    a.stamp3(3)
    a("s_waitcnt lgkmcnt(0)\ns_barrier")
    a.stamp3(4)
    for k in range(NK):
        a(f"s_waitcnt vmcnt({NK-1-k+(2 if OPT['epf2'] != '0' else 0)+(1 if OPT['xpf'] == '2' else 0)})")
        if k == 0:
            a.stamp(1)
        if k < 4:
            a.stamp3(5 + k)
        a(f"""
        v_cmp_eq_u32 vcc, -2, v{VT+4*k}
        s_cbranch_vccz P2_NOOVF{k}
        ds_or_b32 v41, v43 offset:{L_FLAG}
        s_branch P2_A_LD
        """)
        a.lab(f"P2_NOOVF{k}")
        for pos in range(4):
            j = 4 * k + pos
            a(f"v_cmpx_ne_u32 vcc, -1, v{VT+j}")
            if pos >= 2:
                a(f"s_cbranch_execz P2_A{k}")
            a(f"""
            v_bfe_u32 v{VD+j}, v{VT+j}, 14, 6
            v_lshlrev_b32 v{VD+j}, 2, v{VD+j}
            ds_add_rtn_u32 v{VR+j}, v{VD+j}, v43 offset:{L_NCNT}
            v_lshrrev_b32 v{VP+j}, 20, v{VT+j}
            v_add_lshl_u32 v{VP+j}, v{VP+j}, v13, 5
            v_and_b32 v{VE+j}, 0x3fff, v{VT+j}
            v_lshlrev_b32 v{VE+j}, 7, v{VE+j}
            """)
        a.lab(f"P2_A{k}")
        a(f"""
        s_mov_b64 exec, -1
        v_add_u32 v13, {64*CH}, v13
        """)
    a.lab("P2_A_LD")
    a("s_mov_b64 exec, -1")
    if OPT["xpf"] == "1":
        a(f"""
        s_mul_i32 s9, s5, {391*128}
        v_lshlrev_b32 v26, 7, v0
        v_cmp_gt_u32 vcc, 391, v0
        s_mov_b64 exec, vcc
        buffer_load_dword v28, v26, s[36:39], s9 offen
        s_mov_b64 exec, -1
        """)
    a(f"""
    s_and_b32 s9, s3, 3
    s_lshl_b32 s10, s9, 4
    v_xor_b32 v26, s10, v{V_K[0]}
    v_lshrrev_b32 v27, 3, v1
    v_lshl_add_u32 v26, v27, 9, v26
    s_lshr_b32 s10, s3, 2
    s_lshl_b32 s10, s10, 12
    s_lshl_b32 s11, s9, 7
    s_add_u32 s10, s10, s11
    s_add_u32 s10, s10, s6
    s_lshl_b32 s11, s3, 10
    s_add_u32 m0, s11, {L_PX}
    v_lshlrev_b32 v27, 4, v1
    buffer_load_dwordx4 v26, s[36:39], s10 offen lds
    s_add_u32 m0, s11, {L_ACC}
    s_add_u32 s10, s11, {WF_OFF}
    buffer_load_dwordx4 v27, s[40:43], s10 offen lds
    s_add_u32 m0, s11, {L_ACC+8192}
    s_add_u32 s10, s11, {WF_OFF+8192}
    buffer_load_dwordx4 v27, s[40:43], s10 offen lds
    s_and_b32 s11, s11, 0x400
    s_add_u32 m0, s11, {L_ACC+16384}
    s_add_u32 s10, s11, {WF_OFF+16384}
    buffer_load_dwordx4 v27, s[40:43], s10 offen lds
    s_lshl_b32 s9, s9, 12
    s_add_u32 s9, s9, {WF_OFF+18*1024}
    """)
    for t in range(4):
        a(f"buffer_load_dwordx4 v[{VF+4*t}:{VF+4*t+3}], v27, s[40:43], s9 offen offset:{1024*t}")
    a("s_branch P2_A_DONE")
    L_PREF = L_XB
    a.lab("P2_SLOW")
    a(f"""
    v_add_u32 v44, {L_PREF}, v4
    ds_write_b32 v44, v14
    ds_write_b32 v44, v9 offset:2048
    ds_write_b32 v44, v15 offset:4096
    s_waitcnt lgkmcnt(0)
    s_barrier
    """)
    for j in range(4 * NK):
        a(f"v_mov_b32 v{VT+j}, -1")
    for j in range(JS):
        a(f"""
        s_add_u32 s10, s23, {512*j}
        v_add_u32 v44, s10, v0
        v_cmp_gt_u32 vcc, s24, v44
        s_and_saveexec_b64 s[10:11], vcc
        s_cbranch_execz P2_A_DONE
        v_mov_b32 v45, {L_PREF}
        s_mov_b32 s12, 1024
        """)
        a.lab(f"P2_BS{j}")
        a(f"""
        v_add_u32 v46, s12, v45
        ds_read_b32 v47, v46
        s_waitcnt lgkmcnt(0)
        v_cmp_le_u32 vcc, v47, v44
        s_lshr_b32 s12, s12, 1
        s_cmp_ge_u32 s12, 4
        v_cndmask_b32 v45, v45, v46, vcc
        s_cbranch_scc1 P2_BS{j}
        ds_read_b32 v46, v45
        ds_read_b32 v47, v45 offset:2048
        ds_read_b32 v45, v45 offset:4096
        s_waitcnt lgkmcnt(0)
        v_sub_u32 v46, v44, v46
        v_add_lshl_u32 v46, v47, v46, 2
        s_mov_b32 s12, {ENT_OFF}
        buffer_load_dword v{VT+j}, v46, s[40:43], s12 offen
        s_waitcnt vmcnt(0)
        v_bfe_u32 v{VD+j}, v{VT+j}, 14, 6
        v_lshlrev_b32 v{VD+j}, 2, v{VD+j}
        ds_add_rtn_u32 v{VR+j}, v{VD+j}, v43 offset:{L_NCNT}
        v_lshrrev_b32 v{VP+j}, 20, v{VT+j}
        v_add_lshl_u32 v{VP+j}, v{VP+j}, v45, 5
        v_and_b32 v{VE+j}, 0x3fff, v{VT+j}
        v_lshlrev_b32 v{VE+j}, 7, v{VE+j}
        """)
    a.lab("P2_A_DONE")
    a("s_mov_b64 exec, -1")
    a.stamp3(9)
    a(f"""
    v_lshlrev_b32 v44, 2, v1
    s_waitcnt lgkmcnt(0)
    s_barrier
    """)
    a.stamp3(10)
    a.stamp(2)
    a(f"""
    ds_read_b32 v45, v44 offset:{L_NCNT}
    ds_read_b32 v47, v41 offset:{L_FLAG}
    s_waitcnt lgkmcnt(0)
    v_add_u32 v32, 3, v45
    v_and_b32 v32, -4, v32
    v_mov_b32 v33, v32
    v_readfirstlane_b32 s14, v47
    """)
    a.wave_scan(33)
    a(f"""
    s_nop 0
    v_readlane_b32 s12, v33, 63
    v_add_u32 v34, -1, v33
    v_sub_u32 v33, v33, v32
    s_cmp_lg_u32 s24, 0
    s_cbranch_scc1 P2_CHK_DONE
    s_and_b32 s14, s14, 1
    s_cmp_gt_u32 s12, {SLOTS}
    s_cselect_b32 s14, 1, s14
    s_cmp_eq_u32 s14, 0
    s_cbranch_scc1 P2_CHK_DONE
    """)
    a(f"""
    v_cmp_gt_u32 vcc, {NCH}, v0
    s_mov_b64 s[10:11], vcc
    v_mul_u32_u24 v15, {CH}, v0
    v_lshlrev_b32 v44, 10, v0
    s_lshl_b32 s12, s4, 2
    s_add_u32 s12, s12, {HDR_OFF}
    buffer_load_dword v45, v44, s[40:43], s12 offen
    s_waitcnt vmcnt(0)
    v_lshrrev_b32 v46, 16, v45
    v_cndmask_b32 v46, 0, v46, s[10:11]
    v_and_b32 v45, 0xffff, v45
    v_add_u32 v9, v15, v45
    v_mov_b32 v14, v46
    """)
    a.wave_scan(14)
    a(f"""
    s_nop 0
    v_readlane_b32 s10, v14, 63
    s_lshl_b32 s11, s3, 2
    v_mov_b32 v44, s11
    s_nop 0
    v_mov_b32 v45, s10
    ds_write_b32 v44, v45 offset:{L_WT}
    s_waitcnt lgkmcnt(0)
    s_barrier
    v_and_b32 v44, 7, v1
    v_lshlrev_b32 v45, 2, v44
    ds_read_b32 v45, v45 offset:{L_WT}
    v_cmp_gt_u32 vcc, s3, v44
    v_cmp_gt_u32 s[10:11], 8, v1
    s_waitcnt lgkmcnt(0)
    v_cndmask_b32 v45, 0, v45, s[10:11]
    s_nop 1
    v_cndmask_b32 v47, 0, v45, vcc
    """)
    a.wave_scan(45, full=False)
    a.wave_scan(47, full=False)
    a(f"""
    s_nop 0
    v_readlane_b32 s24, v45, 15
    v_readlane_b32 s10, v47, 15
    v_sub_u32 v14, v14, v46
    s_nop 0
    v_add_u32 v14, s10, v14
    s_branch P2_ROUND
    """)
    a.lab("P2_CHK_DONE")
    for k in range(NK):
        for pos in range(4):
            j = 4 * k + pos
            if pos == 2:
                a(f"v_cmp_ne_u32 vcc, -1, v{VT+j}\ns_cbranch_vccz P2_B1_{k}")
            a(f"ds_bpermute_b32 v{VD+j}, v{VD+j}, v33")
        a.lab(f"P2_B1_{k}")
    a(f"""
    s_add_u32 s12, s12, 31
    s_lshr_b32 s12, s12, 5
    s_add_u32 s21, s12, 7
    s_sub_u32 s21, s21, s3
    s_lshr_b32 s21, s21, 3
    s_lshr_b32 s13, s12, 3
    s_and_b32 s14, s12, 7
    """)
    a(f"""
    s_mul_i32 s10, s3, s13
    s_min_u32 s11, s3, s14
    s_add_u32 s10, s10, s11
    s_lshl_b32 s10, s10, 7
    s_lshl_b32 s11, s21, 6
    v_bfe_u32 v53, v1, 3, 1
    v_mul_u32_u24 v53, s11, v53
    v_lshrrev_b32 v54, 4, v1
    v_lshl_add_u32 v53, v54, 4, v53
    v_add_u32 v{V_AS}, s10, v53
    v_bfe_u32 v53, v1, 2, 1
    v_mul_u32_u24 v53, s11, v53
    v_bfe_u32 v54, v1, 3, 2
    v_lshl_add_u32 v53, v54, 4, v53
    v_and_b32 v54, 3, v1
    v_lshl_add_u32 v53, v54, 2, v53
    v_add_u32 v{V_AP}, s10, v53
    v_lshrrev_b32 v53, 5, v1
    v_mul_u32_u24 v53, s11, v53
    v_add_u32 v53, s10, v53
    v_lshrrev_b32 v{V_AG}, 2, v53
    s_waitcnt lgkmcnt(0)
    """)
    a.stamp3(11)
    for k in range(NK):
        for pos in range(4):
            j = 4 * k + pos
            a(f"v_cmpx_ne_u32 vcc, -1, v{VT+j}")
            if pos >= 2:
                a(f"s_cbranch_execz P2_B2_{k}")
            a(f"""
            v_add_lshl_u32 v{VR+j}, v{VR+j}, v{VD+j}, 2
            ds_write2st64_b32 v{VR+j}, v{VE+j}, v{VP+j} offset0:{L_SRC//256} offset1:{L_POS//256}
            """)
        a.lab(f"P2_B2_{k}")
        a("s_mov_b64 exec, -1")
    a.stamp3(12)
    a.stamp(3)
    a("s_waitcnt vmcnt(0) lgkmcnt(0)")
    a.stamp(4)
    a("s_barrier")
    a.stamp(5)
    a.stamp3(13)
    if OPT["stamp"] == "1":
        a("s_memtime s[82:83]\ns_mov_b32 s86, s21")
    if "nomain" in OPT["abl"]:
        a("s_mov_b32 s21, 0")
    a.stamp5(0)
    gen_fill1(a, 0)
    a.stamp5(1)
    if OPT['fsplit'] == '0':
        a('s_waitcnt lgkmcnt(0)')
        gen_fill1(a, 1); gen_fill1(a, 2)
    a(f"""
    s_lshl_b32 s10, s3, 2
    v_add_u32 v64, s10, v33
    v_add_u32 v65, v33, v32
    v_lshlrev_b32 v66, 8, v1
    s_cmp_eq_u32 s3, 0
    s_cselect_b32 s11, 0, -1
    v_mov_b32 v67, s11
    """)
    a.lab("P2_G_L")
    a(f"""
    v_cmpx_lt_u32 vcc, v64, v65
    s_cbranch_execz P2_G_DONE
    ds_write2st64_b32 v64, v66, v67 offset0:{L_GT//256} offset1:{L_GM//256}
    v_add_u32 v64, 32, v64
    v_mov_b32 v67, -1
    s_branch P2_G_L
    """)
    a.lab("P2_G_DONE")
    a("s_mov_b64 exec, -1")
    a(f"""
    s_cmp_lg_u32 s25, 0
    s_cbranch_scc1 P2_PREP_A
    s_lshr_b32 s9, s3, 2
    s_lshl_b32 s10, s9, 12
    s_add_u32 s10, s10, {L_PX}
    s_sub_u32 s10, s10, s20
    """)
    for t in range(4):
        a(f"""
        v_add_u32 v{64+t}, s10, v{V_XR+t}
        ds_read_b128 v[{VX+4*t}:{VX+4*t+3}], v{64+t}
        """)
    a(f"""
    s_lshl_b32 s9, s9, 13
    s_and_b32 s10, s3, 1
    s_lshl_b32 s10, s10, 2
    s_add_u32 s9, s9, s10
    v_lshl_add_u32 v2, v{V_H16}, 6, v{V_N8}
    v_add_u32 v2, s9, v2
    s_waitcnt lgkmcnt(0)
    """)
    for t in range(4):
        c = "0" if t == 0 else f"v[{VAP}:{VAP+15}]"
        a(f"v_mfma_f32_32x32x16_bf16 v[{VAP}:{VAP+15}], v[{VX+4*t}:{VX+4*t+3}], v[{VF+4*t}:{VF+4*t+3}], {c}")
    a.lab("P2_PREP_A")
    a(f"""
    s_add_u32 s10, s13, 1
    s_mul_i32 s11, s14, s10
    s_lshl_b32 s11, s11, 1
    v_cvt_f32_u32 v68, s10
    v_cvt_f32_u32 v69, s13
    v_rcp_f32 v68, v68
    v_rcp_f32 v69, v69
    s_lshl_b32 s10, s14, 1
    v_lshrrev_b32 v64, 4, v33
    v_bfe_u32 v65, v34, 4, 9
    """)
    for v in (64, 65):
        a(f"""
        v_cmp_gt_u32 vcc, s11, v{v}
        v_subrev_u32 v70, s11, v{v}
        s_nop 0
        v_cndmask_b32 v70, v70, v{v}, vcc
        v_cndmask_b32 v71, v69, v68, vcc
        v_cvt_f32_u32 v70, v70
        v_add_f32 v70, 0.5, v70
        v_mul_f32 v70, v70, v71
        v_cvt_u32_f32 v70, v70
        v_add_u32 v71, s10, v70
        v_cndmask_b32 v{v}, v71, v70, vcc
        """)
    a(f"""
    v_sub_u32 v65, v65, v64
    v_add_u32 v65, 1, v65
    v_cmp_ne_u32 vcc, 0, v32
    v_lshrrev_b32 v66, 4, v0
    v_lshlrev_b32 v66, 2, v66
    v_cndmask_b32 v65, 0, v65, vcc
    v_and_b32 v64, 15, v64
    v_lshl_or_b32 v65, v64, 8, v65
    v_add_u32 v67, 128, v66
    ds_bpermute_b32 v7, v66, v65
    ds_bpermute_b32 v8, v67, v65
    s_cmp_lg_u32 s25, 0
    s_cbranch_scc1 P2_PREP_SKIP
    s_bitcmp1_b32 s3, 1
    s_cbranch_scc1 P2_HU
    """)

    def dwrites(base):
        a("s_cmp_ge_u32 s3, 4\ns_cbranch_scc1 " + f"P2_DW1_{base}")
        for i in range(16):
            a(f"ds_write_b32 v2, v{VAP+i} offset:{base+(8*(i//4)+i%4)*256}")
        a(f"s_branch P2_DW2_{base}")
        a.lab(f"P2_DW1_{base}")
        for i in range(8):
            a(f"ds_write_b32 v2, v{VAP+i} offset:{base+(8*(i//4)+i%4)*256}")
        a("s_mov_b32 exec_hi, 0")
        for i in (8, 9):
            a(f"ds_write_b32 v2, v{VAP+i} offset:{base+(8*(i//4)+i%4)*256}")
        a("s_mov_b64 exec, -1")
        a.lab(f"P2_DW2_{base}")

    for i in range(16):
        a(f"v_mul_f32 v{VAP+i}, {NLOG2E:#x}, v{VAP+i}")
    a(f"v_max3_f32 v64, abs(v{VAP}), abs(v{VAP+1}), abs(v{VAP+2})")
    for i in range(3, 15, 2):
        a(f"v_max3_f32 v64, abs(v{VAP+i}), abs(v{VAP+i+1}), v64")
    a(f"""
    v_max_f32 v64, abs(v{VAP+15}), v64
    v_mov_b32 v65, 0x42700000
    v_cmp_lt_f32 s[10:11], v65, v64
    """)
    for i in range(0, 16, 2):
        a(f"""
        v_cmp_u_f32 vcc, v{VAP+i}, v{VAP+i+1}
        s_or_b64 s[10:11], s[10:11], vcc
        """)
    a(f"""
    s_cmp_eq_u64 s[10:11], 0
    s_cbranch_scc1 P2_EA_W
    v_mov_b32 v65, 2
    ds_or_b32 v41, v65 offset:{L_FLAG}
    s_branch P2_EA_W
    """)
    a.lab("P2_HU")
    a(f"v_add_u32 v2, {L_HU}, v2")
    for i in range(16):
        a(f"v_cvt_pk_bf16_f32 v{VAP+i}, v{VAP+i}, v{VAP+i}")
    for i in range(16):
        a(f"v_and_b32 v{VAP+i}, 0xffff0000, v{VAP+i}")
    dwrites(0)
    a.lab("P2_EA_W")
    a(f"""
    v_lshlrev_b32 v64, 4, v1
    v_add_u32 v64, {L_ACC}, v64
    """)
    for f in range(4, 18):
        a(f"ds_read_b128 {wfrag(f)}, v64 offset:{1024*f}")
    a.stamp5(2)
    a(f"""
    s_waitcnt lgkmcnt(0)
    s_barrier
    ds_read_b32 v65, v41 offset:{L_FLAG}
    """)
    a.stamp5(3)
    if OPT['fsplit'] == '1':
        gen_fill1(a, 1)
    a.stamp5(4)
    a(f"""
    s_waitcnt lgkmcnt(0)
    v_readfirstlane_b32 s15, v65
    s_lshr_b32 s15, s15, 1
    s_bitcmp1_b32 s3, 1
    s_cbranch_scc1 P2_EA3
    s_cmp_lg_u32 s15, 0
    s_cbranch_scc1 P2_EA2_W
    """)
    for k in range(16):
        a(f"v_exp_f32 v{VAP+k}, v{VAP+k}")
    a("s_nop 0")
    a.lab("P2_EA2_W")
    dwrites(L_EA)
    a.lab("P2_EA3")
    for f in range(4):
        a(f"ds_read_b128 {wfrag(f)}, v64 offset:{1024*f}")
    a("s_mov_b32 s25, 1")
    a("s_branch P2_PREP_DONE")
    a.lab("P2_PREP_SKIP")
    if OPT['fsplit'] == '1':
        a("s_waitcnt lgkmcnt(0)")
        gen_fill1(a, 1)
    a.lab("P2_PREP_DONE")
    a.stamp5(5)
    a(f"""
    s_waitcnt lgkmcnt(0)
    s_barrier
    """)
    a.stamp5(6)
    if OPT['fsplit'] == '1':
        gen_fill1(a, 2)
    a.stamp5(7)
    a.stamp3(14)
    a(f"""
    s_cmp_eq_u32 s21, 0
    s_cbranch_scc1 P2_MAIN_DONE
    """)
    gen_fill2(a)
    a.stamp(14)
    if OPT["stamp"] == "4":
        a("s_mov_b32 s70, 0\ns_mov_b32 s72, 0\ns_mov_b32 s74, 0\ns_memtime s[76:77]\ns_mov_b32 s80, s21")
    a(f"""
    s_cmp_lg_u32 s15, 0
    s_cbranch_scc1 P2_LOOPS
    """)
    gen_loop(a, False, "F")
    gen_loop(a, True, "S")
    a.lab("P2_FLUSH")
    for g in range(4):
        a(f"ds_write_b32 v{V_G+g}, v{V_ACC[1]+g} offset:{L_ACC+4}")
    a.lab("P2_MAIN_DONE")
    if OPT["stamp"] == "4":
        a("s_memtime s[78:79]")
    a.stamp(6)
    if OPT["stamp"] == "1":
        a("s_memtime s[84:85]\ns_getreg_b32 s88, hwreg(HW_REG_HW_ID)\ns_getreg_b32 s90, hwreg(HW_REG_XCC_ID)")
    a(f"""
    s_waitcnt vmcnt(0) lgkmcnt(0)
    s_barrier
    """)
    a.stamp(7)
    for h in range(2):
        a(f"""
        v_and_b32 v24, 0xff, v{7+h}
        v_and_b32 v25, 0xff00, v{7+h}
        v_add_u32 v25, v25, v3
        v_add_u32 v25, {L_ACC+8192*h}, v25
        """)
        a.lab(f"P2_FOLD{h}")
        a(f"""
        v_cmpx_lt_u32 vcc, 0, v24
        s_cbranch_execz P2_FOLD_DONE{h}
        ds_read_b128 v[32:35], v25
        v_add_u32 v24, -1, v24
        v_add_u32 v25, 0x100, v25
        s_waitcnt lgkmcnt(0)
        v_add_f32 v{V_RUN+4*h}, v{V_RUN+4*h}, v32
        v_add_f32 v{V_RUN+4*h+1}, v{V_RUN+4*h+1}, v33
        v_add_f32 v{V_RUN+4*h+2}, v{V_RUN+4*h+2}, v34
        v_add_f32 v{V_RUN+4*h+3}, v{V_RUN+4*h+3}, v35
        s_branch P2_FOLD{h}
        """)
        a.lab(f"P2_FOLD_DONE{h}")
        a("s_mov_b64 exec, -1")
    a(f"""
    s_add_u32 s23, s23, {512*JS}
    s_cmp_lt_u32 s23, s24
    s_cbranch_scc1 P2_ROUND
    v_lshrrev_b32 v5, 4, v0
    v_and_b32 v6, 15, v0
    v_lshlrev_b32 v5, 7, v5
    v_lshl_add_u32 v5, v6, 2, v5
    v_add_u32 v6, 0x1000, v5
    """)
    for h in range(2):
        R = V_RUN + 4 * h
        a(f"""
        v_add_u32 v24, {L_HU+8192*h}, v3
        ds_read_b128 v[32:35], v24
        v_cvt_pk_bf16_f32 v36, v{R}, v{R+2}
        v_cvt_pk_bf16_f32 v37, v{R+1}, v{R+3}
        v_lshlrev_b32 v28, 16, v36
        v_and_b32 v30, 0xffff0000, v36
        v_lshlrev_b32 v29, 16, v37
        v_and_b32 v31, 0xffff0000, v37
        s_waitcnt lgkmcnt(0)
        v_add_f32 v28, v28, v32
        v_add_f32 v29, v29, v33
        v_add_f32 v30, v30, v34
        v_add_f32 v31, v31, v35
        v_cvt_pk_bf16_f32 v36, v28, v30
        v_cvt_pk_bf16_f32 v37, v29, v31
        v_lshlrev_b32 v28, 16, v36
        v_and_b32 v30, 0xffff0000, v36
        v_lshlrev_b32 v29, 16, v37
        v_and_b32 v31, 0xffff0000, v37
        """)
        for k in range(4):
            a(f"v_mul_f32 v{32+k}, {NLOG2E:#x}, v{28+k}")
        for k in range(4):
            a(f"v_exp_f32 v{32+k}, v{32+k}")
        for k in range(4):
            a(f"v_add_f32 v{32+k}, 1.0, v{32+k}")
        for k in range(4):
            a(f"v_rcp_f32 v{32+k}, v{32+k}")
        for k in range(4):
            a(f"v_mul_f32 v{28+k}, v{28+k}, v{32+k}")
        a(f"""
        v_cvt_pk_bf16_f32 v{38+2*h}, v28, v30
        v_cvt_pk_bf16_f32 v{39+2*h}, v29, v31
        buffer_store_dword v{38+2*h}, v{5+h}, s[44:47], 0 offen
        buffer_store_dword v{39+2*h}, v{5+h}, s[44:47], 0 offen offset:64
        """)
    a.stamp(8)
    a.stamp_flush(15, 40, 8, DBG2_OFF)
    a.lab("P2_END")
    a("s_endpgm")
    return a.text()


HEAD = open("standalone__edge_featured_mpnn_egc__graph.s.ref").read().split("; Override launch")[0]


def kd(name, vgpr, sgpr):
    acc = (vgpr + 3) // 4 * 4
    return f""".amdhsa_kernel {name}
  .amdhsa_next_free_vgpr {vgpr}
  .amdhsa_next_free_sgpr {sgpr}
  .amdhsa_accum_offset {acc}
  .amdhsa_group_segment_fixed_size 0
  .amdhsa_kernarg_size 80
  .amdhsa_user_sgpr_count 2
  .amdhsa_user_sgpr_kernarg_segment_ptr 1
  .amdhsa_system_sgpr_workgroup_id_x 1
.end_amdhsa_kernel
"""


def main():
    out = HEAD
    out += f"; @launch kernel=p1_kernel grid=({NCH},1,1) block=(704,1,1) lds={P1_LDS}\n"
    out += f"; @launch kernel=p2_kernel grid=({NB},1,1) block=(512,1,1) lds={P2_LDS}\n"
    out += '.amdgcn_target "amdgcn-amd-amdhsa--gfx950"\n.text\n'
    out += ".globl p1_kernel\n.p2align 8\n.type p1_kernel,@function\n" + gen_p1()
    out += ".globl p2_kernel\n.p2align 8\n.type p2_kernel,@function\n" + gen_p2()
    out += '.section .rodata,"a"\n.p2align 6\n' + kd("p1_kernel", 64, 100) + ".p2align 6\n" + kd("p2_kernel", 256, 100)
    open(sys.argv[1], "w").write(out)


main()
```

```python
import sys

N = 12500; E = 800000
NCH = 320; CH = 2500
NK = NCH // 64
TROW = NCH * 128
NB = 256; NPB = 49; MUL = 21400
SUBN = 16
SLOTS = 4096
JS = 7
NLOG2E = 0xBFB8AA3B

T_OFF = 0x0
ENT_OFF = 0xA00000
HDR_OFF = 0xE00000
WF_OFF = 0xE80000
DBG1_OFF = 0x2C00000
DBG2_OFF = 0x2D00000
WS_SIZE = 0x3000000
NFRAG = 34

OPT = dict(p1_store="", p1_tstore="", p1_ld="nt", abl="", stamp="", prio_hi="1", prio_lo="0", xpf="0",
           p1_sched="[[0,1],[2,3],[4,5],[6]]", bunch="1", ne="4", e_pol="", epf1="0", epf2="0", epf_pol="", cpf="16", fsplit="1", cpf2="1", cpf1="0", kr_fake="0", tpf="0")
for a_ in sys.argv[2:]:
    k_, v_ = a_.split("=")
    OPT[k_] = v_


class A:
    def __init__(self):
        self.l = []

    def __call__(self, s):
        for x in s.strip().split("\n"):
            self.l.append("    " + x.strip())

    def lab(self, s):
        self.l.append(s + ":")

    def srd(self, d, lo, hi, nrec, add=None):
        if add is None:
            self(f"s_mov_b32 s{d}, s{lo}\ns_mov_b32 s{d+1}, s{hi}")
        else:
            self(f"s_add_u32 s{d}, s{lo}, {add}\ns_addc_u32 s{d+1}, s{hi}, 0")
        self(f"s_mov_b32 s{d+2}, {nrec}\ns_mov_b32 s{d+3}, 0x20000")

    def wave_scan(self, v, full=True):
        for sh in (1, 2, 4, 8):
            self("s_nop 1")
            self(f"v_add_u32_dpp v{v}, v{v}, v{v} row_shr:{sh} row_mask:0xf bank_mask:0xf bound_ctrl:0")
        if full:
            self("s_nop 1")
            self(f"v_add_u32_dpp v{v}, v{v}, v{v} row_bcast:15 row_mask:0xa bank_mask:0xf")
            self("s_nop 1")
            self(f"v_add_u32_dpp v{v}, v{v}, v{v} row_bcast:31 row_mask:0xc bank_mask:0xf")

    def stamp(self, k):
        if OPT["stamp"] == "1":
            self(f"s_memrealtime s[{64+2*k}:{65+2*k}]")

    def stamp5(self, k):
        if OPT["stamp"] == "5":
            self(f"s_memtime s[{64+2*k}:{65+2*k}]")

    def stamp3(self, k):
        if OPT["stamp"] == "3":
            self(f"s_memtime s[{64+2*k}:{65+2*k}]")

    def stamp_flush(self, n, srd, nw, base):
        if not OPT["stamp"]:
            return
        self(f"""
        s_waitcnt lgkmcnt(0)
        s_mov_b64 exec, -1
        s_mul_i32 s10, s2, {nw}
        s_add_u32 s10, s10, s3
        s_lshl_b32 s10, s10, 6
        s_add_u32 s10, s10, {base}
        v_mov_b32 v1, 0
        """)
        for k in range(n):
            self(f"v_mov_b32 v2, s{64+2*k}\nbuffer_store_dword v2, v1, s[{srd}:{srd+3}], s10 offen offset:{4*k}\ns_nop 1")

    def text(self):
        return "\n".join(self.l) + "\n"


def sub_dl(j):
    return (1 if j < 10 else 8) + (j % 10) // 5, 6 * (j % 5)


def sub_src(j):
    return (3 if j < 10 else 10) + (j % 10) // 2, 16 * (j % 2)


P1_HIST = 0; P1_START = 1024; P1_ENT = 2048
P1_LDS = P1_ENT + CH * 4 + 256


def gen_p1():
    a = A()
    ST = OPT["p1_store"]; TST = OPT["p1_tstore"]; LD = OPT["p1_ld"]
    a.lab("p1_kernel")
    a(f"""
    s_cmp_ge_u32 s2, {NCH}
    s_cbranch_scc1 P1_END
    """)
    a.stamp(0)
    if OPT["cpf1"] != "0":
        a("s_getpc_b64 s[52:53]")
        a.lab("P1_PC0")
        a(f"""
        s_mov_b32 s54, P1_END-P1_PC0
        s_mov_b32 s55, 0x20000
        v_lshlrev_b32 v62, 7, v0
        buffer_load_dword v63, v62, s[52:55], 0 offen
        """)
    a(f"""
    s_load_dwordx16 s[16:31], s[0:1], 0
    s_load_dwordx4 s[32:35], s[0:1], 64
    v_and_b32 v1, 63, v0
    v_lshrrev_b32 v5, 6, v0
    v_lshlrev_b32 v2, 4, v0
    v_lshlrev_b32 v3, 2, v0
    v_readfirstlane_b32 s3, v5
    v_lshlrev_b32 v4, 4, v1
    v_mov_b32 v6, 0
    v_and_b32 v7, 0x3fc, v3
    ds_write_b32 v7, v6 offset:{P1_HIST}
    s_mul_i32 s4, s2, {CH*4}
    v_and_b32 v24, 31, v1
    v_lshrrev_b32 v25, 5, v1
    s_waitcnt lgkmcnt(0)
    """)
    a.srd(44, 22, 23, CH * 4, "s4")
    a.srd(40, 20, 21, CH * 4, "s4")
    a(f"""
    buffer_load_dwordx4 v[8:11], v2, s[44:47], 0 offen {LD}
    buffer_load_dwordx4 v[12:15], v2, s[40:43], 0 offen {LD}
    """)
    if OPT["epf1"] != "0":
        nl = 625 * int(OPT["epf1"]) // 8
        a(f"s_mul_i32 s5, s2, {CH*32}")
        a.srd(36, 18, 19, nl * 128, "s5")
        a(f"v_lshlrev_b32 v60, 7, v0\nbuffer_load_dword v61, v60, s[36:39], 0 offen {OPT['epf_pol']}")
    a.srd(48, 34, 35, WS_SIZE)
    a.srd(56, 28, 29, 2048 - 64)
    a(f"""
    v_lshlrev_b32 v26, 10, v25
    v_lshl_add_u32 v26, v24, 1, v26
    s_mov_b32 s14, 1.0
    s_cmp_lg_u32 s3, 10
    s_cbranch_scc1 P1_FL_DONE
    s_cmp_ge_u32 s2, {NFRAG}
    s_cbranch_scc1 P1_FL_DONE
    s_sub_u32 s5, s2, 2
    s_cmp_ge_u32 s2, 18
    s_cselect_b32 s5, s5, s2
    s_and_b32 s6, s5, 3
    s_lshl_b32 s6, s6, 11
    s_lshr_b32 s7, s5, 2
    s_and_b32 s7, s7, 1
    s_lshl_b32 s7, s7, 6
    s_add_u32 s6, s6, s7
    s_cmp_ge_u32 s2, 8
    s_cbranch_scc1 P1_FL1
    s_add_u32 s6, s6, 8192
    s_mov_b32 s14, {NLOG2E}
    s_branch P1_FL3
    """)
    a.lab("P1_FL1")
    a(f"""
    s_cmp_ge_u32 s2, 16
    s_cbranch_scc1 P1_FL2
    s_mov_b32 s56, s26
    s_mov_b32 s57, s27
    s_branch P1_FL3
    """)
    a.lab("P1_FL2")
    a(f"""
    s_cmp_ge_u32 s2, 26
    s_cselect_b32 s56, s24, s28
    s_cselect_b32 s57, s25, s29
    s_cmp_ge_u32 s2, 18
    s_cbranch_scc1 P1_FL3
    s_mov_b32 s14, {NLOG2E}
    s_and_b32 s6, s2, 1
    s_lshl_b32 s6, s6, 6
    s_add_u32 s6, s6, 16384
    """)
    a.lab("P1_FL3")
    a(f"""
    s_add_u32 s56, s56, s6
    s_addc_u32 s57, s57, 0
    """)
    for jj in range(8):
        a(f"buffer_load_ushort v{40+jj}, v26, s[56:59], 0 offen offset:{jj*128}")
    a("s_waitcnt vmcnt(0)")
    for jj in range(8):
        a(f"v_lshlrev_b32 v{40+jj}, 16, v{40+jj}")
    for jj in range(8):
        a(f"v_mul_f32 v{40+jj}, s14, v{40+jj}")
    for q in range(4):
        a(f"v_cvt_pk_bf16_f32 v{48+q}, v{40+2*q}, v{40+2*q+1}")
    a(f"""
    s_lshl_b32 s6, s2, 10
    s_add_u32 s6, s6, {WF_OFF}
    buffer_store_dwordx4 v[48:51], v4, s[48:51], s6 offen
    s_endpgm
    """)
    a.lab("P1_FL_DONE")
    if OPT["cpf"] != "0":
        a(f"""
        s_cmp_lg_u32 s3, 10
        s_cbranch_scc1 P1_CPF_DONE
        s_cmp_ge_u32 s2, {64+int(OPT["cpf"])}
        s_cbranch_scc1 P1_END
        s_getpc_b64 s[52:53]
        """)
        a.lab("P1_PC")
        a(f"""
        s_add_u32 s52, s52, p2_kernel-P1_PC
        s_addc_u32 s53, s53, 0
        s_mov_b32 s54, P2_END-p2_kernel
        s_mov_b32 s55, 0x20000
        v_lshlrev_b32 v40, 6, v1
        """)
        for k in range(6):
            a(f"buffer_load_dword v41, v40, s[52:55], 0 offen\nv_add_u32 v40, 0x1000, v40")
        if OPT["tpf"] != "0":
            sh = int(OPT["tpf"])
            a.srd(36, 18, 19, E * 32)
            a(f"v_lshlrev_b32 v40, {sh}, v1")
            for k in range(-(-E * 32 // (64 << sh))):
                a(f"buffer_load_dword v41, v40, s[36:39], 0 offen\nv_add_u32 v40, {64 << sh}, v40")
            a(f"v_lshlrev_b32 v40, {min(sh, 15)}, v1")
            a.srd(36, 16, 17, N * 128)
            a("buffer_load_dword v41, v40, s[36:39], 0 offen")
            a.srd(36, 30, 31, N * 128)
            a("buffer_load_dword v41, v40, s[36:39], 0 offen")
        a("s_endpgm")
        a.lab("P1_CPF_DONE")
    a(f"""
    s_cmp_ge_u32 s3, 10
    s_cbranch_scc1 P1_END
    v_cmp_gt_u32 vcc, {CH//4}, v0
    s_mov_b64 s[8:9], vcc
    v_mov_b32 v30, 1
    s_barrier
    s_waitcnt vmcnt({2 if OPT["epf1"] != "0" else 1})
    """)
    a.stamp(1)
    a("s_mov_b64 exec, s[8:9]")
    for e in range(4):
        a(f"""
        v_mul_u32_u24 v{16+e}, {MUL}, v{8+e}
        v_lshrrev_b32 v31, 20, v{16+e}
        v_lshlrev_b32 v{16+e}, 2, v31
        ds_add_rtn_u32 v{20+e}, v{16+e}, v30 offset:{P1_HIST}
        v_mul_u32_u24 v31, {NPB}, v31
        v_sub_u32 v{8+e}, v{8+e}, v31
        """)
    a("s_mov_b64 exec, -1\ns_waitcnt lgkmcnt(0)")
    a.stamp(2)
    a("s_barrier")
    a.stamp(3)
    a(f"""
    s_cmp_lg_u32 s3, 0
    s_cbranch_scc1 P1_SC_DONE
    ds_read_b128 v[32:35], v4 offset:{P1_HIST}
    s_waitcnt lgkmcnt(0)
    v_add_u32 v36, v32, v33
    v_add_u32 v37, v36, v34
    v_add_u32 v38, v37, v35
    v_mov_b32 v39, v38
    """)
    a.wave_scan(39)
    a(f"""
    v_sub_u32 v40, v39, v38
    v_add_u32 v41, v32, v40
    v_add_u32 v42, v36, v40
    v_add_u32 v43, v37, v40
    ds_write_b128 v4, v[40:43] offset:{P1_START}
    v_lshl_or_b32 v44, v32, 16, v40
    v_lshl_or_b32 v45, v33, 16, v41
    v_lshl_or_b32 v46, v34, 16, v42
    v_lshl_or_b32 v47, v35, 16, v43
    s_lshl_b32 s6, s2, 10
    s_add_u32 s6, s6, {HDR_OFF}
    buffer_store_dwordx4 v[44:47], v4, s[48:51], s6 offen
    """)
    a.lab("P1_SC_DONE")
    a(f"""
    s_waitcnt vmcnt({2 if OPT["epf1"] != "0" else 1})
    s_cmp_eq_u32 s3, 0
    s_cbranch_scc1 P1_W0
    s_waitcnt vmcnt({1 if OPT["epf1"] != "0" else 0})
    """)
    a.lab("P1_W0")
    for e in range(4):
        a(f"""
        v_lshl_or_b32 v{36+e}, v{8+e}, 14, v{12+e}
        v_add_u32 v31, {e}, v3
        v_lshl_or_b32 v{36+e}, v31, 20, v{36+e}
        """)
    a(f"""
    v_lshrrev_b32 v7, 3, v0
    v_lshlrev_b32 v6, 2, v7
    v_and_b32 v27, 7, v0
    s_waitcnt lgkmcnt(0)
    s_barrier
    """)
    a.stamp(4)
    for r in range(4):
        a(f"""
        ds_read_b32 v{40+r}, v6 offset:{P1_START+320*r}
        ds_read_b32 v{44+r}, v6 offset:{P1_HIST+320*r}
        """)
    a("s_mov_b64 exec, s[8:9]")
    for e in range(4):
        a(f"ds_read_b32 v{32+e}, v{16+e} offset:{P1_START}")
    for e in range(4):
        a(f"""
        s_waitcnt lgkmcnt(3)
        v_add_lshl_u32 v{32+e}, v{32+e}, v{20+e}, 2
        """)
        if OPT["kr_fake"] != "0":
            a(f"""
            s_cmp_ge_u32 s2, {64*int(OPT["kr_fake"])}
            s_cbranch_scc1 P1_FK{e}
            v_and_b32 v{36+e}, 0xfffff, v{36+e}
            v_lshl_or_b32 v{36+e}, v{32+e}, 18, v{36+e}
            """)
            a.lab(f"P1_FK{e}")
        a(f"""
        ds_write_b32 v{32+e}, v{36+e} offset:{P1_ENT}
        """)
    a("s_mov_b64 exec, -1")
    for r in range(4):
        a(f"""
        v_add_lshl_u32 v{40+r}, v{40+r}, v27, 2
        v_add_u32 v{40+r}, {P1_ENT}, v{40+r}
        v_sub_u32 v{48+r}, v{44+r}, v27
        """)
    a(f"""
    s_lshl_b32 s6, s2, 7
    s_add_u32 s6, s6, {T_OFF}
    s_add_u32 s10, s4, {ENT_OFF}
    v_mul_u32_u24 v28, {TROW}, v7
    v_lshl_or_b32 v28, v27, 4, v28
    s_waitcnt lgkmcnt(0)
    """)
    a.stamp(5)
    a("s_barrier")
    a.stamp(6)
    for r in range(3):
        a(f"""
        ds_read2_b32 v[{8+4*r}:{9+4*r}], v{40+r} offset0:0 offset1:8
        ds_read2_b32 v[{10+4*r}:{11+4*r}], v{40+r} offset0:16 offset1:24
        """)
    a(f"""
    ds_read_b128 v[32:35], v2 offset:{P1_ENT}
    s_cmp_ge_u32 s3, 2
    s_cbranch_scc1 P1_R2SKIP
    ds_read2_b32 v[20:21], v43 offset0:0 offset1:8
    ds_read2_b32 v[22:23], v43 offset0:16 offset1:24
    """)
    a.lab("P1_R2SKIP")
    for r in range(4):
        if r == 3:
            a(f"""
            s_mov_b64 exec, s[8:9]
            buffer_store_dwordx4 v[32:35], v2, s[48:51], s10 offen {ST}
            s_mov_b64 exec, -1
            s_cmp_ge_u32 s3, 2
            s_cbranch_scc1 P1_FIN
            """)
        for k in range(4):
            a(f"v_cmp_lt_i32 s[{16+2*k}:{17+2*k}], {8*k}, v{48+r}")
        a(f"v_cmp_lt_u32 vcc, 32, v{44+r}")
        a("s_waitcnt lgkmcnt(0)" if r == 0 else "s_nop 0")
        for k in range(4):
            a(f"v_cndmask_b32 v{8+4*r+k}, -1, v{8+4*r+k}, s[{16+2*k}:{17+2*k}]")
        a(f"""
        v_cndmask_b32 v{8+4*r}, v{8+4*r}, -2, vcc
        buffer_store_dwordx4 v[{8+4*r}:{11+4*r}], v28, s[48:51], s6 offen {TST}
        s_add_u32 s6, s6, {80*TROW}
        """)
    a.lab("P1_FIN")
    a.stamp(7)
    if OPT["stamp"]:
        a("s_waitcnt vmcnt(0)")
    a.stamp(8)
    a.stamp_flush(9, 48, 16, DBG1_OFF)
    a.lab("P1_END")
    a("s_endpgm")
    return a.text()


L_NCNT = 0; L_FLAG = 256; L_WT = 272
L_SRC = 512; L_POS = L_SRC + 16384; L_GT = L_POS + 16384; L_GM = L_GT + 4096; L_EA = L_GM + 4096
NROW = 50
L_ACC = L_EA + NROW * 256
L_XB = L_ACC + 18432
L_HU = L_XB + 65536
L_PX = L_HU + NROW * 256
P2_LDS = L_PX + 8192
assert P2_LDS <= 163840 and L_ACC + 4 < 65536 and (16 + NROW) * 256 <= 18432
SENT = 0x40000000

V_W = 184
V_Z0 = 64; V_H0 = 80; V_Z1 = 96; V_H1 = 112
V_XA = (128, 28); V_EA = (144, 44, 24, 56)
V_G = 148; V_GR = 152; V_EV = 156
V_SL = 164
V_ACC = (168, 52)
V_XR = 172
V_PS = 176
V_AS = 177; V_AP = 178; V_AG = 179
V_N8 = 181; V_H16 = 182; V_N8H = 183
V_K = (180, 10, 11, 12)
V_GE = 60
V_GM = 48
V_RUN = 16
NE = int(OPT["ne"])


def wfrag(f):
    return f"v[{V_W+4*f}:{V_W+4*f+3}]"


def mf_list(u, Z, H, ph):
    xa = V_XA[ph % 2]; ea = V_EA[ph % NE]
    l = [f"v_mfma_f32_32x32x16_bf16 v[{Z}:{Z+15}], v[{ea}:{ea+3}], {wfrag(16+u)}, 0"]
    for t in range(4):
        l.append(f"v_mfma_f32_32x32x16_bf16 v[{Z}:{Z+15}], v[{xa+4*t}:{xa+4*t+3}], {wfrag(u*4+t)}, v[{Z}:{Z+15}]")
    for t in range(4):
        c = "0" if t == 0 else f"v[{H}:{H+15}]"
        l.append(f"v_mfma_f32_32x32x16_bf16 v[{H}:{H+15}], v[{xa+4*t}:{xa+4*t+3}], {wfrag(8+u*4+t)}, {c}")
    return l


RAMP_POS = {2: 5, 3: 6, 4: 13, 5: 2}


def body(ph, safe, ramp=False):
    out = []
    par = ph % 2
    npar = 1 - par
    PH = OPT["prio_hi"]; PL = OPT["prio_lo"]
    cnt = [0]
    bunch = OPT["bunch"] == "1"

    def lstamp():
        if OPT["stamp"] == "2" and ph == 1:
            out.append(f"s_memtime s[{64+2*cnt[0]}:{65+2*cnt[0]}]")
            cnt[0] += 1

    def trun(instrs, mf, fill):
        lstamp()
        if PH != PL:
            out.append(f"s_setprio {PH}")
        mf = list(mf)
        for k, x in enumerate(instrs):
            out.append(x)
            if k % 3 == 0 and mf:
                out.append(mf.pop(0))
            elif fill:
                if bunch:
                    out.extend(fill); del fill[:]
                else:
                    out.append(fill.pop(0))
        assert not mf
        if PH != PL:
            out.append(f"s_setprio {PL}")

    def half(u, Z, H, mf, fill, preF, postF, fillR, preM, postM):
        ev = lambda i: V_EV + 2 * (i // 4) + u
        if safe:
            if u == 0:
                out.append(("W", "ev3"))
            out.extend(f"v_add_f32 v{Z+i}, v{ev(i)}, v{Z+i}" for i in range(16))
        trun([f"v_exp_f32 v{Z+i}, v{Z+i}" for i in range(16)], mf[:5], fill)
        lstamp()
        out.extend(preF)
        if safe:
            out.extend(f"v_add_f32 v{Z+i}, 1.0, v{Z+i}" for i in range(16))
        else:
            out.extend(f"v_fma_f32 v{Z+i}, v{Z+i}, v{ev(i)}, 1.0" for i in range(16))
        out.extend(postF)
        fill.extend(fillR)
        trun([f"v_rcp_f32 v{Z+i}, v{Z+i}" for i in range(16)], mf[5:], fill)
        assert not fill, fill
        lstamp()
        out.extend(preM)
        A_ = V_ACC[u]
        for g in range(4):
            out.append(f"v_and_b32 v{A_+g}, v{A_+(g+3)%4}, v{V_GM+g}")
            out.extend(f"v_fmac_f32 v{A_+g}, v{Z+4*g+k}, v{H+4*g+k}" for k in range(4))
        out.extend(postM)

    def accw(u):
        return [("L", f"ds_write_b32 v{V_G+g}, v{V_ACC[u]+g} offset:{L_ACC+4*u}", None) for g in range(4)]

    xa = V_XA[npar]
    def eload(k, reg):
        return [f"s_cmp_gt_u32 s21, {k-ph}", "s_cselect_b32 s58, s18, 0",
                ("M", f"buffer_load_dwordx4 v[{V_EA[k%NE]}:{V_EA[k%NE]+3}], v{reg}, s[56:59], 0 offen {OPT['e_pol']}", f"e{k}")]
    if ramp and ph < 2:
        fill = eload(2 + 2 * ph, RAMP_POS[2 + 2 * ph]) + accw(1)
    else:
        fill = eload(ph + NE, V_PS) + accw(1)
    fill.append(("L", f"ds_read_b128 v[{V_GM}:{V_GM+3}], v{V_AG} offset:{L_GM+16*ph}", "gm"))
    preF = [f"v_add_u32 v{V_G+g}, v{V_GR+g}, v{V_N8H}" for g in range(4)] + ([] if safe else [("W", "ev3")])
    fillR = [("V", (f"x{ph+1}_3", f"e{ph+1}"))] if ramp else [f"s_waitcnt vmcnt({5 if NE == 2 else 6})"]
    for t in range(4):
        fillR.append(("L", f"ds_read_b128 v[{xa+4*t}:{xa+4*t+3}], v{V_XR+t} offset:{npar*4096}", f"xa{t}"))
    fillR += [("L", f"ds_read_b128 v[{V_SL}:{V_SL+3}], v{V_AS} offset:{L_SRC+64*(3+ph)}", "sl"),
              ("L", f"ds_read_b128 v[{V_GR}:{V_GR+3}], v{V_AG} offset:{L_GT+16*(1+ph)}", "gr"),
              ("L", f"ds_read_b32 v{V_PS}, v{V_AP} offset:{L_POS+64*(NE+1+ph)}", "pos"),
              "s_cmp_gt_u32 s21, 3", "s_cselect_b32 s38, s19, 0", f"s_add_u32 m0, s20, {npar*4096}"]
    postM = [("W", "sl")] + [f"v_or_b32 v{V_SL+j}, v{V_SL+j}, v{V_K[j]}" for j in range(4)]
    half(0, V_Z0, V_H0, mf_list(1, V_Z1, V_H1, ph), fill, preF, [], fillR, [("W", "gm")], postM)
    fill = []
    aw = accw(0)
    for j in range(4):
        fill.append(("M", f"buffer_load_dwordx4 v{V_SL+j}, s[36:39], 0 offen lds", f"x{ph+3}_{j}"))
        if j < 3:
            fill.append(f"s_add_u32 m0, s20, {npar*4096+(j+1)*1024}")
        fill.append(aw[j])
    if ramp and ph < 2:
        fill += eload(3 + 2 * ph, RAMP_POS[3 + 2 * ph])
    postF = [("W", "pos")] + [f"v_add_u32 v{V_GE+g}, v{V_GR+g}, v{V_N8}" for g in range(4)]
    postF.append(f"v_add_u32 v{V_PS}, v{V_PS}, v{V_H16}")
    fillR = [("L", f"ds_read_b64 v[{V_EV+2*g}:{V_EV+2*g+1}], v{V_GE+g} offset:{L_EA}", f"ev{g}") for g in range(4)]
    half(1, V_Z1, V_H1, mf_list(0, V_Z0, V_H0, ph + 1), fill, [], postF, fillR, [], [])
    lstamp()
    if "nomfma" in OPT["abl"]:
        out = [x for x in out if not (isinstance(x, str) and "mfma" in x)]
    if "novalu" in OPT["abl"]:
        out = [x for x in out if not (isinstance(x, str) and any(k in x for k in ("v_exp", "v_rcp", "v_fma", "v_fmac")))]
    return out


def instrument(items):
    out = []
    for x in items:
        acc = None
        if isinstance(x, str):
            if x.startswith("s_waitcnt vmcnt"): acc = 70
            elif x.startswith("buffer_load") and "lds" not in x: acc = 71
            elif x.startswith("buffer_load"): acc = 72
        if acc:
            out += ["s_memtime s[64:65]", "s_waitcnt lgkmcnt(0)", x, "s_memtime s[66:67]", "s_waitcnt lgkmcnt(0)",
                    "s_sub_u32 s68, s66, s64", f"s_add_u32 s{acc+2*(acc-70)+4-0 if False else {70:70,71:72,72:74}[acc]}, s{ {70:70,71:72,72:74}[acc] }, s68"]
        else:
            out.append(x)
    return out


def resolve(prev, cur, vm=None):
    seq = prev + cur
    res = []
    for i, x in enumerate(seq):
        if i < len(prev):
            continue
        if isinstance(x, str):
            res.append(x)
        elif x[0] == "L":
            res.append(x[1])
        elif x[0] == "M":
            res.append(x[1])
            if vm is not None:
                vm.append(x[2])
        elif x[0] == "V":
            last = max(vm.index(t) for t in x[1])
            res.append(f"s_waitcnt vmcnt({len(vm)-1-last})")
        else:
            n = 0
            k = i - 1
            while not (isinstance(seq[k], tuple) and seq[k][0] == "L" and seq[k][2] == x[1]):
                if isinstance(seq[k], tuple) and seq[k][0] == "L":
                    n += 1
                k -= 1
                assert k >= 0, x
            res.append(f"s_waitcnt lgkmcnt({min(n, 15)})")
    return res


def eld(a, k):
    a(f"""
    s_cmp_gt_u32 s21, {k}
    s_cselect_b32 s58, s18, 0
    v_add_u32 v{V_GE+k}, v{V_GE+k}, v{V_H16}
    buffer_load_dwordx4 v[{V_EA[k]}:{V_EA[k]+3}], v{V_GE+k}, s[56:59], 0 offen {OPT['e_pol']}
    """)


def gen_fill1(a, part):
    if part == 0:
        a(f"""
        ds_read_b128 v[{V_SL}:{V_SL+3}], v{V_AS} offset:{L_SRC}
        ds_read_b32 v{V_GE}, v{V_AP} offset:{L_POS}
        ds_read_b32 v{V_GE+1}, v{V_AP} offset:{L_POS+64}
        ds_read_b128 v[{V_ACC[0]}:{V_ACC[0]+3}], v{V_AS} offset:{L_SRC+64}
        s_waitcnt lgkmcnt(2)
        """)
        eld(a, 0)
        xld(a, 0, V_SL, 0)
        a(f"ds_read_b128 v[{V_SL}:{V_SL+3}], v{V_AS} offset:{L_SRC+128}")
    elif part == 1:
        eld(a, 1)
        xld(a, 1, V_ACC[0], 1)


def xld(a, b, vb, k):
    a(f"s_cmp_gt_u32 s21, {k}\ns_cselect_b32 s38, s19, 0")
    for j in range(4):
        a(f"""
        s_add_u32 m0, s20, {b*4096+j*1024}
        v_or_b32 v{vb+j}, v{vb+j}, v{V_K[j]}
        buffer_load_dwordx4 v{vb+j}, s[36:39], 0 offen lds
        """)


def gen_fill2(a):
    xa = V_XA[0]
    a(f"ds_read_b128 v[{V_GR}:{V_GR+3}], v{V_AG} offset:{L_GT}")
    for k, r in RAMP_POS.items():
        a(f"ds_read_b32 v{r}, v{V_AP} offset:{L_POS+64*k}")
    a(f"""
    v_mov_b32 v{V_ACC[0]+3}, 0
    v_mov_b32 v{V_ACC[1]+3}, 0
    s_waitcnt vmcnt(5)
    """)
    for t in range(4):
        a(f"ds_read_b128 v[{xa+4*t}:{xa+4*t+3}], v{V_XR+t}")
    a("s_waitcnt lgkmcnt(4)")
    for g in range(4):
        a(f"""
        v_add_u32 v{V_GE+g}, v{V_GR+g}, v{V_N8}
        v_add_u32 v{V_G+g}, v{V_GR+g}, v{V_N8H}
        ds_read_b64 v[{V_EV+2*g}:{V_EV+2*g+1}], v{V_GE+g} offset:{L_EA}
        """)
    for k, r in RAMP_POS.items():
        a(f"v_add_u32 v{r}, v{r}, v{V_H16}")
    a("s_waitcnt lgkmcnt(4)")
    for m in mf_list(0, V_Z0, V_H0, 0):
        a(m)
    xld(a, 0, V_SL, 2)
    a("s_waitcnt lgkmcnt(0)\ns_nop 3")


def loop_tail(a, tag, last):
    if not last:
        a(f"""
        s_sub_u32 s21, s21, 1
        s_cmp_eq_u32 s21, 0
        s_cbranch_scc1 P2_FLUSH
        """)
    else:
        a(f"""
        v_add_u32 v{V_AS}, {64*NE}, v{V_AS}
        v_add_u32 v{V_AP}, {64*NE}, v{V_AP}
        v_add_u32 v{V_AG}, {16*NE}, v{V_AG}
        s_sub_u32 s21, s21, 1
        s_cmp_lg_u32 s21, 0
        s_cbranch_scc1 P2_LOOP{tag}
        s_branch P2_FLUSH
        """)


def gen_loop(a, safe, tag):
    bs = [body(p, safe) for p in range(NE)]
    if safe:
        a.lab("P2_SAFE")
        for k in (2, 3):
            a(f"""
            s_cmp_gt_u32 s21, {k}
            s_cselect_b32 s58, s18, 0
            buffer_load_dwordx4 v[{V_EA[k]}:{V_EA[k]+3}], v{RAMP_POS[k]}, s[56:59], 0 offen
            """)
        a(f"v_mov_b32 v{V_PS}, v{RAMP_POS[4]}\ns_waitcnt vmcnt(0)")
    else:
        rb = [body(p, safe, ramp=True) for p in range(NE)]
        vm = ["e0"] + [f"x0_{j}" for j in range(4)] + ["e1"] + [f"x1_{j}" for j in range(4)] + [f"x2_{j}" for j in range(4)]
        for p in range(NE):
            for x in resolve(rb[p - 1], rb[p], vm):
                a(x)
            loop_tail(a, tag, p == NE - 1)
    a.lab(f"P2_LOOP{tag}")
    for p in range(NE):
        rs = resolve(bs[p - 1], bs[p])
        if OPT["stamp"] == "4":
            rs = instrument(rs)
        for x in rs:
            a(x)
        loop_tail(a, tag, p == NE - 1)


def gen_p2():
    a = A()
    VT = 64
    VP = 84
    VR = 104
    VD = 124
    VE = 144
    VF = 200
    VX = 216
    VAP = 184
    a.lab("p2_kernel")
    a(f"""
    s_cmp_ge_u32 s2, {NB}
    s_cbranch_scc1 P2_END
    """)
    a.stamp(0)
    a.stamp3(0)
    if OPT["cpf2"] != "0":
        a("s_getpc_b64 s[52:53]")
        a.lab("P2_PC")
        a(f"""
        s_mov_b32 s54, P2_END-P2_PC
        s_mov_b32 s55, 0x20000
        v_lshlrev_b32 v28, 7, v0
        buffer_load_dword v29, v28, s[52:55], 0 offen
        """)
    a(f"""
    s_load_dwordx4 s[16:19], s[0:1], 0
    s_load_dwordx2 s[12:13], s[0:1], 56
    s_load_dwordx2 s[34:35], s[0:1], 72
    s_and_b32 s4, s2, 7
    s_lshl_b32 s4, s4, 5
    s_lshr_b32 s5, s2, 3
    s_add_u32 s4, s4, s5
    v_and_b32 v1, 63, v0
    v_lshrrev_b32 v5, 6, v0
    v_lshlrev_b32 v3, 4, v0
    v_lshlrev_b32 v4, 2, v0
    v_readfirstlane_b32 s3, v5
    s_mul_i32 s8, s4, {TROW}
    s_add_u32 s8, s8, {T_OFF}
    s_mul_i32 s6, s4, {NPB*128}
    v_and_b32 v56, 31, v1
    v_lshrrev_b32 v57, 5, v1
    v_and_b32 v58, 7, v1
    v_lshlrev_b32 v59, 2, v57
    v_xor_b32 v58, v58, v59
    v_lshlrev_b32 v{V_K[0]}, 4, v58
    s_waitcnt lgkmcnt(0)
    """)
    a.stamp3(1)
    a.srd(40, 34, 35, WS_SIZE)
    for k in range(NK):
        a(f"buffer_load_dwordx4 v[{VT+4*k}:{VT+4*k+3}], v3, s[40:43], s8 offen\ns_add_u32 s8, s8, 8192")
    a.srd(36, 16, 17, N * 128)
    a.srd(56, 18, 19, E * 32)
    if OPT["epf2"] != "0":
        f1 = 625 * int(OPT["epf1"]) // 8
        a(f"""
        v_add_u32 v60, {f1}, v0
        v_cmp_gt_u32 vcc, 625, v60
        v_lshlrev_b32 v60, 7, v60
        s_mul_i32 s9, s2, {CH*32}
        s_mov_b64 exec, vcc
        buffer_load_dword v61, v60, s[56:59], s9 offen {OPT['epf_pol']}
        s_add_u32 s9, s9, {256*CH*32}
        buffer_load_dword v61, v60, s[56:59], s9 offen {OPT['epf_pol']}
        s_mov_b64 exec, -1
        """)
    if OPT["xpf"] == "2":
        a(f"""
        s_mul_i32 s9, s5, {391*128}
        v_lshlrev_b32 v26, 7, v0
        v_cmp_gt_u32 vcc, 391, v0
        s_mov_b64 exec, vcc
        buffer_load_dword v28, v26, s[36:39], s9 offen
        s_mov_b64 exec, -1
        """)
    a(f"""
    s_add_u32 s44, s12, s6
    s_addc_u32 s45, s13, 0
    s_sub_u32 s46, {N*128}, s6
    s_min_u32 s46, s46, {NPB*128}
    s_mov_b32 s47, 0x20000
    s_mov_b32 s19, {0 if "nox" in OPT["abl"] else N*128}
    s_mov_b32 s18, {0 if "noe" in OPT["abl"] else E*32}
    """)
    NLD = 0
    a.stamp3(2)
    a(f"""
    s_lshl_b32 s20, s3, 13
    s_add_u32 s20, s20, {L_XB}
    v_lshlrev_b32 v{V_N8}, 3, v56
    v_lshlrev_b32 v{V_H16}, 4, v57
    v_lshrrev_b32 v58, 5, v0
    v_lshl_add_u32 v{V_N8H}, v58, 8, v{V_N8}
    v_xor_b32 v{V_K[1]}, 16, v{V_K[0]}
    v_xor_b32 v{V_K[2]}, 32, v{V_K[0]}
    v_xor_b32 v{V_K[3]}, 48, v{V_K[0]}
    v_and_b32 v58, 3, v56
    v_lshrrev_b32 v59, 2, v56
    v_lshl_add_u32 v59, v58, 3, v59
    v_lshlrev_b32 v59, 7, v59
    v_add_u32 v59, s20, v59
    v_lshrrev_b32 v60, 4, v56
    v_lshl_add_u32 v58, v60, 2, v58
    v_xor_b32 v58, v58, v57
    """)
    for t in range(4):
        a(f"""
        v_xor_b32 v60, {2*t}, v58
        v_lshl_add_u32 v{V_XR+t}, v60, 4, v59
        """)
    for k in range(8):
        a(f"v_mov_b32 v{V_RUN+k}, 0")
    a(f"""
    ds_write_b32 v{V_RUN}, v{V_RUN} offset:{L_FLAG}
    s_mov_b32 s23, 0
    s_mov_b32 s24, 0
    s_mov_b32 s25, 0
    s_mov_b32 s15, 0
    """)
    a.lab("P2_ROUND")
    a(f"""
    v_mov_b32 v32, {SENT}
    v_mov_b32 v33, {SENT}
    v_mov_b32 v34, {SENT}
    v_mov_b32 v35, {SENT}
    ds_write_b128 v3, v[32:35] offset:{L_SRC}
    ds_write_b128 v3, v[32:35] offset:{L_SRC+8192}
    ds_write_b128 v3, v[32:35] offset:{L_POS}
    ds_write_b128 v3, v[32:35] offset:{L_POS+8192}
    v_mov_b32 v36, {(NROW-1)*256}
    v_mov_b32 v37, {(NROW-1)*256}
    v_lshlrev_b32 v40, 3, v0
    ds_write_b64 v40, v[36:37] offset:{L_GT}
    v_mov_b32 v38, -1
    v_mov_b32 v39, -1
    ds_write_b64 v40, v[38:39] offset:{L_GM}
    v_mov_b32 v41, 0
    v_and_b32 v42, 0xfc, v4
    ds_write_b32 v42, v41 offset:{L_NCNT}
    v_mov_b32 v43, 1
    s_cmp_lg_u32 s24, 0
    s_cbranch_scc1 P2_SLOW
    """)
    a(f"""
    v_lshrrev_b32 v44, 3, v0
    v_mul_u32_u24 v13, {CH}, v44
    """)
    a.stamp3(3)
    a("s_waitcnt lgkmcnt(0)\ns_barrier")
    a.stamp3(4)
    for k in range(NK):
        a(f"s_waitcnt vmcnt({NK-1-k+(2 if OPT['epf2'] != '0' else 0)+(1 if OPT['xpf'] == '2' else 0)})")
        if k == 0:
            a.stamp(1)
        if k < 4:
            a.stamp3(5 + k)
        a(f"""
        v_cmp_eq_u32 vcc, -2, v{VT+4*k}
        s_cbranch_vccz P2_NOOVF{k}
        ds_or_b32 v41, v43 offset:{L_FLAG}
        s_branch P2_A_LD
        """)
        a.lab(f"P2_NOOVF{k}")
        for pos in range(4):
            j = 4 * k + pos
            a(f"v_cmpx_ne_u32 vcc, -1, v{VT+j}")
            if pos >= 2:
                a(f"s_cbranch_execz P2_A{k}")
            a(f"""
            v_bfe_u32 v{VD+j}, v{VT+j}, 14, 6
            v_lshlrev_b32 v{VD+j}, 2, v{VD+j}
            ds_add_rtn_u32 v{VR+j}, v{VD+j}, v43 offset:{L_NCNT}
            v_lshrrev_b32 v{VP+j}, 20, v{VT+j}
            v_add_lshl_u32 v{VP+j}, v{VP+j}, v13, 5
            v_and_b32 v{VE+j}, 0x3fff, v{VT+j}
            v_lshlrev_b32 v{VE+j}, 7, v{VE+j}
            """)
        a.lab(f"P2_A{k}")
        a(f"""
        s_mov_b64 exec, -1
        v_add_u32 v13, {64*CH}, v13
        """)
    a.lab("P2_A_LD")
    a("s_mov_b64 exec, -1")
    if OPT["xpf"] == "1":
        a(f"""
        s_mul_i32 s9, s5, {391*128}
        v_lshlrev_b32 v26, 7, v0
        v_cmp_gt_u32 vcc, 391, v0
        s_mov_b64 exec, vcc
        buffer_load_dword v28, v26, s[36:39], s9 offen
        s_mov_b64 exec, -1
        """)
    a(f"""
    s_and_b32 s9, s3, 3
    s_lshl_b32 s10, s9, 4
    v_xor_b32 v26, s10, v{V_K[0]}
    v_lshrrev_b32 v27, 3, v1
    v_lshl_add_u32 v26, v27, 9, v26
    s_lshr_b32 s10, s3, 2
    s_lshl_b32 s10, s10, 12
    s_lshl_b32 s11, s9, 7
    s_add_u32 s10, s10, s11
    s_add_u32 s10, s10, s6
    s_lshl_b32 s11, s3, 10
    s_add_u32 m0, s11, {L_PX}
    v_lshlrev_b32 v27, 4, v1
    buffer_load_dwordx4 v26, s[36:39], s10 offen lds
    s_add_u32 m0, s11, {L_ACC}
    s_add_u32 s10, s11, {WF_OFF}
    buffer_load_dwordx4 v27, s[40:43], s10 offen lds
    s_add_u32 m0, s11, {L_ACC+8192}
    s_add_u32 s10, s11, {WF_OFF+8192}
    buffer_load_dwordx4 v27, s[40:43], s10 offen lds
    s_and_b32 s11, s11, 0x400
    s_add_u32 m0, s11, {L_ACC+16384}
    s_add_u32 s10, s11, {WF_OFF+16384}
    buffer_load_dwordx4 v27, s[40:43], s10 offen lds
    s_lshl_b32 s9, s9, 12
    s_add_u32 s9, s9, {WF_OFF+18*1024}
    """)
    for t in range(4):
        a(f"buffer_load_dwordx4 v[{VF+4*t}:{VF+4*t+3}], v27, s[40:43], s9 offen offset:{1024*t}")
    a("s_branch P2_A_DONE")
    L_PREF = L_XB
    a.lab("P2_SLOW")
    a(f"""
    v_add_u32 v44, {L_PREF}, v4
    ds_write_b32 v44, v14
    ds_write_b32 v44, v9 offset:2048
    ds_write_b32 v44, v15 offset:4096
    s_waitcnt lgkmcnt(0)
    s_barrier
    """)
    for j in range(4 * NK):
        a(f"v_mov_b32 v{VT+j}, -1")
    for j in range(JS):
        a(f"""
        s_add_u32 s10, s23, {512*j}
        v_add_u32 v44, s10, v0
        v_cmp_gt_u32 vcc, s24, v44
        s_and_saveexec_b64 s[10:11], vcc
        s_cbranch_execz P2_A_DONE
        v_mov_b32 v45, {L_PREF}
        s_mov_b32 s12, 1024
        """)
        a.lab(f"P2_BS{j}")
        a(f"""
        v_add_u32 v46, s12, v45
        ds_read_b32 v47, v46
        s_waitcnt lgkmcnt(0)
        v_cmp_le_u32 vcc, v47, v44
        s_lshr_b32 s12, s12, 1
        s_cmp_ge_u32 s12, 4
        v_cndmask_b32 v45, v45, v46, vcc
        s_cbranch_scc1 P2_BS{j}
        ds_read_b32 v46, v45
        ds_read_b32 v47, v45 offset:2048
        ds_read_b32 v45, v45 offset:4096
        s_waitcnt lgkmcnt(0)
        v_sub_u32 v46, v44, v46
        v_add_lshl_u32 v46, v47, v46, 2
        s_mov_b32 s12, {ENT_OFF}
        buffer_load_dword v{VT+j}, v46, s[40:43], s12 offen
        s_waitcnt vmcnt(0)
        v_bfe_u32 v{VD+j}, v{VT+j}, 14, 6
        v_lshlrev_b32 v{VD+j}, 2, v{VD+j}
        ds_add_rtn_u32 v{VR+j}, v{VD+j}, v43 offset:{L_NCNT}
        v_lshrrev_b32 v{VP+j}, 20, v{VT+j}
        v_add_lshl_u32 v{VP+j}, v{VP+j}, v45, 5
        v_and_b32 v{VE+j}, 0x3fff, v{VT+j}
        v_lshlrev_b32 v{VE+j}, 7, v{VE+j}
        """)
    a.lab("P2_A_DONE")
    a("s_mov_b64 exec, -1")
    a.stamp3(9)
    a(f"""
    v_lshlrev_b32 v44, 2, v1
    s_waitcnt lgkmcnt(0)
    s_barrier
    """)
    a.stamp3(10)
    a.stamp(2)
    a(f"""
    ds_read_b32 v45, v44 offset:{L_NCNT}
    ds_read_b32 v47, v41 offset:{L_FLAG}
    s_waitcnt lgkmcnt(0)
    v_add_u32 v32, 3, v45
    v_and_b32 v32, -4, v32
    v_mov_b32 v33, v32
    v_readfirstlane_b32 s14, v47
    """)
    a.wave_scan(33)
    a(f"""
    s_nop 0
    v_readlane_b32 s12, v33, 63
    v_add_u32 v34, -1, v33
    v_sub_u32 v33, v33, v32
    s_cmp_lg_u32 s24, 0
    s_cbranch_scc1 P2_CHK_DONE
    s_and_b32 s14, s14, 1
    s_cmp_gt_u32 s12, {SLOTS}
    s_cselect_b32 s14, 1, s14
    s_cmp_eq_u32 s14, 0
    s_cbranch_scc1 P2_CHK_DONE
    """)
    a(f"""
    v_cmp_gt_u32 vcc, {NCH}, v0
    s_mov_b64 s[10:11], vcc
    v_mul_u32_u24 v15, {CH}, v0
    v_lshlrev_b32 v44, 10, v0
    s_lshl_b32 s12, s4, 2
    s_add_u32 s12, s12, {HDR_OFF}
    buffer_load_dword v45, v44, s[40:43], s12 offen
    s_waitcnt vmcnt(0)
    v_lshrrev_b32 v46, 16, v45
    v_cndmask_b32 v46, 0, v46, s[10:11]
    v_and_b32 v45, 0xffff, v45
    v_add_u32 v9, v15, v45
    v_mov_b32 v14, v46
    """)
    a.wave_scan(14)
    a(f"""
    s_nop 0
    v_readlane_b32 s10, v14, 63
    s_lshl_b32 s11, s3, 2
    v_mov_b32 v44, s11
    s_nop 0
    v_mov_b32 v45, s10
    ds_write_b32 v44, v45 offset:{L_WT}
    s_waitcnt lgkmcnt(0)
    s_barrier
    v_and_b32 v44, 7, v1
    v_lshlrev_b32 v45, 2, v44
    ds_read_b32 v45, v45 offset:{L_WT}
    v_cmp_gt_u32 vcc, s3, v44
    v_cmp_gt_u32 s[10:11], 8, v1
    s_waitcnt lgkmcnt(0)
    v_cndmask_b32 v45, 0, v45, s[10:11]
    s_nop 1
    v_cndmask_b32 v47, 0, v45, vcc
    """)
    a.wave_scan(45, full=False)
    a.wave_scan(47, full=False)
    a(f"""
    s_nop 0
    v_readlane_b32 s24, v45, 15
    v_readlane_b32 s10, v47, 15
    v_sub_u32 v14, v14, v46
    s_nop 0
    v_add_u32 v14, s10, v14
    s_branch P2_ROUND
    """)
    a.lab("P2_CHK_DONE")
    for k in range(NK):
        for pos in range(4):
            j = 4 * k + pos
            if pos == 2:
                a(f"v_cmp_ne_u32 vcc, -1, v{VT+j}\ns_cbranch_vccz P2_B1_{k}")
            a(f"ds_bpermute_b32 v{VD+j}, v{VD+j}, v33")
        a.lab(f"P2_B1_{k}")
    a(f"""
    s_add_u32 s12, s12, 31
    s_lshr_b32 s12, s12, 5
    s_add_u32 s21, s12, 7
    s_sub_u32 s21, s21, s3
    s_lshr_b32 s21, s21, 3
    s_lshr_b32 s13, s12, 3
    s_and_b32 s14, s12, 7
    """)
    a(f"""
    s_mul_i32 s10, s3, s13
    s_min_u32 s11, s3, s14
    s_add_u32 s10, s10, s11
    s_lshl_b32 s10, s10, 7
    s_lshl_b32 s11, s21, 6
    v_bfe_u32 v53, v1, 3, 1
    v_mul_u32_u24 v53, s11, v53
    v_lshrrev_b32 v54, 4, v1
    v_lshl_add_u32 v53, v54, 4, v53
    v_add_u32 v{V_AS}, s10, v53
    v_bfe_u32 v53, v1, 2, 1
    v_mul_u32_u24 v53, s11, v53
    v_bfe_u32 v54, v1, 3, 2
    v_lshl_add_u32 v53, v54, 4, v53
    v_and_b32 v54, 3, v1
    v_lshl_add_u32 v53, v54, 2, v53
    v_add_u32 v{V_AP}, s10, v53
    v_lshrrev_b32 v53, 5, v1
    v_mul_u32_u24 v53, s11, v53
    v_add_u32 v53, s10, v53
    v_lshrrev_b32 v{V_AG}, 2, v53
    s_waitcnt lgkmcnt(0)
    """)
    a.stamp3(11)
    for k in range(NK):
        for pos in range(4):
            j = 4 * k + pos
            a(f"v_cmpx_ne_u32 vcc, -1, v{VT+j}")
            if pos >= 2:
                a(f"s_cbranch_execz P2_B2_{k}")
            a(f"""
            v_add_lshl_u32 v{VR+j}, v{VR+j}, v{VD+j}, 2
            ds_write2st64_b32 v{VR+j}, v{VE+j}, v{VP+j} offset0:{L_SRC//256} offset1:{L_POS//256}
            """)
        a.lab(f"P2_B2_{k}")
        a("s_mov_b64 exec, -1")
    a.stamp3(12)
    a.stamp(3)
    a("s_waitcnt vmcnt(0) lgkmcnt(0)")
    a.stamp(4)
    a("s_barrier")
    a.stamp(5)
    a.stamp3(13)
    if OPT["stamp"] == "1":
        a("s_memtime s[82:83]\ns_mov_b32 s86, s21")
    if "nomain" in OPT["abl"]:
        a("s_mov_b32 s21, 0")
    a.stamp5(0)
    gen_fill1(a, 0)
    a.stamp5(1)
    a(f"""
    s_lshl_b32 s10, s3, 2
    v_add_u32 v64, s10, v33
    v_add_u32 v65, v33, v32
    v_lshlrev_b32 v66, 8, v1
    s_cmp_eq_u32 s3, 0
    s_cselect_b32 s11, 0, -1
    v_mov_b32 v67, s11
    """)
    a.lab("P2_G_L")
    a(f"""
    v_cmpx_lt_u32 vcc, v64, v65
    s_cbranch_execz P2_G_DONE
    ds_write2st64_b32 v64, v66, v67 offset0:{L_GT//256} offset1:{L_GM//256}
    v_add_u32 v64, 32, v64
    v_mov_b32 v67, -1
    s_branch P2_G_L
    """)
    a.lab("P2_G_DONE")
    a("s_mov_b64 exec, -1")
    a(f"""
    s_cmp_lg_u32 s25, 0
    s_cbranch_scc1 P2_PREP_A
    s_lshr_b32 s9, s3, 2
    s_lshl_b32 s10, s9, 12
    s_add_u32 s10, s10, {L_PX}
    s_sub_u32 s10, s10, s20
    """)
    for t in range(4):
        a(f"""
        v_add_u32 v{64+t}, s10, v{V_XR+t}
        ds_read_b128 v[{VX+4*t}:{VX+4*t+3}], v{64+t}
        """)
    a(f"""
    s_lshl_b32 s9, s9, 13
    s_and_b32 s10, s3, 1
    s_lshl_b32 s10, s10, 2
    s_add_u32 s9, s9, s10
    v_lshl_add_u32 v2, v{V_H16}, 6, v{V_N8}
    v_add_u32 v2, s9, v2
    s_waitcnt lgkmcnt(0)
    """)
    for t in range(4):
        c = "0" if t == 0 else f"v[{VAP}:{VAP+15}]"
        a(f"v_mfma_f32_32x32x16_bf16 v[{VAP}:{VAP+15}], v[{VX+4*t}:{VX+4*t+3}], v[{VF+4*t}:{VF+4*t+3}], {c}")
    a.lab("P2_PREP_A")
    a(f"""
    s_add_u32 s10, s13, 1
    s_mul_i32 s11, s14, s10
    s_lshl_b32 s11, s11, 1
    v_cvt_f32_u32 v68, s10
    v_cvt_f32_u32 v69, s13
    v_rcp_f32 v68, v68
    v_rcp_f32 v69, v69
    s_lshl_b32 s10, s14, 1
    v_lshrrev_b32 v64, 4, v33
    v_bfe_u32 v65, v34, 4, 9
    """)
    for v in (64, 65):
        a(f"""
        v_cmp_gt_u32 vcc, s11, v{v}
        v_subrev_u32 v70, s11, v{v}
        s_nop 0
        v_cndmask_b32 v70, v70, v{v}, vcc
        v_cndmask_b32 v71, v69, v68, vcc
        v_cvt_f32_u32 v70, v70
        v_add_f32 v70, 0.5, v70
        v_mul_f32 v70, v70, v71
        v_cvt_u32_f32 v70, v70
        v_add_u32 v71, s10, v70
        v_cndmask_b32 v{v}, v71, v70, vcc
        """)
    a(f"""
    v_sub_u32 v65, v65, v64
    v_add_u32 v65, 1, v65
    v_cmp_ne_u32 vcc, 0, v32
    v_lshrrev_b32 v66, 4, v0
    v_lshlrev_b32 v66, 2, v66
    v_cndmask_b32 v65, 0, v65, vcc
    v_and_b32 v64, 15, v64
    v_lshl_or_b32 v65, v64, 8, v65
    v_add_u32 v67, 128, v66
    ds_bpermute_b32 v7, v66, v65
    ds_bpermute_b32 v8, v67, v65
    s_cmp_lg_u32 s25, 0
    s_cbranch_scc1 P2_PREP_SKIP
    s_bitcmp1_b32 s3, 1
    s_cbranch_scc1 P2_HU
    """)

    def dwrites(base):
        a("s_cmp_ge_u32 s3, 4\ns_cbranch_scc1 " + f"P2_DW1_{base}")
        for i in range(16):
            a(f"ds_write_b32 v2, v{VAP+i} offset:{base+(8*(i//4)+i%4)*256}")
        a(f"s_branch P2_DW2_{base}")
        a.lab(f"P2_DW1_{base}")
        for i in range(8):
            a(f"ds_write_b32 v2, v{VAP+i} offset:{base+(8*(i//4)+i%4)*256}")
        a("s_mov_b32 exec_hi, 0")
        for i in (8, 9):
            a(f"ds_write_b32 v2, v{VAP+i} offset:{base+(8*(i//4)+i%4)*256}")
        a("s_mov_b64 exec, -1")
        a.lab(f"P2_DW2_{base}")

    for i in range(16):
        a(f"v_mul_f32 v{VAP+i}, {NLOG2E:#x}, v{VAP+i}")
    a(f"v_max3_f32 v64, abs(v{VAP}), abs(v{VAP+1}), abs(v{VAP+2})")
    for i in range(3, 15, 2):
        a(f"v_max3_f32 v64, abs(v{VAP+i}), abs(v{VAP+i+1}), v64")
    a(f"""
    v_max_f32 v64, abs(v{VAP+15}), v64
    v_mov_b32 v65, 0x42700000
    v_cmp_lt_f32 s[10:11], v65, v64
    """)
    for i in range(0, 16, 2):
        a(f"""
        v_cmp_u_f32 vcc, v{VAP+i}, v{VAP+i+1}
        s_or_b64 s[10:11], s[10:11], vcc
        """)
    a(f"""
    s_cmp_eq_u64 s[10:11], 0
    s_cbranch_scc1 P2_EA_W
    v_mov_b32 v65, 2
    ds_or_b32 v41, v65 offset:{L_FLAG}
    s_branch P2_EA_W
    """)
    a.lab("P2_HU")
    a(f"v_add_u32 v2, {L_HU}, v2")
    for i in range(16):
        a(f"v_cvt_pk_bf16_f32 v{VAP+i}, v{VAP+i}, v{VAP+i}")
    for i in range(16):
        a(f"v_and_b32 v{VAP+i}, 0xffff0000, v{VAP+i}")
    dwrites(0)
    a.lab("P2_EA_W")
    a(f"""
    v_lshlrev_b32 v64, 4, v1
    v_add_u32 v64, {L_ACC}, v64
    """)
    for f in range(4, 18):
        a(f"ds_read_b128 {wfrag(f)}, v64 offset:{1024*f}")
    a.stamp5(2)
    a(f"""
    s_waitcnt lgkmcnt(0)
    s_barrier
    ds_read_b32 v65, v41 offset:{L_FLAG}
    """)
    a.stamp5(3)
    if OPT['fsplit'] == '1':
        gen_fill1(a, 1)
    a.stamp5(4)
    a(f"""
    s_waitcnt lgkmcnt(0)
    v_readfirstlane_b32 s15, v65
    s_lshr_b32 s15, s15, 1
    s_bitcmp1_b32 s3, 1
    s_cbranch_scc1 P2_EA3
    s_cmp_lg_u32 s15, 0
    s_cbranch_scc1 P2_EA2_W
    """)
    for k in range(16):
        a(f"v_exp_f32 v{VAP+k}, v{VAP+k}")
    a("s_nop 0")
    a.lab("P2_EA2_W")
    dwrites(L_EA)
    a.lab("P2_EA3")
    for f in range(4):
        a(f"ds_read_b128 {wfrag(f)}, v64 offset:{1024*f}")
    a("s_mov_b32 s25, 1")
    a("s_branch P2_PREP_DONE")
    a.lab("P2_PREP_SKIP")
    if OPT['fsplit'] == '1':
        a("s_waitcnt lgkmcnt(0)")
        gen_fill1(a, 1)
    a.lab("P2_PREP_DONE")
    a.stamp5(5)
    a(f"""
    s_waitcnt lgkmcnt(0)
    s_barrier
    """)
    a.stamp5(6)
    a.stamp5(7)
    a.stamp3(14)
    a(f"""
    s_cmp_eq_u32 s21, 0
    s_cbranch_scc1 P2_MAIN_DONE
    """)
    gen_fill2(a)
    a.stamp(14)
    if OPT["stamp"] == "4":
        a("s_mov_b32 s70, 0\ns_mov_b32 s72, 0\ns_mov_b32 s74, 0\ns_memtime s[76:77]\ns_mov_b32 s80, s21")
    a(f"""
    s_cmp_lg_u32 s15, 0
    s_cbranch_scc1 P2_SAFE
    """)
    gen_loop(a, False, "F")
    gen_loop(a, True, "S")
    a.lab("P2_FLUSH")
    for g in range(4):
        a(f"ds_write_b32 v{V_G+g}, v{V_ACC[1]+g} offset:{L_ACC+4}")
    a.lab("P2_MAIN_DONE")
    if OPT["stamp"] == "4":
        a("s_memtime s[78:79]")
    a.stamp(6)
    if OPT["stamp"] == "1":
        a("s_memtime s[84:85]\ns_getreg_b32 s88, hwreg(HW_REG_HW_ID)\ns_getreg_b32 s90, hwreg(HW_REG_XCC_ID)")
    a(f"""
    s_waitcnt vmcnt(0) lgkmcnt(0)
    s_barrier
    """)
    a.stamp(7)
    for h in range(2):
        a(f"""
        v_and_b32 v24, 0xff, v{7+h}
        v_and_b32 v25, 0xff00, v{7+h}
        v_add_u32 v25, v25, v3
        v_add_u32 v25, {L_ACC+8192*h}, v25
        """)
        a.lab(f"P2_FOLD{h}")
        a(f"""
        v_cmpx_lt_u32 vcc, 0, v24
        s_cbranch_execz P2_FOLD_DONE{h}
        ds_read_b128 v[32:35], v25
        v_add_u32 v24, -1, v24
        v_add_u32 v25, 0x100, v25
        s_waitcnt lgkmcnt(0)
        v_add_f32 v{V_RUN+4*h}, v{V_RUN+4*h}, v32
        v_add_f32 v{V_RUN+4*h+1}, v{V_RUN+4*h+1}, v33
        v_add_f32 v{V_RUN+4*h+2}, v{V_RUN+4*h+2}, v34
        v_add_f32 v{V_RUN+4*h+3}, v{V_RUN+4*h+3}, v35
        s_branch P2_FOLD{h}
        """)
        a.lab(f"P2_FOLD_DONE{h}")
        a("s_mov_b64 exec, -1")
    a(f"""
    s_add_u32 s23, s23, {512*JS}
    s_cmp_lt_u32 s23, s24
    s_cbranch_scc1 P2_ROUND
    v_lshrrev_b32 v5, 4, v0
    v_and_b32 v6, 15, v0
    v_lshlrev_b32 v5, 7, v5
    v_lshl_add_u32 v5, v6, 2, v5
    v_add_u32 v6, 0x1000, v5
    """)
    for h in range(2):
        R = V_RUN + 4 * h
        a(f"""
        v_add_u32 v24, {L_HU+8192*h}, v3
        ds_read_b128 v[32:35], v24
        v_cvt_pk_bf16_f32 v36, v{R}, v{R+2}
        v_cvt_pk_bf16_f32 v37, v{R+1}, v{R+3}
        v_lshlrev_b32 v28, 16, v36
        v_and_b32 v30, 0xffff0000, v36
        v_lshlrev_b32 v29, 16, v37
        v_and_b32 v31, 0xffff0000, v37
        s_waitcnt lgkmcnt(0)
        v_add_f32 v28, v28, v32
        v_add_f32 v29, v29, v33
        v_add_f32 v30, v30, v34
        v_add_f32 v31, v31, v35
        v_cvt_pk_bf16_f32 v36, v28, v30
        v_cvt_pk_bf16_f32 v37, v29, v31
        v_lshlrev_b32 v28, 16, v36
        v_and_b32 v30, 0xffff0000, v36
        v_lshlrev_b32 v29, 16, v37
        v_and_b32 v31, 0xffff0000, v37
        """)
        for k in range(4):
            a(f"v_mul_f32 v{32+k}, {NLOG2E:#x}, v{28+k}")
        for k in range(4):
            a(f"v_exp_f32 v{32+k}, v{32+k}")
        for k in range(4):
            a(f"v_add_f32 v{32+k}, 1.0, v{32+k}")
        for k in range(4):
            a(f"v_rcp_f32 v{32+k}, v{32+k}")
        for k in range(4):
            a(f"v_mul_f32 v{28+k}, v{28+k}, v{32+k}")
        a(f"""
        v_cvt_pk_bf16_f32 v{38+2*h}, v28, v30
        v_cvt_pk_bf16_f32 v{39+2*h}, v29, v31
        buffer_store_dword v{38+2*h}, v{5+h}, s[44:47], 0 offen
        buffer_store_dword v{39+2*h}, v{5+h}, s[44:47], 0 offen offset:64
        """)
    a.stamp(8)
    a.stamp_flush(15, 40, 8, DBG2_OFF)
    a.lab("P2_END")
    a("s_endpgm")
    return a.text()


HEAD = open("standalone__edge_featured_mpnn_egc__graph.s.ref").read().split("; Override launch")[0]


def kd(name, vgpr, sgpr):
    acc = (vgpr + 3) // 4 * 4
    return f""".amdhsa_kernel {name}
  .amdhsa_next_free_vgpr {vgpr}
  .amdhsa_next_free_sgpr {sgpr}
  .amdhsa_accum_offset {acc}
  .amdhsa_group_segment_fixed_size 0
  .amdhsa_kernarg_size 80
  .amdhsa_user_sgpr_count 2
  .amdhsa_user_sgpr_kernarg_segment_ptr 1
  .amdhsa_system_sgpr_workgroup_id_x 1
.end_amdhsa_kernel
"""


def main():
    out = HEAD
    out += f"; @launch kernel=p1_kernel grid=({NCH},1,1) block=(704,1,1) lds={P1_LDS}\n"
    out += f"; @launch kernel=p2_kernel grid=({NB},1,1) block=(512,1,1) lds={P2_LDS}\n"
    out += '.amdgcn_target "amdgcn-amd-amdhsa--gfx950"\n.text\n'
    out += ".globl p1_kernel\n.p2align 8\n.type p1_kernel,@function\n" + gen_p1()
    out += ".globl p2_kernel\n.p2align 8\n.type p2_kernel,@function\n" + gen_p2()
    out += '.section .rodata,"a"\n.p2align 6\n' + kd("p1_kernel", 64, 100) + ".p2align 6\n" + kd("p2_kernel", 256, 100)
    open(sys.argv[1], "w").write(out)


main()
```

```python
import sys

N = 12500; E = 800000
NCH = 320; CH = 2500
NK = NCH // 64
TROW = NCH * 128
NB = 256; NPB = 49; MUL = 21400
SUBN = 16
SLOTS = 4096
JS = 7
NLOG2E = 0xBFB8AA3B

T_OFF = 0x0
ENT_OFF = 0xA00000
HDR_OFF = 0xE00000
WF_OFF = 0xE80000
DBG1_OFF = 0x2C00000
DBG2_OFF = 0x2D00000
WS_SIZE = 0x3000000
NFRAG = 34

OPT = dict(p1_store="", p1_tstore="", p1_ld="nt", abl="", stamp="", prio_hi="1", prio_lo="0", xpf="0",
           p1_sched="[[0,1],[2,3],[4,5],[6]]", bunch="1", ne="4", e_pol="", epf1="0", epf2="0", epf_pol="", cpf="16", fsplit="1", cpf2="1", cpf1="0", kr_fake="0", tpf="0")
for a_ in sys.argv[2:]:
    k_, v_ = a_.split("=")
    OPT[k_] = v_


class A:
    def __init__(self):
        self.l = []

    def __call__(self, s):
        for x in s.strip().split("\n"):
            self.l.append("    " + x.strip())

    def lab(self, s):
        self.l.append(s + ":")

    def srd(self, d, lo, hi, nrec, add=None):
        if add is None:
            self(f"s_mov_b32 s{d}, s{lo}\ns_mov_b32 s{d+1}, s{hi}")
        else:
            self(f"s_add_u32 s{d}, s{lo}, {add}\ns_addc_u32 s{d+1}, s{hi}, 0")
        self(f"s_mov_b32 s{d+2}, {nrec}\ns_mov_b32 s{d+3}, 0x20000")

    def wave_scan(self, v, full=True):
        for sh in (1, 2, 4, 8):
            self("s_nop 1")
            self(f"v_add_u32_dpp v{v}, v{v}, v{v} row_shr:{sh} row_mask:0xf bank_mask:0xf bound_ctrl:0")
        if full:
            self("s_nop 1")
            self(f"v_add_u32_dpp v{v}, v{v}, v{v} row_bcast:15 row_mask:0xa bank_mask:0xf")
            self("s_nop 1")
            self(f"v_add_u32_dpp v{v}, v{v}, v{v} row_bcast:31 row_mask:0xc bank_mask:0xf")

    def stamp(self, k):
        if OPT["stamp"] == "1":
            self(f"s_memrealtime s[{64+2*k}:{65+2*k}]")

    def stamp5(self, k):
        if OPT["stamp"] == "5":
            self(f"s_memtime s[{64+2*k}:{65+2*k}]")

    def stamp3(self, k):
        if OPT["stamp"] == "3":
            self(f"s_memtime s[{64+2*k}:{65+2*k}]")

    def stamp_flush(self, n, srd, nw, base):
        if not OPT["stamp"]:
            return
        self(f"""
        s_waitcnt lgkmcnt(0)
        s_mov_b64 exec, -1
        s_mul_i32 s10, s2, {nw}
        s_add_u32 s10, s10, s3
        s_lshl_b32 s10, s10, 6
        s_add_u32 s10, s10, {base}
        v_mov_b32 v1, 0
        """)
        for k in range(n):
            self(f"v_mov_b32 v2, s{64+2*k}\nbuffer_store_dword v2, v1, s[{srd}:{srd+3}], s10 offen offset:{4*k}\ns_nop 1")

    def text(self):
        return "\n".join(self.l) + "\n"


def sub_dl(j):
    return (1 if j < 10 else 8) + (j % 10) // 5, 6 * (j % 5)


def sub_src(j):
    return (3 if j < 10 else 10) + (j % 10) // 2, 16 * (j % 2)


P1_HIST = 0; P1_TI = 1024
P1_LDS = P1_TI + 32768


def gen_p1():
    a = A()
    ST = OPT["p1_store"]; TST = OPT["p1_tstore"]; LD = OPT["p1_ld"]
    a.lab("p1_kernel")
    a(f"""
    s_cmp_ge_u32 s2, {NCH}
    s_cbranch_scc1 P1_END
    """)
    a.stamp(0)
    if OPT["cpf1"] != "0":
        a("s_getpc_b64 s[52:53]")
        a.lab("P1_PC0")
        a(f"""
        s_mov_b32 s54, P1_END-P1_PC0
        s_mov_b32 s55, 0x20000
        v_lshlrev_b32 v62, 7, v0
        buffer_load_dword v63, v62, s[52:55], 0 offen
        """)
    a(f"""
    s_load_dwordx16 s[16:31], s[0:1], 0
    s_load_dwordx4 s[32:35], s[0:1], 64
    v_and_b32 v1, 63, v0
    v_lshrrev_b32 v5, 6, v0
    v_lshlrev_b32 v2, 4, v0
    v_lshlrev_b32 v3, 2, v0
    v_readfirstlane_b32 s3, v5
    v_lshlrev_b32 v4, 4, v1
    v_mov_b32 v6, 0
    v_and_b32 v7, 0x3fc, v3
    ds_write_b32 v7, v6 offset:{P1_HIST}
    s_mul_i32 s4, s2, {CH*4}
    v_and_b32 v24, 31, v1
    v_lshrrev_b32 v25, 5, v1
    s_waitcnt lgkmcnt(0)
    """)
    a.srd(44, 22, 23, CH * 4, "s4")
    a.srd(40, 20, 21, CH * 4, "s4")
    a(f"""
    buffer_load_dwordx4 v[8:11], v2, s[44:47], 0 offen {LD}
    buffer_load_dwordx4 v[12:15], v2, s[40:43], 0 offen {LD}
    """)
    if OPT["epf1"] != "0":
        nl = 625 * int(OPT["epf1"]) // 8
        a(f"s_mul_i32 s5, s2, {CH*32}")
        a.srd(36, 18, 19, nl * 128, "s5")
        a(f"v_lshlrev_b32 v60, 7, v0\nbuffer_load_dword v61, v60, s[36:39], 0 offen {OPT['epf_pol']}")
    a.srd(48, 34, 35, WS_SIZE)
    a.srd(56, 28, 29, 2048 - 64)
    a(f"""
    v_lshlrev_b32 v26, 10, v25
    v_lshl_add_u32 v26, v24, 1, v26
    s_mov_b32 s14, 1.0
    s_cmp_lg_u32 s3, 10
    s_cbranch_scc1 P1_FL_DONE
    s_cmp_ge_u32 s2, {NFRAG}
    s_cbranch_scc1 P1_FL_DONE
    s_sub_u32 s5, s2, 2
    s_cmp_ge_u32 s2, 18
    s_cselect_b32 s5, s5, s2
    s_and_b32 s6, s5, 3
    s_lshl_b32 s6, s6, 11
    s_lshr_b32 s7, s5, 2
    s_and_b32 s7, s7, 1
    s_lshl_b32 s7, s7, 6
    s_add_u32 s6, s6, s7
    s_cmp_ge_u32 s2, 8
    s_cbranch_scc1 P1_FL1
    s_add_u32 s6, s6, 8192
    s_mov_b32 s14, {NLOG2E}
    s_branch P1_FL3
    """)
    a.lab("P1_FL1")
    a(f"""
    s_cmp_ge_u32 s2, 16
    s_cbranch_scc1 P1_FL2
    s_mov_b32 s56, s26
    s_mov_b32 s57, s27
    s_branch P1_FL3
    """)
    a.lab("P1_FL2")
    a(f"""
    s_cmp_ge_u32 s2, 26
    s_cselect_b32 s56, s24, s28
    s_cselect_b32 s57, s25, s29
    s_cmp_ge_u32 s2, 18
    s_cbranch_scc1 P1_FL3
    s_mov_b32 s14, {NLOG2E}
    s_and_b32 s6, s2, 1
    s_lshl_b32 s6, s6, 6
    s_add_u32 s6, s6, 16384
    """)
    a.lab("P1_FL3")
    a(f"""
    s_add_u32 s56, s56, s6
    s_addc_u32 s57, s57, 0
    """)
    for jj in range(8):
        a(f"buffer_load_ushort v{40+jj}, v26, s[56:59], 0 offen offset:{jj*128}")
    a("s_waitcnt vmcnt(0)")
    for jj in range(8):
        a(f"v_lshlrev_b32 v{40+jj}, 16, v{40+jj}")
    for jj in range(8):
        a(f"v_mul_f32 v{40+jj}, s14, v{40+jj}")
    for q in range(4):
        a(f"v_cvt_pk_bf16_f32 v{48+q}, v{40+2*q}, v{40+2*q+1}")
    a(f"""
    s_lshl_b32 s6, s2, 10
    s_add_u32 s6, s6, {WF_OFF}
    buffer_store_dwordx4 v[48:51], v4, s[48:51], s6 offen
    s_endpgm
    """)
    a.lab("P1_FL_DONE")
    if OPT["cpf"] != "0":
        a(f"""
        s_cmp_lg_u32 s3, 10
        s_cbranch_scc1 P1_CPF_DONE
        s_cmp_ge_u32 s2, {64+int(OPT["cpf"])}
        s_cbranch_scc1 P1_END
        s_getpc_b64 s[52:53]
        """)
        a.lab("P1_PC")
        a(f"""
        s_add_u32 s52, s52, p2_kernel-P1_PC
        s_addc_u32 s53, s53, 0
        s_mov_b32 s54, P2_END-p2_kernel
        s_mov_b32 s55, 0x20000
        v_lshlrev_b32 v40, 6, v1
        """)
        for k in range(6):
            a(f"buffer_load_dword v41, v40, s[52:55], 0 offen\nv_add_u32 v40, 0x1000, v40")
        if OPT["tpf"] != "0":
            sh = int(OPT["tpf"])
            a.srd(36, 18, 19, E * 32)
            a(f"v_lshlrev_b32 v40, {sh}, v1")
            for k in range(-(-E * 32 // (64 << sh))):
                a(f"buffer_load_dword v41, v40, s[36:39], 0 offen\nv_add_u32 v40, {64 << sh}, v40")
            a(f"v_lshlrev_b32 v40, {min(sh, 15)}, v1")
            a.srd(36, 16, 17, N * 128)
            a("buffer_load_dword v41, v40, s[36:39], 0 offen")
            a.srd(36, 30, 31, N * 128)
            a("buffer_load_dword v41, v40, s[36:39], 0 offen")
        a("s_endpgm")
        a.lab("P1_CPF_DONE")
    a(f"""
    s_cmp_ge_u32 s3, 10
    s_cbranch_scc1 P1_END
    v_mov_b32 v40, -1
    v_mov_b32 v41, -1
    v_mov_b32 v42, -1
    v_mov_b32 v43, -1
    ds_write_b128 v2, v[40:43] offset:{P1_TI}
    ds_write_b128 v2, v[40:43] offset:{P1_TI+10240}
    ds_write_b128 v2, v[40:43] offset:{P1_TI+20480}
    v_min_u32 v44, {127*16}, v2
    ds_write_b128 v44, v[40:43] offset:{P1_TI+30720}
    v_cmp_gt_u32 vcc, {CH//4}, v0
    s_mov_b64 s[8:9], vcc
    v_mov_b32 v30, 1
    v_lshrrev_b32 v7, 3, v0
    v_lshlrev_b32 v6, 2, v7
    v_and_b32 v27, 7, v0
    s_lshl_b32 s6, s2, 7
    s_add_u32 s6, s6, {T_OFF}
    v_mul_u32_u24 v28, {TROW}, v7
    v_lshl_or_b32 v28, v27, 4, v28
    s_waitcnt lgkmcnt(0)
    s_barrier
    s_waitcnt vmcnt(1)
    """)
    a.stamp(1)
    a("s_mov_b64 exec, s[8:9]")
    for e in range(4):
        a(f"""
        v_mul_u32_u24 v{16+e}, {MUL}, v{8+e}
        v_lshrrev_b32 v31, 20, v{16+e}
        v_lshlrev_b32 v{16+e}, 2, v31
        ds_add_rtn_u32 v{20+e}, v{16+e}, v30 offset:{P1_HIST}
        v_mul_u32_u24 v31, {NPB}, v31
        v_sub_u32 v{8+e}, v{8+e}, v31
        """)
    a("s_waitcnt vmcnt(0)")
    for e in range(4):
        a(f"""
        v_lshl_or_b32 v{36+e}, v{8+e}, 14, v{12+e}
        v_add_u32 v31, {e}, v3
        v_lshl_or_b32 v{36+e}, v31, 20, v{36+e}
        """)
    a.stamp(2)
    for e in range(4):
        a(f"""
        s_waitcnt lgkmcnt(3)
        v_and_b32 v31, 7, v{20+e}
        v_lshlrev_b32 v31, 4, v31
        v_lshl_add_u32 v{16+e}, v{16+e}, 5, v31
        v_lshrrev_b32 v31, 3, v{20+e}
        v_cmp_gt_u32 vcc, 32, v{20+e}
        v_lshl_add_u32 v{16+e}, v31, 2, v{16+e}
        s_and_b64 exec, s[8:9], vcc
        ds_write_b32 v{16+e}, v{36+e} offset:{P1_TI}
        s_mov_b64 exec, s[8:9]
        """)
    a("s_mov_b64 exec, -1\ns_waitcnt lgkmcnt(0)")
    a.stamp(3)
    a("s_barrier")
    a.stamp(4)
    a.stamp(5)
    a.stamp(6)
    for r in range(4):
        a(f"""
        ds_read_b32 v{44+r}, v6 offset:{P1_HIST+320*r}
        ds_read_b128 v[{8+4*r}:{11+4*r}], v2 offset:{P1_TI+10240*r}
        """)
    for r in range(4):
        if r == 3:
            a(f"""
            s_cmp_ge_u32 s3, 2
            s_cbranch_scc1 P1_FIN
            """)
        a(f"""
        s_waitcnt lgkmcnt({7-2*r})
        v_cmp_lt_u32 vcc, 32, v{44+r}
        s_waitcnt lgkmcnt({6-2*r})
        s_nop 0
        v_cndmask_b32 v{8+4*r}, v{8+4*r}, -2, vcc
        buffer_store_dwordx4 v[{8+4*r}:{11+4*r}], v28, s[48:51], s6 offen {TST}
        s_add_u32 s6, s6, {80*TROW}
        """)
    a.lab("P1_FIN")
    a.stamp(7)
    if OPT["stamp"]:
        a("s_waitcnt vmcnt(0)")
    a.stamp(8)
    a.stamp_flush(9, 48, 16, DBG1_OFF)
    a.lab("P1_END")
    a("s_endpgm")
    return a.text()


L_NCNT = 0; L_FLAG = 256; L_WT = 272
L_SRC = 512; L_POS = L_SRC + 16384; L_GT = L_POS + 16384; L_GM = L_GT + 4096; L_EA = L_GM + 4096
NROW = 50
L_ACC = L_EA + NROW * 256
L_XB = L_ACC + 18432
L_HU = L_XB + 65536
L_PX = L_HU + NROW * 256
P2_LDS = L_PX + 8192
assert P2_LDS <= 163840 and L_ACC + 4 < 65536 and (16 + NROW) * 256 <= 18432
SENT = 0x40000000

V_W = 184
V_Z0 = 64; V_H0 = 80; V_Z1 = 96; V_H1 = 112
V_XA = (128, 28); V_EA = (144, 44, 24, 56)
V_G = 148; V_GR = 152; V_EV = 156
V_SL = 164
V_ACC = (168, 52)
V_XR = 172
V_PS = 176
V_AS = 177; V_AP = 178; V_AG = 179
V_N8 = 181; V_H16 = 182; V_N8H = 183
V_K = (180, 10, 11, 12)
V_GE = 60
V_GM = 48
V_RUN = 16
NE = int(OPT["ne"])


def wfrag(f):
    return f"v[{V_W+4*f}:{V_W+4*f+3}]"


def mf_list(u, Z, H, ph):
    xa = V_XA[ph % 2]; ea = V_EA[ph % NE]
    l = [f"v_mfma_f32_32x32x16_bf16 v[{Z}:{Z+15}], v[{ea}:{ea+3}], {wfrag(16+u)}, 0"]
    for t in range(4):
        l.append(f"v_mfma_f32_32x32x16_bf16 v[{Z}:{Z+15}], v[{xa+4*t}:{xa+4*t+3}], {wfrag(u*4+t)}, v[{Z}:{Z+15}]")
    for t in range(4):
        c = "0" if t == 0 else f"v[{H}:{H+15}]"
        l.append(f"v_mfma_f32_32x32x16_bf16 v[{H}:{H+15}], v[{xa+4*t}:{xa+4*t+3}], {wfrag(8+u*4+t)}, {c}")
    return l


RAMP_POS = {2: 5, 3: 6, 4: 13, 5: 2}


def body(ph, safe, ramp=False):
    out = []
    par = ph % 2
    npar = 1 - par
    PH = OPT["prio_hi"]; PL = OPT["prio_lo"]
    cnt = [0]
    bunch = OPT["bunch"] == "1"

    def lstamp():
        if OPT["stamp"] == "2" and ph == 1:
            out.append(f"s_memtime s[{64+2*cnt[0]}:{65+2*cnt[0]}]")
            cnt[0] += 1

    def trun(instrs, mf, fill):
        lstamp()
        if PH != PL:
            out.append(f"s_setprio {PH}")
        mf = list(mf)
        for k, x in enumerate(instrs):
            out.append(x)
            if k % 3 == 0 and mf:
                out.append(mf.pop(0))
            elif fill:
                if bunch:
                    out.extend(fill); del fill[:]
                else:
                    out.append(fill.pop(0))
        assert not mf
        if PH != PL:
            out.append(f"s_setprio {PL}")

    def half(u, Z, H, mf, fill, preF, postF, fillR, preM, postM):
        ev = lambda i: V_EV + 2 * (i // 4) + u
        if safe:
            if u == 0:
                out.append(("W", "ev3"))
            out.extend(f"v_add_f32 v{Z+i}, v{ev(i)}, v{Z+i}" for i in range(16))
        trun([f"v_exp_f32 v{Z+i}, v{Z+i}" for i in range(16)], mf[:5], fill)
        lstamp()
        out.extend(preF)
        if safe:
            out.extend(f"v_add_f32 v{Z+i}, 1.0, v{Z+i}" for i in range(16))
        else:
            out.extend(f"v_fma_f32 v{Z+i}, v{Z+i}, v{ev(i)}, 1.0" for i in range(16))
        out.extend(postF)
        fill.extend(fillR)
        trun([f"v_rcp_f32 v{Z+i}, v{Z+i}" for i in range(16)], mf[5:], fill)
        assert not fill, fill
        lstamp()
        out.extend(preM)
        A_ = V_ACC[u]
        for g in range(4):
            out.append(f"v_and_b32 v{A_+g}, v{A_+(g+3)%4}, v{V_GM+g}")
            out.extend(f"v_fmac_f32 v{A_+g}, v{Z+4*g+k}, v{H+4*g+k}" for k in range(4))
        out.extend(postM)

    def accw(u):
        return [("L", f"ds_write_b32 v{V_G+g}, v{V_ACC[u]+g} offset:{L_ACC+4*u}", None) for g in range(4)]

    xa = V_XA[npar]
    def eload(k, reg):
        return [f"s_cmp_gt_u32 s21, {k-ph}", "s_cselect_b32 s58, s18, 0",
                ("M", f"buffer_load_dwordx4 v[{V_EA[k%NE]}:{V_EA[k%NE]+3}], v{reg}, s[56:59], 0 offen {OPT['e_pol']}", f"e{k}")]
    if ramp and ph < 2:
        fill = eload(2 + 2 * ph, RAMP_POS[2 + 2 * ph]) + accw(1)
    else:
        fill = eload(ph + NE, V_PS) + accw(1)
    fill.append(("L", f"ds_read_b128 v[{V_GM}:{V_GM+3}], v{V_AG} offset:{L_GM+16*ph}", "gm"))
    preF = [f"v_add_u32 v{V_G+g}, v{V_GR+g}, v{V_N8H}" for g in range(4)] + ([] if safe else [("W", "ev3")])
    fillR = [("V", (f"x{ph+1}_3", f"e{ph+1}"))] if ramp else [f"s_waitcnt vmcnt({5 if NE == 2 else 6})"]
    for t in range(4):
        fillR.append(("L", f"ds_read_b128 v[{xa+4*t}:{xa+4*t+3}], v{V_XR+t} offset:{npar*4096}", f"xa{t}"))
    fillR += [("L", f"ds_read_b128 v[{V_SL}:{V_SL+3}], v{V_AS} offset:{L_SRC+64*(3+ph)}", "sl"),
              ("L", f"ds_read_b128 v[{V_GR}:{V_GR+3}], v{V_AG} offset:{L_GT+16*(1+ph)}", "gr"),
              ("L", f"ds_read_b32 v{V_PS}, v{V_AP} offset:{L_POS+64*(NE+1+ph)}", "pos"),
              "s_cmp_gt_u32 s21, 3", "s_cselect_b32 s38, s19, 0", f"s_add_u32 m0, s20, {npar*4096}"]
    postM = [("W", "sl")] + [f"v_or_b32 v{V_SL+j}, v{V_SL+j}, v{V_K[j]}" for j in range(4)]
    half(0, V_Z0, V_H0, mf_list(1, V_Z1, V_H1, ph), fill, preF, [], fillR, [("W", "gm")], postM)
    fill = []
    aw = accw(0)
    for j in range(4):
        fill.append(("M", f"buffer_load_dwordx4 v{V_SL+j}, s[36:39], 0 offen lds", f"x{ph+3}_{j}"))
        if j < 3:
            fill.append(f"s_add_u32 m0, s20, {npar*4096+(j+1)*1024}")
        fill.append(aw[j])
    if ramp and ph < 2:
        fill += eload(3 + 2 * ph, RAMP_POS[3 + 2 * ph])
    postF = [("W", "pos")] + [f"v_add_u32 v{V_GE+g}, v{V_GR+g}, v{V_N8}" for g in range(4)]
    postF.append(f"v_add_u32 v{V_PS}, v{V_PS}, v{V_H16}")
    fillR = [("L", f"ds_read_b64 v[{V_EV+2*g}:{V_EV+2*g+1}], v{V_GE+g} offset:{L_EA}", f"ev{g}") for g in range(4)]
    half(1, V_Z1, V_H1, mf_list(0, V_Z0, V_H0, ph + 1), fill, [], postF, fillR, [], [])
    lstamp()
    if "nomfma" in OPT["abl"]:
        out = [x for x in out if not (isinstance(x, str) and "mfma" in x)]
    if "novalu" in OPT["abl"]:
        out = [x for x in out if not (isinstance(x, str) and any(k in x for k in ("v_exp", "v_rcp", "v_fma", "v_fmac")))]
    return out


def instrument(items):
    out = []
    for x in items:
        acc = None
        if isinstance(x, str):
            if x.startswith("s_waitcnt vmcnt"): acc = 70
            elif x.startswith("buffer_load") and "lds" not in x: acc = 71
            elif x.startswith("buffer_load"): acc = 72
        if acc:
            out += ["s_memtime s[64:65]", "s_waitcnt lgkmcnt(0)", x, "s_memtime s[66:67]", "s_waitcnt lgkmcnt(0)",
                    "s_sub_u32 s68, s66, s64", f"s_add_u32 s{acc+2*(acc-70)+4-0 if False else {70:70,71:72,72:74}[acc]}, s{ {70:70,71:72,72:74}[acc] }, s68"]
        else:
            out.append(x)
    return out


def resolve(prev, cur, vm=None):
    seq = prev + cur
    res = []
    for i, x in enumerate(seq):
        if i < len(prev):
            continue
        if isinstance(x, str):
            res.append(x)
        elif x[0] == "L":
            res.append(x[1])
        elif x[0] == "M":
            res.append(x[1])
            if vm is not None:
                vm.append(x[2])
        elif x[0] == "V":
            last = max(vm.index(t) for t in x[1])
            res.append(f"s_waitcnt vmcnt({len(vm)-1-last})")
        else:
            n = 0
            k = i - 1
            while not (isinstance(seq[k], tuple) and seq[k][0] == "L" and seq[k][2] == x[1]):
                if isinstance(seq[k], tuple) and seq[k][0] == "L":
                    n += 1
                k -= 1
                assert k >= 0, x
            res.append(f"s_waitcnt lgkmcnt({min(n, 15)})")
    return res


def eld(a, k):
    a(f"""
    s_cmp_gt_u32 s21, {k}
    s_cselect_b32 s58, s18, 0
    v_add_u32 v{V_GE+k}, v{V_GE+k}, v{V_H16}
    buffer_load_dwordx4 v[{V_EA[k]}:{V_EA[k]+3}], v{V_GE+k}, s[56:59], 0 offen {OPT['e_pol']}
    """)


def gen_fill1(a, part):
    if part == 0:
        a(f"""
        ds_read_b128 v[{V_SL}:{V_SL+3}], v{V_AS} offset:{L_SRC}
        ds_read_b32 v{V_GE}, v{V_AP} offset:{L_POS}
        ds_read_b32 v{V_GE+1}, v{V_AP} offset:{L_POS+64}
        ds_read_b128 v[{V_ACC[0]}:{V_ACC[0]+3}], v{V_AS} offset:{L_SRC+64}
        s_waitcnt lgkmcnt(2)
        """)
        eld(a, 0)
        xld(a, 0, V_SL, 0)
        a(f"ds_read_b128 v[{V_SL}:{V_SL+3}], v{V_AS} offset:{L_SRC+128}")
    elif part == 1:
        eld(a, 1)
        xld(a, 1, V_ACC[0], 1)


def xld(a, b, vb, k):
    a(f"s_cmp_gt_u32 s21, {k}\ns_cselect_b32 s38, s19, 0")
    for j in range(4):
        a(f"""
        s_add_u32 m0, s20, {b*4096+j*1024}
        v_or_b32 v{vb+j}, v{vb+j}, v{V_K[j]}
        buffer_load_dwordx4 v{vb+j}, s[36:39], 0 offen lds
        """)


def gen_fill2(a):
    xa = V_XA[0]
    a(f"ds_read_b128 v[{V_GR}:{V_GR+3}], v{V_AG} offset:{L_GT}")
    for k, r in RAMP_POS.items():
        a(f"ds_read_b32 v{r}, v{V_AP} offset:{L_POS+64*k}")
    a(f"""
    v_mov_b32 v{V_ACC[0]+3}, 0
    v_mov_b32 v{V_ACC[1]+3}, 0
    s_waitcnt vmcnt(5)
    """)
    for t in range(4):
        a(f"ds_read_b128 v[{xa+4*t}:{xa+4*t+3}], v{V_XR+t}")
    a("s_waitcnt lgkmcnt(4)")
    for g in range(4):
        a(f"""
        v_add_u32 v{V_GE+g}, v{V_GR+g}, v{V_N8}
        v_add_u32 v{V_G+g}, v{V_GR+g}, v{V_N8H}
        ds_read_b64 v[{V_EV+2*g}:{V_EV+2*g+1}], v{V_GE+g} offset:{L_EA}
        """)
    for k, r in RAMP_POS.items():
        a(f"v_add_u32 v{r}, v{r}, v{V_H16}")
    a("s_waitcnt lgkmcnt(4)")
    for m in mf_list(0, V_Z0, V_H0, 0):
        a(m)
    xld(a, 0, V_SL, 2)
    a("s_waitcnt lgkmcnt(0)\ns_nop 3")


def loop_tail(a, tag, last):
    if not last:
        a(f"""
        s_sub_u32 s21, s21, 1
        s_cmp_eq_u32 s21, 0
        s_cbranch_scc1 P2_FLUSH
        """)
    else:
        a(f"""
        v_add_u32 v{V_AS}, {64*NE}, v{V_AS}
        v_add_u32 v{V_AP}, {64*NE}, v{V_AP}
        v_add_u32 v{V_AG}, {16*NE}, v{V_AG}
        s_sub_u32 s21, s21, 1
        s_cmp_lg_u32 s21, 0
        s_cbranch_scc1 P2_LOOP{tag}
        s_branch P2_FLUSH
        """)


def gen_loop(a, safe, tag):
    bs = [body(p, safe) for p in range(NE)]
    if safe:
        a.lab("P2_SAFE")
        for k in (2, 3):
            a(f"""
            s_cmp_gt_u32 s21, {k}
            s_cselect_b32 s58, s18, 0
            buffer_load_dwordx4 v[{V_EA[k]}:{V_EA[k]+3}], v{RAMP_POS[k]}, s[56:59], 0 offen
            """)
        a(f"v_mov_b32 v{V_PS}, v{RAMP_POS[4]}\ns_waitcnt vmcnt(0)")
    else:
        rb = [body(p, safe, ramp=True) for p in range(NE)]
        vm = ["e0"] + [f"x0_{j}" for j in range(4)] + ["e1"] + [f"x1_{j}" for j in range(4)] + [f"x2_{j}" for j in range(4)]
        for p in range(NE):
            for x in resolve(rb[p - 1], rb[p], vm):
                a(x)
            loop_tail(a, tag, p == NE - 1)
    a.lab(f"P2_LOOP{tag}")
    for p in range(NE):
        rs = resolve(bs[p - 1], bs[p])
        if OPT["stamp"] == "4":
            rs = instrument(rs)
        for x in rs:
            a(x)
        loop_tail(a, tag, p == NE - 1)


def gen_p2():
    a = A()
    VT = 64
    VP = 84
    VR = 104
    VD = 124
    VE = 144
    VF = 200
    VX = 216
    VAP = 184
    a.lab("p2_kernel")
    a(f"""
    s_cmp_ge_u32 s2, {NB}
    s_cbranch_scc1 P2_END
    """)
    a.stamp(0)
    a.stamp3(0)
    if OPT["cpf2"] != "0":
        a("s_getpc_b64 s[52:53]")
        a.lab("P2_PC")
        a(f"""
        s_mov_b32 s54, P2_END-P2_PC
        s_mov_b32 s55, 0x20000
        v_lshlrev_b32 v28, 7, v0
        buffer_load_dword v29, v28, s[52:55], 0 offen
        """)
    a(f"""
    s_load_dwordx4 s[16:19], s[0:1], 0
    s_load_dwordx4 s[28:31], s[0:1], 16
    s_load_dwordx2 s[12:13], s[0:1], 56
    s_load_dwordx2 s[34:35], s[0:1], 72
    s_and_b32 s4, s2, 7
    s_lshl_b32 s4, s4, 5
    s_lshr_b32 s5, s2, 3
    s_add_u32 s4, s4, s5
    v_and_b32 v1, 63, v0
    v_lshrrev_b32 v5, 6, v0
    v_lshlrev_b32 v3, 4, v0
    v_lshlrev_b32 v4, 2, v0
    v_readfirstlane_b32 s3, v5
    s_mul_i32 s8, s4, {TROW}
    s_add_u32 s8, s8, {T_OFF}
    s_mul_i32 s6, s4, {NPB*128}
    v_and_b32 v56, 31, v1
    v_lshrrev_b32 v57, 5, v1
    v_and_b32 v58, 7, v1
    v_lshlrev_b32 v59, 2, v57
    v_xor_b32 v58, v58, v59
    v_lshlrev_b32 v{V_K[0]}, 4, v58
    s_waitcnt lgkmcnt(0)
    """)
    a.stamp3(1)
    a.srd(40, 34, 35, WS_SIZE)
    for k in range(NK):
        a(f"buffer_load_dwordx4 v[{VT+4*k}:{VT+4*k+3}], v3, s[40:43], s8 offen\ns_add_u32 s8, s8, 8192")
    a.srd(36, 16, 17, N * 128)
    a.srd(56, 18, 19, E * 32)
    if OPT["epf2"] != "0":
        f1 = 625 * int(OPT["epf1"]) // 8
        a(f"""
        v_add_u32 v60, {f1}, v0
        v_cmp_gt_u32 vcc, 625, v60
        v_lshlrev_b32 v60, 7, v60
        s_mul_i32 s9, s2, {CH*32}
        s_mov_b64 exec, vcc
        buffer_load_dword v61, v60, s[56:59], s9 offen {OPT['epf_pol']}
        s_add_u32 s9, s9, {256*CH*32}
        buffer_load_dword v61, v60, s[56:59], s9 offen {OPT['epf_pol']}
        s_mov_b64 exec, -1
        """)
    if OPT["xpf"] == "2":
        a(f"""
        s_mul_i32 s9, s5, {391*128}
        v_lshlrev_b32 v26, 7, v0
        v_cmp_gt_u32 vcc, 391, v0
        s_mov_b64 exec, vcc
        buffer_load_dword v28, v26, s[36:39], s9 offen
        s_mov_b64 exec, -1
        """)
    a(f"""
    s_add_u32 s44, s12, s6
    s_addc_u32 s45, s13, 0
    s_sub_u32 s46, {N*128}, s6
    s_min_u32 s46, s46, {NPB*128}
    s_mov_b32 s47, 0x20000
    s_mov_b32 s19, {0 if "nox" in OPT["abl"] else N*128}
    s_mov_b32 s18, {0 if "noe" in OPT["abl"] else E*32}
    """)
    NLD = 0
    a.stamp3(2)
    a(f"""
    s_lshl_b32 s20, s3, 13
    s_add_u32 s20, s20, {L_XB}
    v_lshlrev_b32 v{V_N8}, 3, v56
    v_lshlrev_b32 v{V_H16}, 4, v57
    v_lshrrev_b32 v58, 5, v0
    v_lshl_add_u32 v{V_N8H}, v58, 8, v{V_N8}
    v_xor_b32 v{V_K[1]}, 16, v{V_K[0]}
    v_xor_b32 v{V_K[2]}, 32, v{V_K[0]}
    v_xor_b32 v{V_K[3]}, 48, v{V_K[0]}
    v_and_b32 v58, 3, v56
    v_lshrrev_b32 v59, 2, v56
    v_lshl_add_u32 v59, v58, 3, v59
    v_lshlrev_b32 v59, 7, v59
    v_add_u32 v59, s20, v59
    v_lshrrev_b32 v60, 4, v56
    v_lshl_add_u32 v58, v60, 2, v58
    v_xor_b32 v58, v58, v57
    """)
    for t in range(4):
        a(f"""
        v_xor_b32 v60, {2*t}, v58
        v_lshl_add_u32 v{V_XR+t}, v60, 4, v59
        """)
    for k in range(8):
        a(f"v_mov_b32 v{V_RUN+k}, 0")
    a(f"""
    ds_write_b32 v{V_RUN}, v{V_RUN} offset:{L_FLAG}
    s_mov_b32 s23, 0
    s_mov_b32 s24, 0
    s_mov_b32 s25, 0
    s_mov_b32 s15, 0
    """)
    a.lab("P2_ROUND")
    a(f"""
    v_mov_b32 v32, {SENT}
    v_mov_b32 v33, {SENT}
    v_mov_b32 v34, {SENT}
    v_mov_b32 v35, {SENT}
    ds_write_b128 v3, v[32:35] offset:{L_SRC}
    ds_write_b128 v3, v[32:35] offset:{L_SRC+8192}
    ds_write_b128 v3, v[32:35] offset:{L_POS}
    ds_write_b128 v3, v[32:35] offset:{L_POS+8192}
    v_mov_b32 v36, {(NROW-1)*256}
    v_mov_b32 v37, {(NROW-1)*256}
    v_lshlrev_b32 v40, 3, v0
    ds_write_b64 v40, v[36:37] offset:{L_GT}
    v_mov_b32 v38, -1
    v_mov_b32 v39, -1
    ds_write_b64 v40, v[38:39] offset:{L_GM}
    v_mov_b32 v41, 0
    v_and_b32 v42, 0xfc, v4
    ds_write_b32 v42, v41 offset:{L_NCNT}
    v_mov_b32 v43, 1
    s_cmp_lg_u32 s24, 0
    s_cbranch_scc1 P2_SLOW
    """)
    a(f"""
    v_lshrrev_b32 v44, 3, v0
    v_mul_u32_u24 v13, {CH}, v44
    """)
    a.stamp3(3)
    a("s_waitcnt lgkmcnt(0)\ns_barrier")
    a.stamp3(4)
    for k in range(NK):
        a(f"s_waitcnt vmcnt({NK-1-k+(2 if OPT['epf2'] != '0' else 0)+(1 if OPT['xpf'] == '2' else 0)})")
        if k == 0:
            a.stamp(1)
        if k < 4:
            a.stamp3(5 + k)
        a(f"""
        v_cmp_eq_u32 vcc, -2, v{VT+4*k}
        s_cbranch_vccz P2_NOOVF{k}
        ds_or_b32 v41, v43 offset:{L_FLAG}
        s_branch P2_A_LD
        """)
        a.lab(f"P2_NOOVF{k}")
        for pos in range(4):
            j = 4 * k + pos
            a(f"v_cmpx_ne_u32 vcc, -1, v{VT+j}")
            if pos >= 2:
                a(f"s_cbranch_execz P2_A{k}")
            a(f"""
            v_bfe_u32 v{VD+j}, v{VT+j}, 14, 6
            v_lshlrev_b32 v{VD+j}, 2, v{VD+j}
            ds_add_rtn_u32 v{VR+j}, v{VD+j}, v43 offset:{L_NCNT}
            v_lshrrev_b32 v{VP+j}, 20, v{VT+j}
            v_add_lshl_u32 v{VP+j}, v{VP+j}, v13, 5
            v_and_b32 v{VE+j}, 0x3fff, v{VT+j}
            v_lshlrev_b32 v{VE+j}, 7, v{VE+j}
            """)
        a.lab(f"P2_A{k}")
        a(f"""
        s_mov_b64 exec, -1
        v_add_u32 v13, {64*CH}, v13
        """)
    a.lab("P2_A_LD")
    a("s_mov_b64 exec, -1")
    if OPT["xpf"] == "1":
        a(f"""
        s_mul_i32 s9, s5, {391*128}
        v_lshlrev_b32 v26, 7, v0
        v_cmp_gt_u32 vcc, 391, v0
        s_mov_b64 exec, vcc
        buffer_load_dword v28, v26, s[36:39], s9 offen
        s_mov_b64 exec, -1
        """)
    a(f"""
    s_and_b32 s9, s3, 3
    s_lshl_b32 s10, s9, 4
    v_xor_b32 v26, s10, v{V_K[0]}
    v_lshrrev_b32 v27, 3, v1
    v_lshl_add_u32 v26, v27, 9, v26
    s_lshr_b32 s10, s3, 2
    s_lshl_b32 s10, s10, 12
    s_lshl_b32 s11, s9, 7
    s_add_u32 s10, s10, s11
    s_add_u32 s10, s10, s6
    s_lshl_b32 s11, s3, 10
    s_add_u32 m0, s11, {L_PX}
    v_lshlrev_b32 v27, 4, v1
    buffer_load_dwordx4 v26, s[36:39], s10 offen lds
    s_add_u32 m0, s11, {L_ACC}
    s_add_u32 s10, s11, {WF_OFF}
    buffer_load_dwordx4 v27, s[40:43], s10 offen lds
    s_add_u32 m0, s11, {L_ACC+8192}
    s_add_u32 s10, s11, {WF_OFF+8192}
    buffer_load_dwordx4 v27, s[40:43], s10 offen lds
    s_and_b32 s11, s11, 0x400
    s_add_u32 m0, s11, {L_ACC+16384}
    s_add_u32 s10, s11, {WF_OFF+16384}
    buffer_load_dwordx4 v27, s[40:43], s10 offen lds
    s_lshl_b32 s9, s9, 12
    s_add_u32 s9, s9, {WF_OFF+18*1024}
    """)
    for t in range(4):
        a(f"buffer_load_dwordx4 v[{VF+4*t}:{VF+4*t+3}], v27, s[40:43], s9 offen offset:{1024*t}")
    a("s_branch P2_A_DONE")
    QCAP = 512 * JS
    a.lab("P2_SLOW")
    a.srd(48, 30, 31, E * 4)
    a.srd(52, 28, 29, E * 4)
    a(f"""
    ds_write_b32 v41, v41 offset:{L_WT}
    s_mul_i32 s26, s4, {NPB}
    v_mov_b32 v13, {L_XB}
    s_waitcnt lgkmcnt(0)
    s_barrier
    """)
    a.lab("P2_SCAN")
    a(f"""
    s_lshl_b32 s10, s23, 2
    v_add_u32 v45, s23, v0
    buffer_load_dword v44, v4, s[48:51], s10 offen
    v_cmp_gt_u32 vcc, {E}, v45
    s_mov_b64 s[10:11], vcc
    s_waitcnt vmcnt(0)
    v_subrev_u32 v44, s26, v44
    v_cmp_gt_u32 vcc, {NPB}, v44
    s_and_b64 exec, vcc, s[10:11]
    ds_add_rtn_u32 v46, v41, v43 offset:{L_WT}
    s_waitcnt lgkmcnt(0)
    v_lshl_add_u32 v46, v46, 2, v13
    ds_write_b32 v46, v45
    s_mov_b64 exec, -1
    s_add_u32 s23, s23, 512
    s_waitcnt lgkmcnt(0)
    s_barrier
    ds_read_b32 v46, v41 offset:{L_WT}
    s_waitcnt lgkmcnt(0)
    v_readfirstlane_b32 s27, v46
    s_barrier
    s_cmp_gt_u32 s27, {QCAP-512}
    s_cbranch_scc1 P2_SCAN_DONE
    s_cmp_lt_u32 s23, {E}
    s_cbranch_scc1 P2_SCAN
    """)
    a.lab("P2_SCAN_DONE")
    for j in range(4 * NK):
        a(f"v_mov_b32 v{VT+j}, -1")
    a(f"v_add_u32 v47, {L_XB}, v4")
    for j in range(JS):
        a(f"""
        v_add_u32 v44, {512*j}, v0
        v_cmp_gt_u32 vcc, s27, v44
        s_and_saveexec_b64 s[10:11], vcc
        s_cbranch_execz P2_A_DONE
        ds_read_b32 v45, v47 offset:{2048*j}
        s_waitcnt lgkmcnt(0)
        v_lshlrev_b32 v46, 2, v45
        buffer_load_dword v{VD+j}, v46, s[48:51], 0 offen
        buffer_load_dword v{VE+j}, v46, s[52:55], 0 offen
        v_lshlrev_b32 v{VP+j}, 5, v45
        v_mov_b32 v{VT+j}, 0
        s_waitcnt vmcnt(0)
        v_subrev_u32 v{VD+j}, s26, v{VD+j}
        v_lshlrev_b32 v{VD+j}, 2, v{VD+j}
        ds_add_rtn_u32 v{VR+j}, v{VD+j}, v43 offset:{L_NCNT}
        v_lshlrev_b32 v{VE+j}, 7, v{VE+j}
        """)
    a.lab("P2_A_DONE")
    a("s_mov_b64 exec, -1")
    a.stamp3(9)
    a(f"""
    v_lshlrev_b32 v44, 2, v1
    s_waitcnt lgkmcnt(0)
    s_barrier
    """)
    a.stamp3(10)
    a.stamp(2)
    a(f"""
    ds_read_b32 v45, v44 offset:{L_NCNT}
    ds_read_b32 v47, v41 offset:{L_FLAG}
    s_waitcnt lgkmcnt(0)
    v_add_u32 v32, 3, v45
    v_and_b32 v32, -4, v32
    v_mov_b32 v33, v32
    v_readfirstlane_b32 s14, v47
    """)
    a.wave_scan(33)
    a(f"""
    s_nop 0
    v_readlane_b32 s12, v33, 63
    v_add_u32 v34, -1, v33
    v_sub_u32 v33, v33, v32
    s_cmp_lg_u32 s24, 0
    s_cbranch_scc1 P2_CHK_DONE
    s_and_b32 s14, s14, 1
    s_cmp_gt_u32 s12, {SLOTS}
    s_cselect_b32 s14, 1, s14
    s_cmp_eq_u32 s14, 0
    s_cbranch_scc1 P2_CHK_DONE
    """)
    a(f"""
    s_mov_b32 s24, {E}
    s_waitcnt vmcnt(0)
    s_barrier
    s_branch P2_ROUND
    """)
    a.lab("P2_CHK_DONE")
    for k in range(NK):
        for pos in range(4):
            j = 4 * k + pos
            if pos == 2:
                a(f"v_cmp_ne_u32 vcc, -1, v{VT+j}\ns_cbranch_vccz P2_B1_{k}")
            a(f"ds_bpermute_b32 v{VD+j}, v{VD+j}, v33")
        a.lab(f"P2_B1_{k}")
    a(f"""
    s_add_u32 s12, s12, 31
    s_lshr_b32 s12, s12, 5
    s_add_u32 s21, s12, 7
    s_sub_u32 s21, s21, s3
    s_lshr_b32 s21, s21, 3
    s_lshr_b32 s13, s12, 3
    s_and_b32 s14, s12, 7
    """)
    a(f"""
    s_mul_i32 s10, s3, s13
    s_min_u32 s11, s3, s14
    s_add_u32 s10, s10, s11
    s_lshl_b32 s10, s10, 7
    s_lshl_b32 s11, s21, 6
    v_bfe_u32 v53, v1, 3, 1
    v_mul_u32_u24 v53, s11, v53
    v_lshrrev_b32 v54, 4, v1
    v_lshl_add_u32 v53, v54, 4, v53
    v_add_u32 v{V_AS}, s10, v53
    v_bfe_u32 v53, v1, 2, 1
    v_mul_u32_u24 v53, s11, v53
    v_bfe_u32 v54, v1, 3, 2
    v_lshl_add_u32 v53, v54, 4, v53
    v_and_b32 v54, 3, v1
    v_lshl_add_u32 v53, v54, 2, v53
    v_add_u32 v{V_AP}, s10, v53
    v_lshrrev_b32 v53, 5, v1
    v_mul_u32_u24 v53, s11, v53
    v_add_u32 v53, s10, v53
    v_lshrrev_b32 v{V_AG}, 2, v53
    s_waitcnt lgkmcnt(0)
    """)
    a.stamp3(11)
    for k in range(NK):
        for pos in range(4):
            j = 4 * k + pos
            a(f"v_cmpx_ne_u32 vcc, -1, v{VT+j}")
            if pos >= 2:
                a(f"s_cbranch_execz P2_B2_{k}")
            a(f"""
            v_add_lshl_u32 v{VR+j}, v{VR+j}, v{VD+j}, 2
            ds_write2st64_b32 v{VR+j}, v{VE+j}, v{VP+j} offset0:{L_SRC//256} offset1:{L_POS//256}
            """)
        a.lab(f"P2_B2_{k}")
        a("s_mov_b64 exec, -1")
    a.stamp3(12)
    a.stamp(3)
    a("s_waitcnt vmcnt(0) lgkmcnt(0)")
    a.stamp(4)
    a("s_barrier")
    a.stamp(5)
    a.stamp3(13)
    if OPT["stamp"] == "1":
        a("s_memtime s[82:83]\ns_mov_b32 s86, s21")
    if "nomain" in OPT["abl"]:
        a("s_mov_b32 s21, 0")
    a.stamp5(0)
    gen_fill1(a, 0)
    a.stamp5(1)
    a(f"""
    s_lshl_b32 s10, s3, 2
    v_add_u32 v64, s10, v33
    v_add_u32 v65, v33, v32
    v_lshlrev_b32 v66, 8, v1
    s_cmp_eq_u32 s3, 0
    s_cselect_b32 s11, 0, -1
    v_mov_b32 v67, s11
    """)
    a.lab("P2_G_L")
    a(f"""
    v_cmpx_lt_u32 vcc, v64, v65
    s_cbranch_execz P2_G_DONE
    ds_write2st64_b32 v64, v66, v67 offset0:{L_GT//256} offset1:{L_GM//256}
    v_add_u32 v64, 32, v64
    v_mov_b32 v67, -1
    s_branch P2_G_L
    """)
    a.lab("P2_G_DONE")
    a("s_mov_b64 exec, -1")
    a(f"""
    s_cmp_lg_u32 s25, 0
    s_cbranch_scc1 P2_PREP_A
    s_lshr_b32 s9, s3, 2
    s_lshl_b32 s10, s9, 12
    s_add_u32 s10, s10, {L_PX}
    s_sub_u32 s10, s10, s20
    """)
    for t in range(4):
        a(f"""
        v_add_u32 v{64+t}, s10, v{V_XR+t}
        ds_read_b128 v[{VX+4*t}:{VX+4*t+3}], v{64+t}
        """)
    a(f"""
    s_lshl_b32 s9, s9, 13
    s_and_b32 s10, s3, 1
    s_lshl_b32 s10, s10, 2
    s_add_u32 s9, s9, s10
    v_lshl_add_u32 v2, v{V_H16}, 6, v{V_N8}
    v_add_u32 v2, s9, v2
    s_waitcnt lgkmcnt(0)
    """)
    for t in range(4):
        c = "0" if t == 0 else f"v[{VAP}:{VAP+15}]"
        a(f"v_mfma_f32_32x32x16_bf16 v[{VAP}:{VAP+15}], v[{VX+4*t}:{VX+4*t+3}], v[{VF+4*t}:{VF+4*t+3}], {c}")
    a.lab("P2_PREP_A")
    a(f"""
    s_add_u32 s10, s13, 1
    s_mul_i32 s11, s14, s10
    s_lshl_b32 s11, s11, 1
    v_cvt_f32_u32 v68, s10
    v_cvt_f32_u32 v69, s13
    v_rcp_f32 v68, v68
    v_rcp_f32 v69, v69
    s_lshl_b32 s10, s14, 1
    v_lshrrev_b32 v64, 4, v33
    v_bfe_u32 v65, v34, 4, 9
    """)
    for v in (64, 65):
        a(f"""
        v_cmp_gt_u32 vcc, s11, v{v}
        v_subrev_u32 v70, s11, v{v}
        s_nop 0
        v_cndmask_b32 v70, v70, v{v}, vcc
        v_cndmask_b32 v71, v69, v68, vcc
        v_cvt_f32_u32 v70, v70
        v_add_f32 v70, 0.5, v70
        v_mul_f32 v70, v70, v71
        v_cvt_u32_f32 v70, v70
        v_add_u32 v71, s10, v70
        v_cndmask_b32 v{v}, v71, v70, vcc
        """)
    a(f"""
    v_sub_u32 v65, v65, v64
    v_add_u32 v65, 1, v65
    v_cmp_ne_u32 vcc, 0, v32
    v_lshrrev_b32 v66, 4, v0
    v_lshlrev_b32 v66, 2, v66
    v_cndmask_b32 v65, 0, v65, vcc
    v_and_b32 v64, 15, v64
    v_lshl_or_b32 v65, v64, 8, v65
    v_add_u32 v67, 128, v66
    ds_bpermute_b32 v7, v66, v65
    ds_bpermute_b32 v8, v67, v65
    s_cmp_lg_u32 s25, 0
    s_cbranch_scc1 P2_PREP_SKIP
    s_bitcmp1_b32 s3, 1
    s_cbranch_scc1 P2_HU
    """)

    def dwrites(base):
        a("s_cmp_ge_u32 s3, 4\ns_cbranch_scc1 " + f"P2_DW1_{base}")
        for i in range(16):
            a(f"ds_write_b32 v2, v{VAP+i} offset:{base+(8*(i//4)+i%4)*256}")
        a(f"s_branch P2_DW2_{base}")
        a.lab(f"P2_DW1_{base}")
        for i in range(8):
            a(f"ds_write_b32 v2, v{VAP+i} offset:{base+(8*(i//4)+i%4)*256}")
        a("s_mov_b32 exec_hi, 0")
        for i in (8, 9):
            a(f"ds_write_b32 v2, v{VAP+i} offset:{base+(8*(i//4)+i%4)*256}")
        a("s_mov_b64 exec, -1")
        a.lab(f"P2_DW2_{base}")

    for i in range(16):
        a(f"v_mul_f32 v{VAP+i}, {NLOG2E:#x}, v{VAP+i}")
    a(f"v_max3_f32 v64, abs(v{VAP}), abs(v{VAP+1}), abs(v{VAP+2})")
    for i in range(3, 15, 2):
        a(f"v_max3_f32 v64, abs(v{VAP+i}), abs(v{VAP+i+1}), v64")
    a(f"""
    v_max_f32 v64, abs(v{VAP+15}), v64
    v_mov_b32 v65, 0x42700000
    v_cmp_lt_f32 s[10:11], v65, v64
    """)
    for i in range(0, 16, 2):
        a(f"""
        v_cmp_u_f32 vcc, v{VAP+i}, v{VAP+i+1}
        s_or_b64 s[10:11], s[10:11], vcc
        """)
    a(f"""
    s_cmp_eq_u64 s[10:11], 0
    s_cbranch_scc1 P2_EA_W
    v_mov_b32 v65, 2
    ds_or_b32 v41, v65 offset:{L_FLAG}
    s_branch P2_EA_W
    """)
    a.lab("P2_HU")
    a(f"v_add_u32 v2, {L_HU}, v2")
    for i in range(16):
        a(f"v_cvt_pk_bf16_f32 v{VAP+i}, v{VAP+i}, v{VAP+i}")
    for i in range(16):
        a(f"v_and_b32 v{VAP+i}, 0xffff0000, v{VAP+i}")
    dwrites(0)
    a.lab("P2_EA_W")
    a(f"""
    v_lshlrev_b32 v64, 4, v1
    v_add_u32 v64, {L_ACC}, v64
    """)
    for f in range(4, 18):
        a(f"ds_read_b128 {wfrag(f)}, v64 offset:{1024*f}")
    a.stamp5(2)
    a(f"""
    s_waitcnt lgkmcnt(0)
    s_barrier
    ds_read_b32 v65, v41 offset:{L_FLAG}
    """)
    a.stamp5(3)
    if OPT['fsplit'] == '1':
        gen_fill1(a, 1)
    a.stamp5(4)
    a(f"""
    s_waitcnt lgkmcnt(0)
    v_readfirstlane_b32 s15, v65
    s_lshr_b32 s15, s15, 1
    s_bitcmp1_b32 s3, 1
    s_cbranch_scc1 P2_EA3
    s_cmp_lg_u32 s15, 0
    s_cbranch_scc1 P2_EA2_W
    """)
    for k in range(16):
        a(f"v_exp_f32 v{VAP+k}, v{VAP+k}")
    a("s_nop 0")
    a.lab("P2_EA2_W")
    dwrites(L_EA)
    a.lab("P2_EA3")
    for f in range(4):
        a(f"ds_read_b128 {wfrag(f)}, v64 offset:{1024*f}")
    a("s_mov_b32 s25, 1")
    a("s_branch P2_PREP_DONE")
    a.lab("P2_PREP_SKIP")
    if OPT['fsplit'] == '1':
        a("s_waitcnt lgkmcnt(0)")
        gen_fill1(a, 1)
    a.lab("P2_PREP_DONE")
    a.stamp5(5)
    a(f"""
    s_waitcnt lgkmcnt(0)
    s_barrier
    """)
    a.stamp5(6)
    a.stamp5(7)
    a.stamp3(14)
    a(f"""
    s_cmp_eq_u32 s21, 0
    s_cbranch_scc1 P2_MAIN_DONE
    """)
    gen_fill2(a)
    a.stamp(14)
    if OPT["stamp"] == "4":
        a("s_mov_b32 s70, 0\ns_mov_b32 s72, 0\ns_mov_b32 s74, 0\ns_memtime s[76:77]\ns_mov_b32 s80, s21")
    a(f"""
    s_cmp_lg_u32 s15, 0
    s_cbranch_scc1 P2_SAFE
    """)
    gen_loop(a, False, "F")
    gen_loop(a, True, "S")
    a.lab("P2_FLUSH")
    for g in range(4):
        a(f"ds_write_b32 v{V_G+g}, v{V_ACC[1]+g} offset:{L_ACC+4}")
    a.lab("P2_MAIN_DONE")
    if OPT["stamp"] == "4":
        a("s_memtime s[78:79]")
    a.stamp(6)
    if OPT["stamp"] == "1":
        a("s_memtime s[84:85]\ns_getreg_b32 s88, hwreg(HW_REG_HW_ID)\ns_getreg_b32 s90, hwreg(HW_REG_XCC_ID)")
    a(f"""
    s_waitcnt vmcnt(0) lgkmcnt(0)
    s_barrier
    """)
    a.stamp(7)
    for h in range(2):
        a(f"""
        v_and_b32 v24, 0xff, v{7+h}
        v_and_b32 v25, 0xff00, v{7+h}
        v_add_u32 v25, v25, v3
        v_add_u32 v25, {L_ACC+8192*h}, v25
        """)
        a.lab(f"P2_FOLD{h}")
        a(f"""
        v_cmpx_lt_u32 vcc, 0, v24
        s_cbranch_execz P2_FOLD_DONE{h}
        ds_read_b128 v[32:35], v25
        v_add_u32 v24, -1, v24
        v_add_u32 v25, 0x100, v25
        s_waitcnt lgkmcnt(0)
        v_add_f32 v{V_RUN+4*h}, v{V_RUN+4*h}, v32
        v_add_f32 v{V_RUN+4*h+1}, v{V_RUN+4*h+1}, v33
        v_add_f32 v{V_RUN+4*h+2}, v{V_RUN+4*h+2}, v34
        v_add_f32 v{V_RUN+4*h+3}, v{V_RUN+4*h+3}, v35
        s_branch P2_FOLD{h}
        """)
        a.lab(f"P2_FOLD_DONE{h}")
        a("s_mov_b64 exec, -1")
    a(f"""
    s_cmp_lt_u32 s23, s24
    s_cbranch_scc1 P2_ROUND
    v_lshrrev_b32 v5, 4, v0
    v_and_b32 v6, 15, v0
    v_lshlrev_b32 v5, 7, v5
    v_lshl_add_u32 v5, v6, 2, v5
    v_add_u32 v6, 0x1000, v5
    """)
    for h in range(2):
        R = V_RUN + 4 * h
        a(f"""
        v_add_u32 v24, {L_HU+8192*h}, v3
        ds_read_b128 v[32:35], v24
        v_cvt_pk_bf16_f32 v36, v{R}, v{R+2}
        v_cvt_pk_bf16_f32 v37, v{R+1}, v{R+3}
        v_lshlrev_b32 v28, 16, v36
        v_and_b32 v30, 0xffff0000, v36
        v_lshlrev_b32 v29, 16, v37
        v_and_b32 v31, 0xffff0000, v37
        s_waitcnt lgkmcnt(0)
        v_add_f32 v28, v28, v32
        v_add_f32 v29, v29, v33
        v_add_f32 v30, v30, v34
        v_add_f32 v31, v31, v35
        v_cvt_pk_bf16_f32 v36, v28, v30
        v_cvt_pk_bf16_f32 v37, v29, v31
        v_lshlrev_b32 v28, 16, v36
        v_and_b32 v30, 0xffff0000, v36
        v_lshlrev_b32 v29, 16, v37
        v_and_b32 v31, 0xffff0000, v37
        """)
        for k in range(4):
            a(f"v_mul_f32 v{32+k}, {NLOG2E:#x}, v{28+k}")
        for k in range(4):
            a(f"v_exp_f32 v{32+k}, v{32+k}")
        for k in range(4):
            a(f"v_add_f32 v{32+k}, 1.0, v{32+k}")
        for k in range(4):
            a(f"v_rcp_f32 v{32+k}, v{32+k}")
        for k in range(4):
            a(f"v_mul_f32 v{28+k}, v{28+k}, v{32+k}")
        a(f"""
        v_cvt_pk_bf16_f32 v{38+2*h}, v28, v30
        v_cvt_pk_bf16_f32 v{39+2*h}, v29, v31
        buffer_store_dword v{38+2*h}, v{5+h}, s[44:47], 0 offen
        buffer_store_dword v{39+2*h}, v{5+h}, s[44:47], 0 offen offset:64
        """)
    a.stamp(8)
    a.stamp_flush(15, 40, 8, DBG2_OFF)
    a.lab("P2_END")
    a("s_endpgm")
    return a.text()


HEAD = open("standalone__edge_featured_mpnn_egc__graph.s.ref").read().split("; Override launch")[0]


def kd(name, vgpr, sgpr):
    acc = (vgpr + 3) // 4 * 4
    return f""".amdhsa_kernel {name}
  .amdhsa_next_free_vgpr {vgpr}
  .amdhsa_next_free_sgpr {sgpr}
  .amdhsa_accum_offset {acc}
  .amdhsa_group_segment_fixed_size 0
  .amdhsa_kernarg_size 80
  .amdhsa_user_sgpr_count 2
  .amdhsa_user_sgpr_kernarg_segment_ptr 1
  .amdhsa_system_sgpr_workgroup_id_x 1
.end_amdhsa_kernel
"""


def main():
    out = HEAD
    out += f"; @launch kernel=p1_kernel grid=({NCH},1,1) block=(704,1,1) lds={P1_LDS}\n"
    out += f"; @launch kernel=p2_kernel grid=({NB},1,1) block=(512,1,1) lds={P2_LDS}\n"
    out += '.amdgcn_target "amdgcn-amd-amdhsa--gfx950"\n.text\n'
    out += ".globl p1_kernel\n.p2align 8\n.type p1_kernel,@function\n" + gen_p1()
    out += ".globl p2_kernel\n.p2align 8\n.type p2_kernel,@function\n" + gen_p2()
    out += '.section .rodata,"a"\n.p2align 6\n' + kd("p1_kernel", 64, 100) + ".p2align 6\n" + kd("p2_kernel", 256, 100)
    open(sys.argv[1], "w").write(out)


main()
```

```python
import sys

N = 12500; E = 800000
NCH = 320; CH = 2500
NK = NCH // 64
TROW = NCH * 128
NB = 256; NPB = 49; MUL = 21400
SUBN = 16
SLOTS = 4096
JS = 7
NLOG2E = 0xBFB8AA3B

T_OFF = 0x0
ENT_OFF = 0xA00000
HDR_OFF = 0xE00000
WF_OFF = 0xE80000
DBG1_OFF = 0x2C00000
DBG2_OFF = 0x2D00000
WS_SIZE = 0x3000000
NFRAG = 34

OPT = dict(p1_store="", p1_tstore="", p1_ld="nt", abl="", stamp="", prio_hi="1", prio_lo="0", xpf="0",
           p1_sched="[[0,1],[2,3],[4,5],[6]]", bunch="1", ne="4", e_pol="", epf1="0", epf2="0", epf_pol="", cpf="16", fsplit="1", cpf2="1", cpf1="0", kr_fake="0", tpf="0", la="3", mfo="0")
for a_ in sys.argv[2:]:
    k_, v_ = a_.split("=")
    OPT[k_] = v_


class A:
    def __init__(self):
        self.l = []

    def __call__(self, s):
        for x in s.strip().split("\n"):
            self.l.append("    " + x.strip())

    def lab(self, s):
        self.l.append(s + ":")

    def srd(self, d, lo, hi, nrec, add=None):
        if add is None:
            self(f"s_mov_b32 s{d}, s{lo}\ns_mov_b32 s{d+1}, s{hi}")
        else:
            self(f"s_add_u32 s{d}, s{lo}, {add}\ns_addc_u32 s{d+1}, s{hi}, 0")
        self(f"s_mov_b32 s{d+2}, {nrec}\ns_mov_b32 s{d+3}, 0x20000")

    def wave_scan(self, v, full=True):
        for sh in (1, 2, 4, 8):
            self("s_nop 1")
            self(f"v_add_u32_dpp v{v}, v{v}, v{v} row_shr:{sh} row_mask:0xf bank_mask:0xf bound_ctrl:0")
        if full:
            self("s_nop 1")
            self(f"v_add_u32_dpp v{v}, v{v}, v{v} row_bcast:15 row_mask:0xa bank_mask:0xf")
            self("s_nop 1")
            self(f"v_add_u32_dpp v{v}, v{v}, v{v} row_bcast:31 row_mask:0xc bank_mask:0xf")

    def stamp(self, k):
        if OPT["stamp"] == "1":
            self(f"s_memrealtime s[{64+2*k}:{65+2*k}]")

    def stamp5(self, k):
        if OPT["stamp"] == "5":
            self(f"s_memtime s[{64+2*k}:{65+2*k}]")

    def stamp3(self, k):
        if OPT["stamp"] == "3":
            self(f"s_memtime s[{64+2*k}:{65+2*k}]")

    def stamp_flush(self, n, srd, nw, base):
        if not OPT["stamp"]:
            return
        self(f"""
        s_waitcnt lgkmcnt(0)
        s_mov_b64 exec, -1
        s_mul_i32 s10, s2, {nw}
        s_add_u32 s10, s10, s3
        s_lshl_b32 s10, s10, 6
        s_add_u32 s10, s10, {base}
        v_mov_b32 v1, 0
        """)
        for k in range(n):
            self(f"v_mov_b32 v2, s{64+2*k}\nbuffer_store_dword v2, v1, s[{srd}:{srd+3}], s10 offen offset:{4*k}\ns_nop 1")

    def text(self):
        return "\n".join(self.l) + "\n"


def sub_dl(j):
    return (1 if j < 10 else 8) + (j % 10) // 5, 6 * (j % 5)


def sub_src(j):
    return (3 if j < 10 else 10) + (j % 10) // 2, 16 * (j % 2)


P1_HIST = 0; P1_TI = 1024
P1_LDS = P1_TI + 32768


def gen_p1():
    a = A()
    ST = OPT["p1_store"]; TST = OPT["p1_tstore"]; LD = OPT["p1_ld"]
    a.lab("p1_kernel")
    a(f"""
    s_cmp_ge_u32 s2, {NCH}
    s_cbranch_scc1 P1_END
    """)
    a.stamp(0)
    if OPT["cpf1"] != "0":
        a("s_getpc_b64 s[52:53]")
        a.lab("P1_PC0")
        a(f"""
        s_mov_b32 s54, P1_END-P1_PC0
        s_mov_b32 s55, 0x20000
        v_lshlrev_b32 v62, 7, v0
        buffer_load_dword v63, v62, s[52:55], 0 offen
        """)
    a(f"""
    s_load_dwordx16 s[16:31], s[0:1], 0
    s_load_dwordx4 s[32:35], s[0:1], 64
    v_and_b32 v1, 63, v0
    v_lshrrev_b32 v5, 6, v0
    v_lshlrev_b32 v2, 4, v0
    v_lshlrev_b32 v3, 2, v0
    v_readfirstlane_b32 s3, v5
    v_lshlrev_b32 v4, 4, v1
    v_mov_b32 v6, 0
    v_and_b32 v7, 0x3fc, v3
    ds_write_b32 v7, v6 offset:{P1_HIST}
    s_mul_i32 s4, s2, {CH*4}
    v_and_b32 v24, 31, v1
    v_lshrrev_b32 v25, 5, v1
    s_waitcnt lgkmcnt(0)
    """)
    a.srd(44, 22, 23, CH * 4, "s4")
    a.srd(40, 20, 21, CH * 4, "s4")
    a(f"""
    buffer_load_dwordx4 v[8:11], v2, s[44:47], 0 offen {LD}
    buffer_load_dwordx4 v[12:15], v2, s[40:43], 0 offen {LD}
    """)
    if OPT["epf1"] != "0":
        nl = 625 * int(OPT["epf1"]) // 8
        a(f"s_mul_i32 s5, s2, {CH*32}")
        a.srd(36, 18, 19, nl * 128, "s5")
        a(f"v_lshlrev_b32 v60, 7, v0\nbuffer_load_dword v61, v60, s[36:39], 0 offen {OPT['epf_pol']}")
    a.srd(48, 34, 35, WS_SIZE)
    a.srd(56, 28, 29, 2048 - 64)
    a(f"""
    v_lshlrev_b32 v26, 10, v25
    v_lshl_add_u32 v26, v24, 1, v26
    s_mov_b32 s14, 1.0
    s_cmp_lg_u32 s3, 10
    s_cbranch_scc1 P1_FL_DONE
    s_cmp_ge_u32 s2, {NFRAG}
    s_cbranch_scc1 P1_FL_DONE
    s_sub_u32 s5, s2, 2
    s_cmp_ge_u32 s2, 18
    s_cselect_b32 s5, s5, s2
    s_and_b32 s6, s5, 3
    s_lshl_b32 s6, s6, 11
    s_lshr_b32 s7, s5, 2
    s_and_b32 s7, s7, 1
    s_lshl_b32 s7, s7, 6
    s_add_u32 s6, s6, s7
    s_cmp_ge_u32 s2, 8
    s_cbranch_scc1 P1_FL1
    s_add_u32 s6, s6, 8192
    s_mov_b32 s14, {NLOG2E}
    s_branch P1_FL3
    """)
    a.lab("P1_FL1")
    a(f"""
    s_cmp_ge_u32 s2, 16
    s_cbranch_scc1 P1_FL2
    s_mov_b32 s56, s26
    s_mov_b32 s57, s27
    s_branch P1_FL3
    """)
    a.lab("P1_FL2")
    a(f"""
    s_cmp_ge_u32 s2, 26
    s_cselect_b32 s56, s24, s28
    s_cselect_b32 s57, s25, s29
    s_cmp_ge_u32 s2, 18
    s_cbranch_scc1 P1_FL3
    s_mov_b32 s14, {NLOG2E}
    s_and_b32 s6, s2, 1
    s_lshl_b32 s6, s6, 6
    s_add_u32 s6, s6, 16384
    """)
    a.lab("P1_FL3")
    a(f"""
    s_add_u32 s56, s56, s6
    s_addc_u32 s57, s57, 0
    """)
    for jj in range(8):
        a(f"buffer_load_ushort v{40+jj}, v26, s[56:59], 0 offen offset:{jj*128}")
    a("s_waitcnt vmcnt(0)")
    for jj in range(8):
        a(f"v_lshlrev_b32 v{40+jj}, 16, v{40+jj}")
    for jj in range(8):
        a(f"v_mul_f32 v{40+jj}, s14, v{40+jj}")
    for q in range(4):
        a(f"v_cvt_pk_bf16_f32 v{48+q}, v{40+2*q}, v{40+2*q+1}")
    a(f"""
    s_lshl_b32 s6, s2, 10
    s_add_u32 s6, s6, {WF_OFF}
    buffer_store_dwordx4 v[48:51], v4, s[48:51], s6 offen
    s_endpgm
    """)
    a.lab("P1_FL_DONE")
    if OPT["cpf"] != "0":
        a(f"""
        s_cmp_lg_u32 s3, 10
        s_cbranch_scc1 P1_CPF_DONE
        s_cmp_ge_u32 s2, {64+int(OPT["cpf"])}
        s_cbranch_scc1 P1_END
        s_getpc_b64 s[52:53]
        """)
        a.lab("P1_PC")
        a(f"""
        s_add_u32 s52, s52, p2_kernel-P1_PC
        s_addc_u32 s53, s53, 0
        s_mov_b32 s54, P2_END-p2_kernel
        s_mov_b32 s55, 0x20000
        v_lshlrev_b32 v40, 6, v1
        """)
        for k in range(6):
            a(f"buffer_load_dword v41, v40, s[52:55], 0 offen\nv_add_u32 v40, 0x1000, v40")
        if OPT["tpf"] != "0":
            sh = int(OPT["tpf"])
            a.srd(36, 18, 19, E * 32)
            a(f"v_lshlrev_b32 v40, {sh}, v1")
            for k in range(-(-E * 32 // (64 << sh))):
                a(f"buffer_load_dword v41, v40, s[36:39], 0 offen\nv_add_u32 v40, {64 << sh}, v40")
            a(f"v_lshlrev_b32 v40, {min(sh, 15)}, v1")
            a.srd(36, 16, 17, N * 128)
            a("buffer_load_dword v41, v40, s[36:39], 0 offen")
            a.srd(36, 30, 31, N * 128)
            a("buffer_load_dword v41, v40, s[36:39], 0 offen")
        a("s_endpgm")
        a.lab("P1_CPF_DONE")
    a(f"""
    s_cmp_ge_u32 s3, 10
    s_cbranch_scc1 P1_END
    v_mov_b32 v40, -1
    v_mov_b32 v41, -1
    v_mov_b32 v42, -1
    v_mov_b32 v43, -1
    ds_write_b128 v2, v[40:43] offset:{P1_TI}
    ds_write_b128 v2, v[40:43] offset:{P1_TI+10240}
    ds_write_b128 v2, v[40:43] offset:{P1_TI+20480}
    v_min_u32 v44, {127*16}, v2
    ds_write_b128 v44, v[40:43] offset:{P1_TI+30720}
    v_cmp_gt_u32 vcc, {CH//4}, v0
    s_mov_b64 s[8:9], vcc
    v_mov_b32 v30, 1
    v_lshrrev_b32 v7, 3, v0
    v_lshlrev_b32 v6, 2, v7
    v_and_b32 v27, 7, v0
    s_lshl_b32 s6, s2, 7
    s_add_u32 s6, s6, {T_OFF}
    v_mul_u32_u24 v28, {TROW}, v7
    v_lshl_or_b32 v28, v27, 4, v28
    s_waitcnt lgkmcnt(0)
    s_barrier
    s_waitcnt vmcnt(1)
    """)
    a.stamp(1)
    a("s_mov_b64 exec, s[8:9]")
    for e in range(4):
        a(f"""
        v_mul_u32_u24 v{16+e}, {MUL}, v{8+e}
        v_lshrrev_b32 v31, 20, v{16+e}
        v_lshlrev_b32 v{16+e}, 2, v31
        ds_add_rtn_u32 v{20+e}, v{16+e}, v30 offset:{P1_HIST}
        v_mul_u32_u24 v31, {NPB}, v31
        v_sub_u32 v{8+e}, v{8+e}, v31
        """)
    a("s_waitcnt vmcnt(0)")
    for e in range(4):
        a(f"""
        v_lshl_or_b32 v{36+e}, v{8+e}, 14, v{12+e}
        v_add_u32 v31, {e}, v3
        v_lshl_or_b32 v{36+e}, v31, 20, v{36+e}
        """)
    a.stamp(2)
    for e in range(4):
        a(f"""
        s_waitcnt lgkmcnt(3)
        v_and_b32 v31, 7, v{20+e}
        v_lshlrev_b32 v31, 4, v31
        v_lshl_add_u32 v{16+e}, v{16+e}, 5, v31
        v_lshrrev_b32 v31, 3, v{20+e}
        v_cmp_gt_u32 vcc, 32, v{20+e}
        v_lshl_add_u32 v{16+e}, v31, 2, v{16+e}
        s_and_b64 exec, s[8:9], vcc
        ds_write_b32 v{16+e}, v{36+e} offset:{P1_TI}
        s_mov_b64 exec, s[8:9]
        """)
    a("s_mov_b64 exec, -1\ns_waitcnt lgkmcnt(0)")
    a.stamp(3)
    a("s_barrier")
    a.stamp(4)
    a.stamp(5)
    a.stamp(6)
    for r in range(4):
        a(f"""
        ds_read_b32 v{44+r}, v6 offset:{P1_HIST+320*r}
        ds_read_b128 v[{8+4*r}:{11+4*r}], v2 offset:{P1_TI+10240*r}
        """)
    for r in range(4):
        if r == 3:
            a(f"""
            s_cmp_ge_u32 s3, 2
            s_cbranch_scc1 P1_FIN
            """)
        a(f"""
        s_waitcnt lgkmcnt({7-2*r})
        v_cmp_lt_u32 vcc, 32, v{44+r}
        s_waitcnt lgkmcnt({6-2*r})
        s_nop 0
        v_cndmask_b32 v{8+4*r}, v{8+4*r}, -2, vcc
        buffer_store_dwordx4 v[{8+4*r}:{11+4*r}], v28, s[48:51], s6 offen {TST}
        s_add_u32 s6, s6, {80*TROW}
        """)
    a.lab("P1_FIN")
    a.stamp(7)
    if OPT["stamp"]:
        a("s_waitcnt vmcnt(0)")
    a.stamp(8)
    a.stamp_flush(9, 48, 16, DBG1_OFF)
    a.lab("P1_END")
    a("s_endpgm")
    return a.text()


L_NCNT = 0; L_FLAG = 256; L_WT = 272
L_SRC = 512; L_POS = L_SRC + 16384; L_GT = L_POS + 16384; L_GM = L_GT + 4096; L_EA = L_GM + 4096
NROW = 50
L_ACC = L_EA + NROW * 256
L_XB = L_ACC + 18432
L_HU = L_XB + 65536
L_PX = L_HU + NROW * 256
P2_LDS = L_PX + 8192
assert P2_LDS <= 163840 and L_ACC + 4 < 65536 and (16 + NROW) * 256 <= 18432
SENT = 0x40000000

V_W = 184
V_Z0 = 64; V_H0 = 80; V_Z1 = 96; V_H1 = 112
V_XA = (128, 28); V_EA = (144, 44, 24, 56)
V_G = 148; V_GR = 152; V_EV = 156
V_SL = 164
V_ACC = (168, 52)
V_XR = 172
V_PS = 176
V_AS = 177; V_AP = 178; V_AG = 179
V_N8 = 181; V_H16 = 182; V_N8H = 183
V_K = (180, 10, 11, 12)
V_GE = 60
V_GM = 48
V_RUN = 16
NE = int(OPT["ne"])
LA = int(OPT["la"])


def wfrag(f):
    return f"v[{V_W+4*f}:{V_W+4*f+3}]"


def mf_list(u, Z, H, ph):
    xa = V_XA[ph % 2]; ea = V_EA[ph % NE]
    l = [f"v_mfma_f32_32x32x16_bf16 v[{Z}:{Z+15}], v[{ea}:{ea+3}], {wfrag(16+u)}, 0"]
    for t in range(4):
        l.append(f"v_mfma_f32_32x32x16_bf16 v[{Z}:{Z+15}], v[{xa+4*t}:{xa+4*t+3}], {wfrag(u*4+t)}, v[{Z}:{Z+15}]")
    for t in range(4):
        c = "0" if t == 0 else f"v[{H}:{H+15}]"
        l.append(f"v_mfma_f32_32x32x16_bf16 v[{H}:{H+15}], v[{xa+4*t}:{xa+4*t+3}], {wfrag(8+u*4+t)}, {c}")
    if OPT["mfo"] == "1":
        l = [l[0], l[1], l[5], l[2], l[6], l[3], l[7], l[4], l[8]]
    return l


RAMP_POS = {2: 5, 3: 6, 4: 13, 5: 2}


def body(ph, safe, ramp=False):
    out = []
    par = ph % 2
    npar = 1 - par
    PH = OPT["prio_hi"]; PL = OPT["prio_lo"]
    cnt = [0]
    bunch = OPT["bunch"] == "1"

    def lstamp():
        if OPT["stamp"] == "2" and ph == 1:
            out.append(f"s_memtime s[{64+2*cnt[0]}:{65+2*cnt[0]}]")
            cnt[0] += 1

    def trun(instrs, mf, fill):
        lstamp()
        if PH != PL:
            out.append(f"s_setprio {PH}")
        mf = list(mf)
        for k, x in enumerate(instrs):
            out.append(x)
            if k % 3 == 0 and mf:
                out.append(mf.pop(0))
            elif fill:
                if bunch:
                    out.extend(fill); del fill[:]
                else:
                    out.append(fill.pop(0))
        assert not mf
        if PH != PL:
            out.append(f"s_setprio {PL}")

    def half(u, Z, H, mf, fill, preF, postF, fillR, preM, postM):
        ev = lambda i: V_EV + 2 * (i // 4) + u
        if safe:
            if u == 0:
                out.append(("W", "ev3"))
            out.extend(f"v_add_f32 v{Z+i}, v{ev(i)}, v{Z+i}" for i in range(16))
        trun([f"v_exp_f32 v{Z+i}, v{Z+i}" for i in range(16)], mf[:5], fill)
        lstamp()
        out.extend(preF)
        if safe:
            out.extend(f"v_add_f32 v{Z+i}, 1.0, v{Z+i}" for i in range(16))
        else:
            out.extend(f"v_fma_f32 v{Z+i}, v{Z+i}, v{ev(i)}, 1.0" for i in range(16))
        out.extend(postF)
        fill.extend(fillR)
        trun([f"v_rcp_f32 v{Z+i}, v{Z+i}" for i in range(16)], mf[5:], fill)
        assert not fill, fill
        lstamp()
        out.extend(preM)
        A_ = V_ACC[u]
        for g in range(4):
            out.append(f"v_and_b32 v{A_+g}, v{A_+(g+3)%4}, v{V_GM+g}")
            out.extend(f"v_fmac_f32 v{A_+g}, v{Z+4*g+k}, v{H+4*g+k}" for k in range(4))
        out.extend(postM)

    def accw(u):
        return [("L", f"ds_write_b32 v{V_G+g}, v{V_ACC[u]+g} offset:{L_ACC+4*u}", None) for g in range(4)]

    xa = V_XA[npar]
    def eload(k, reg):
        return [f"s_cmp_gt_u32 s21, {k-ph}", "s_cselect_b32 s58, s18, 0",
                ("M", f"buffer_load_dwordx4 v[{V_EA[k%NE]}:{V_EA[k%NE]+3}], v{reg}, s[56:59], 0 offen {OPT['e_pol']}", f"e{k}")]
    if ramp and ph < LA - 2:
        fill = eload(2 + 2 * ph, RAMP_POS[2 + 2 * ph]) + accw(1)
    else:
        fill = eload(ph + LA, V_PS) + accw(1)
    fill.append(("L", f"ds_read_b128 v[{V_GM}:{V_GM+3}], v{V_AG} offset:{L_GM+16*ph}", "gm"))
    preF = [f"v_add_u32 v{V_G+g}, v{V_GR+g}, v{V_N8H}" for g in range(4)] + ([] if safe else [("W", "ev3")])
    fillR = [("V", (f"x{ph+1}_3", f"e{ph+1}"))] if ramp else [f"s_waitcnt vmcnt({5 if NE == 2 else 6})"]
    for t in range(4):
        fillR.append(("L", f"ds_read_b128 v[{xa+4*t}:{xa+4*t+3}], v{V_XR+t} offset:{npar*4096}", f"xa{t}"))
    fillR += [("L", f"ds_read_b128 v[{V_SL}:{V_SL+3}], v{V_AS} offset:{L_SRC+64*(3+ph)}", "sl"),
              ("L", f"ds_read_b128 v[{V_GR}:{V_GR+3}], v{V_AG} offset:{L_GT+16*(1+ph)}", "gr"),
              ("L", f"ds_read_b32 v{V_PS}, v{V_AP} offset:{L_POS+64*(LA+1+ph)}", "pos"),
              "s_cmp_gt_u32 s21, 3", "s_cselect_b32 s38, s19, 0", f"s_add_u32 m0, s20, {npar*4096}"]
    postM = [("W", "sl")] + [f"v_or_b32 v{V_SL+j}, v{V_SL+j}, v{V_K[j]}" for j in range(4)]
    half(0, V_Z0, V_H0, mf_list(1, V_Z1, V_H1, ph), fill, preF, [], fillR, [("W", "gm")], postM)
    fill = []
    aw = accw(0)
    for j in range(4):
        fill.append(("M", f"buffer_load_dwordx4 v{V_SL+j}, s[36:39], 0 offen lds", f"x{ph+3}_{j}"))
        if j < 3:
            fill.append(f"s_add_u32 m0, s20, {npar*4096+(j+1)*1024}")
        fill.append(aw[j])
    if ramp and ph < LA - 2:
        fill += eload(3 + 2 * ph, RAMP_POS[3 + 2 * ph])
    postF = [("W", "pos")] + [f"v_add_u32 v{V_GE+g}, v{V_GR+g}, v{V_N8}" for g in range(4)]
    postF.append(f"v_add_u32 v{V_PS}, v{V_PS}, v{V_H16}")
    fillR = [("L", f"ds_read_b64 v[{V_EV+2*g}:{V_EV+2*g+1}], v{V_GE+g} offset:{L_EA}", f"ev{g}") for g in range(4)]
    half(1, V_Z1, V_H1, mf_list(0, V_Z0, V_H0, ph + 1), fill, [], postF, fillR, [], [])
    lstamp()
    if "nomfma" in OPT["abl"]:
        out = [x for x in out if not (isinstance(x, str) and "mfma" in x)]
    if "novalu" in OPT["abl"]:
        out = [x for x in out if not (isinstance(x, str) and any(k in x for k in ("v_exp", "v_rcp", "v_fma", "v_fmac")))]
    return out


def instrument(items):
    out = []
    for x in items:
        acc = None
        if isinstance(x, str):
            if x.startswith("s_waitcnt vmcnt"): acc = 70
            elif x.startswith("buffer_load") and "lds" not in x: acc = 71
            elif x.startswith("buffer_load"): acc = 72
        if acc:
            out += ["s_memtime s[64:65]", "s_waitcnt lgkmcnt(0)", x, "s_memtime s[66:67]", "s_waitcnt lgkmcnt(0)",
                    "s_sub_u32 s68, s66, s64", f"s_add_u32 s{acc+2*(acc-70)+4-0 if False else {70:70,71:72,72:74}[acc]}, s{ {70:70,71:72,72:74}[acc] }, s68"]
        else:
            out.append(x)
    return out


def resolve(prev, cur, vm=None):
    seq = prev + cur
    res = []
    for i, x in enumerate(seq):
        if i < len(prev):
            continue
        if isinstance(x, str):
            res.append(x)
        elif x[0] == "L":
            res.append(x[1])
        elif x[0] == "M":
            res.append(x[1])
            if vm is not None:
                vm.append(x[2])
        elif x[0] == "V":
            last = max(vm.index(t) for t in x[1])
            res.append(f"s_waitcnt vmcnt({len(vm)-1-last})")
        else:
            n = 0
            k = i - 1
            while not (isinstance(seq[k], tuple) and seq[k][0] == "L" and seq[k][2] == x[1]):
                if isinstance(seq[k], tuple) and seq[k][0] == "L":
                    n += 1
                k -= 1
                assert k >= 0, x
            res.append(f"s_waitcnt lgkmcnt({min(n, 15)})")
    return res


def eld(a, k):
    a(f"""
    s_cmp_gt_u32 s21, {k}
    s_cselect_b32 s58, s18, 0
    v_add_u32 v{V_GE+k}, v{V_GE+k}, v{V_H16}
    buffer_load_dwordx4 v[{V_EA[k]}:{V_EA[k]+3}], v{V_GE+k}, s[56:59], 0 offen {OPT['e_pol']}
    """)


def gen_fill1(a, part):
    if part == 0:
        a(f"""
        ds_read_b128 v[{V_SL}:{V_SL+3}], v{V_AS} offset:{L_SRC}
        ds_read_b32 v{V_GE}, v{V_AP} offset:{L_POS}
        ds_read_b32 v{V_GE+1}, v{V_AP} offset:{L_POS+64}
        ds_read_b128 v[{V_ACC[0]}:{V_ACC[0]+3}], v{V_AS} offset:{L_SRC+64}
        s_waitcnt lgkmcnt(2)
        """)
        eld(a, 0)
        xld(a, 0, V_SL, 0)
        a(f"ds_read_b128 v[{V_SL}:{V_SL+3}], v{V_AS} offset:{L_SRC+128}")
    elif part == 1:
        eld(a, 1)
        xld(a, 1, V_ACC[0], 1)


def xld(a, b, vb, k):
    a(f"s_cmp_gt_u32 s21, {k}\ns_cselect_b32 s38, s19, 0")
    for j in range(4):
        a(f"""
        s_add_u32 m0, s20, {b*4096+j*1024}
        v_or_b32 v{vb+j}, v{vb+j}, v{V_K[j]}
        buffer_load_dwordx4 v{vb+j}, s[36:39], 0 offen lds
        """)


def gen_fill2(a):
    xa = V_XA[0]
    a(f"ds_read_b128 v[{V_GR}:{V_GR+3}], v{V_AG} offset:{L_GT}")
    for k, r in RAMP_POS.items():
        a(f"ds_read_b32 v{r}, v{V_AP} offset:{L_POS+64*k}")
    a(f"""
    v_mov_b32 v{V_ACC[0]+3}, 0
    v_mov_b32 v{V_ACC[1]+3}, 0
    s_waitcnt vmcnt(5)
    """)
    for t in range(4):
        a(f"ds_read_b128 v[{xa+4*t}:{xa+4*t+3}], v{V_XR+t}")
    a("s_waitcnt lgkmcnt(4)")
    for g in range(4):
        a(f"""
        v_add_u32 v{V_GE+g}, v{V_GR+g}, v{V_N8}
        v_add_u32 v{V_G+g}, v{V_GR+g}, v{V_N8H}
        ds_read_b64 v[{V_EV+2*g}:{V_EV+2*g+1}], v{V_GE+g} offset:{L_EA}
        """)
    for k, r in RAMP_POS.items():
        a(f"v_add_u32 v{r}, v{r}, v{V_H16}")
    a("s_waitcnt lgkmcnt(4)")
    for m in mf_list(0, V_Z0, V_H0, 0):
        a(m)
    xld(a, 0, V_SL, 2)
    a("s_waitcnt lgkmcnt(0)\ns_nop 3")


def loop_tail(a, tag, last):
    if OPT["stamp"] == "6":
        a("s_memrealtime s[64:65]\ns_waitcnt lgkmcnt(0)\ns_mov_b32 m0, s66\ns_nop 3\nv_writelane_b32 v9, s64, m0\ns_add_u32 s66, s66, 1")
    if not last:
        a(f"""
        s_sub_u32 s21, s21, 1
        s_cmp_eq_u32 s21, 0
        s_cbranch_scc1 P2_FLUSH
        """)
    else:
        a(f"""
        v_add_u32 v{V_AS}, {64*NE}, v{V_AS}
        v_add_u32 v{V_AP}, {64*NE}, v{V_AP}
        v_add_u32 v{V_AG}, {16*NE}, v{V_AG}
        s_sub_u32 s21, s21, 1
        s_cmp_lg_u32 s21, 0
        s_cbranch_scc1 P2_LOOP{tag}
        s_branch P2_FLUSH
        """)


def gen_loop(a, safe, tag):
    bs = [body(p, safe) for p in range(NE)]
    if safe:
        a.lab("P2_SAFE")
        for k in range(2, LA):
            a(f"""
            s_cmp_gt_u32 s21, {k}
            s_cselect_b32 s58, s18, 0
            buffer_load_dwordx4 v[{V_EA[k]}:{V_EA[k]+3}], v{RAMP_POS[k]}, s[56:59], 0 offen
            """)
        a(f"v_mov_b32 v{V_PS}, v{RAMP_POS[LA]}\ns_waitcnt vmcnt(0)")
    else:
        rb = [body(p, safe, ramp=True) for p in range(NE)]
        vm = ["e0"] + [f"x0_{j}" for j in range(4)] + ["e1"] + [f"x1_{j}" for j in range(4)] + [f"x2_{j}" for j in range(4)]
        for p in range(NE):
            for x in resolve(rb[p - 1], rb[p], vm):
                a(x)
            loop_tail(a, tag, p == NE - 1)
    a.lab(f"P2_LOOP{tag}")
    for p in range(NE):
        rs = resolve(bs[p - 1], bs[p])
        if OPT["stamp"] == "4":
            rs = instrument(rs)
        for x in rs:
            a(x)
        loop_tail(a, tag, p == NE - 1)


def gen_p2():
    a = A()
    VT = 64
    VP = 84
    VR = 104
    VD = 124
    VE = 144
    VF = 200
    VX = 216
    VAP = 184
    a.lab("p2_kernel")
    a(f"""
    s_cmp_ge_u32 s2, {NB}
    s_cbranch_scc1 P2_END
    """)
    a.stamp(0)
    a.stamp3(0)
    if OPT["cpf2"] != "0":
        a("s_getpc_b64 s[52:53]")
        a.lab("P2_PC")
        a(f"""
        s_mov_b32 s54, P2_END-P2_PC
        s_mov_b32 s55, 0x20000
        v_lshlrev_b32 v28, 7, v0
        buffer_load_dword v29, v28, s[52:55], 0 offen
        """)
    a(f"""
    s_load_dwordx4 s[16:19], s[0:1], 0
    s_load_dwordx4 s[28:31], s[0:1], 16
    s_load_dwordx2 s[12:13], s[0:1], 56
    s_load_dwordx2 s[34:35], s[0:1], 72
    s_and_b32 s4, s2, 7
    s_lshl_b32 s4, s4, 5
    s_lshr_b32 s5, s2, 3
    s_add_u32 s4, s4, s5
    v_and_b32 v1, 63, v0
    v_lshrrev_b32 v5, 6, v0
    v_lshlrev_b32 v3, 4, v0
    v_lshlrev_b32 v4, 2, v0
    v_readfirstlane_b32 s3, v5
    s_mul_i32 s8, s4, {TROW}
    s_add_u32 s8, s8, {T_OFF}
    s_mul_i32 s6, s4, {NPB*128}
    v_and_b32 v56, 31, v1
    v_lshrrev_b32 v57, 5, v1
    v_and_b32 v58, 7, v1
    v_lshlrev_b32 v59, 2, v57
    v_xor_b32 v58, v58, v59
    v_lshlrev_b32 v{V_K[0]}, 4, v58
    s_waitcnt lgkmcnt(0)
    """)
    a.stamp3(1)
    a.srd(40, 34, 35, WS_SIZE)
    for k in range(NK):
        a(f"buffer_load_dwordx4 v[{VT+4*k}:{VT+4*k+3}], v3, s[40:43], s8 offen\ns_add_u32 s8, s8, 8192")
    a.srd(36, 16, 17, N * 128)
    a.srd(56, 18, 19, E * 32)
    if OPT["epf2"] != "0":
        f1 = 625 * int(OPT["epf1"]) // 8
        a(f"""
        v_add_u32 v60, {f1}, v0
        v_cmp_gt_u32 vcc, 625, v60
        v_lshlrev_b32 v60, 7, v60
        s_mul_i32 s9, s2, {CH*32}
        s_mov_b64 exec, vcc
        buffer_load_dword v61, v60, s[56:59], s9 offen {OPT['epf_pol']}
        s_add_u32 s9, s9, {256*CH*32}
        buffer_load_dword v61, v60, s[56:59], s9 offen {OPT['epf_pol']}
        s_mov_b64 exec, -1
        """)
    if OPT["xpf"] == "2":
        a(f"""
        s_mul_i32 s9, s5, {391*128}
        v_lshlrev_b32 v26, 7, v0
        v_cmp_gt_u32 vcc, 391, v0
        s_mov_b64 exec, vcc
        buffer_load_dword v28, v26, s[36:39], s9 offen
        s_mov_b64 exec, -1
        """)
    a(f"""
    s_add_u32 s44, s12, s6
    s_addc_u32 s45, s13, 0
    s_sub_u32 s46, {N*128}, s6
    s_min_u32 s46, s46, {NPB*128}
    s_mov_b32 s47, 0x20000
    s_mov_b32 s19, {0 if "nox" in OPT["abl"] else N*128}
    s_mov_b32 s18, {0 if "noe" in OPT["abl"] else E*32}
    """)
    NLD = 0
    a.stamp3(2)
    a(f"""
    s_lshl_b32 s20, s3, 13
    s_add_u32 s20, s20, {L_XB}
    v_lshlrev_b32 v{V_N8}, 3, v56
    v_lshlrev_b32 v{V_H16}, 4, v57
    v_lshrrev_b32 v58, 5, v0
    v_lshl_add_u32 v{V_N8H}, v58, 8, v{V_N8}
    v_xor_b32 v{V_K[1]}, 16, v{V_K[0]}
    v_xor_b32 v{V_K[2]}, 32, v{V_K[0]}
    v_xor_b32 v{V_K[3]}, 48, v{V_K[0]}
    v_and_b32 v58, 3, v56
    v_lshrrev_b32 v59, 2, v56
    v_lshl_add_u32 v59, v58, 3, v59
    v_lshlrev_b32 v59, 7, v59
    v_add_u32 v59, s20, v59
    v_lshrrev_b32 v60, 4, v56
    v_lshl_add_u32 v58, v60, 2, v58
    v_xor_b32 v58, v58, v57
    """)
    for t in range(4):
        a(f"""
        v_xor_b32 v60, {2*t}, v58
        v_lshl_add_u32 v{V_XR+t}, v60, 4, v59
        """)
    for k in range(8):
        a(f"v_mov_b32 v{V_RUN+k}, 0")
    a(f"""
    ds_write_b32 v{V_RUN}, v{V_RUN} offset:{L_FLAG}
    s_mov_b32 s23, 0
    s_mov_b32 s24, 0
    s_mov_b32 s25, 0
    s_mov_b32 s15, 0
    """)
    a.lab("P2_ROUND")
    a(f"""
    v_mov_b32 v32, {SENT}
    v_mov_b32 v33, {SENT}
    v_mov_b32 v34, {SENT}
    v_mov_b32 v35, {SENT}
    ds_write_b128 v3, v[32:35] offset:{L_SRC}
    ds_write_b128 v3, v[32:35] offset:{L_SRC+8192}
    ds_write_b128 v3, v[32:35] offset:{L_POS}
    ds_write_b128 v3, v[32:35] offset:{L_POS+8192}
    v_mov_b32 v36, {(NROW-1)*256}
    v_mov_b32 v37, {(NROW-1)*256}
    v_lshlrev_b32 v40, 3, v0
    ds_write_b64 v40, v[36:37] offset:{L_GT}
    v_mov_b32 v38, -1
    v_mov_b32 v39, -1
    ds_write_b64 v40, v[38:39] offset:{L_GM}
    v_mov_b32 v41, 0
    v_and_b32 v42, 0xfc, v4
    ds_write_b32 v42, v41 offset:{L_NCNT}
    v_mov_b32 v43, 1
    s_cmp_lg_u32 s24, 0
    s_cbranch_scc1 P2_SLOW
    """)
    a(f"""
    v_lshrrev_b32 v44, 3, v0
    v_mul_u32_u24 v13, {CH}, v44
    """)
    a.stamp3(3)
    a("s_waitcnt lgkmcnt(0)\ns_barrier")
    a.stamp3(4)
    for k in range(NK):
        a(f"s_waitcnt vmcnt({NK-1-k+(2 if OPT['epf2'] != '0' else 0)+(1 if OPT['xpf'] == '2' else 0)})")
        if k == 0:
            a.stamp(1)
        if k < 4:
            a.stamp3(5 + k)
        a(f"""
        v_cmp_eq_u32 vcc, -2, v{VT+4*k}
        s_cbranch_vccz P2_NOOVF{k}
        ds_or_b32 v41, v43 offset:{L_FLAG}
        s_branch P2_A_LD
        """)
        a.lab(f"P2_NOOVF{k}")
        for pos in range(4):
            j = 4 * k + pos
            a(f"v_cmpx_ne_u32 vcc, -1, v{VT+j}")
            if pos >= 2:
                a(f"s_cbranch_execz P2_A{k}")
            a(f"""
            v_bfe_u32 v{VD+j}, v{VT+j}, 14, 6
            v_lshlrev_b32 v{VD+j}, 2, v{VD+j}
            ds_add_rtn_u32 v{VR+j}, v{VD+j}, v43 offset:{L_NCNT}
            v_lshrrev_b32 v{VP+j}, 20, v{VT+j}
            v_add_lshl_u32 v{VP+j}, v{VP+j}, v13, 5
            v_and_b32 v{VE+j}, 0x3fff, v{VT+j}
            v_lshlrev_b32 v{VE+j}, 7, v{VE+j}
            """)
        a.lab(f"P2_A{k}")
        a(f"""
        s_mov_b64 exec, -1
        v_add_u32 v13, {64*CH}, v13
        """)
    a.lab("P2_A_LD")
    a("s_mov_b64 exec, -1")
    if OPT["xpf"] == "1":
        a(f"""
        s_mul_i32 s9, s5, {391*128}
        v_lshlrev_b32 v26, 7, v0
        v_cmp_gt_u32 vcc, 391, v0
        s_mov_b64 exec, vcc
        buffer_load_dword v28, v26, s[36:39], s9 offen
        s_mov_b64 exec, -1
        """)
    a(f"""
    s_and_b32 s9, s3, 3
    s_lshl_b32 s10, s9, 4
    v_xor_b32 v26, s10, v{V_K[0]}
    v_lshrrev_b32 v27, 3, v1
    v_lshl_add_u32 v26, v27, 9, v26
    s_lshr_b32 s10, s3, 2
    s_lshl_b32 s10, s10, 12
    s_lshl_b32 s11, s9, 7
    s_add_u32 s10, s10, s11
    s_add_u32 s10, s10, s6
    s_lshl_b32 s11, s3, 10
    s_add_u32 m0, s11, {L_PX}
    v_lshlrev_b32 v27, 4, v1
    buffer_load_dwordx4 v26, s[36:39], s10 offen lds
    s_add_u32 m0, s11, {L_ACC}
    s_add_u32 s10, s11, {WF_OFF}
    buffer_load_dwordx4 v27, s[40:43], s10 offen lds
    s_add_u32 m0, s11, {L_ACC+8192}
    s_add_u32 s10, s11, {WF_OFF+8192}
    buffer_load_dwordx4 v27, s[40:43], s10 offen lds
    s_and_b32 s11, s11, 0x400
    s_add_u32 m0, s11, {L_ACC+16384}
    s_add_u32 s10, s11, {WF_OFF+16384}
    buffer_load_dwordx4 v27, s[40:43], s10 offen lds
    s_lshl_b32 s9, s9, 12
    s_add_u32 s9, s9, {WF_OFF+18*1024}
    """)
    for t in range(4):
        a(f"buffer_load_dwordx4 v[{VF+4*t}:{VF+4*t+3}], v27, s[40:43], s9 offen offset:{1024*t}")
    a("s_branch P2_A_DONE")
    QCAP = 512 * JS
    a.lab("P2_SLOW")
    a.srd(48, 30, 31, E * 4)
    a.srd(52, 28, 29, E * 4)
    a(f"""
    ds_write_b32 v41, v41 offset:{L_WT}
    s_mul_i32 s26, s4, {NPB}
    v_mov_b32 v13, {L_XB}
    s_waitcnt lgkmcnt(0)
    s_barrier
    """)
    a.lab("P2_SCAN")
    a(f"""
    s_lshl_b32 s10, s23, 2
    v_add_u32 v45, s23, v0
    buffer_load_dword v44, v4, s[48:51], s10 offen
    v_cmp_gt_u32 vcc, {E}, v45
    s_mov_b64 s[10:11], vcc
    s_waitcnt vmcnt(0)
    v_subrev_u32 v44, s26, v44
    v_cmp_gt_u32 vcc, {NPB}, v44
    s_and_b64 exec, vcc, s[10:11]
    ds_add_rtn_u32 v46, v41, v43 offset:{L_WT}
    s_waitcnt lgkmcnt(0)
    v_lshl_add_u32 v46, v46, 2, v13
    ds_write_b32 v46, v45
    s_mov_b64 exec, -1
    s_add_u32 s23, s23, 512
    s_waitcnt lgkmcnt(0)
    s_barrier
    ds_read_b32 v46, v41 offset:{L_WT}
    s_waitcnt lgkmcnt(0)
    v_readfirstlane_b32 s27, v46
    s_barrier
    s_cmp_gt_u32 s27, {QCAP-512}
    s_cbranch_scc1 P2_SCAN_DONE
    s_cmp_lt_u32 s23, {E}
    s_cbranch_scc1 P2_SCAN
    """)
    a.lab("P2_SCAN_DONE")
    for j in range(4 * NK):
        a(f"v_mov_b32 v{VT+j}, -1")
    a(f"v_add_u32 v47, {L_XB}, v4")
    for j in range(JS):
        a(f"""
        v_add_u32 v44, {512*j}, v0
        v_cmp_gt_u32 vcc, s27, v44
        s_and_saveexec_b64 s[10:11], vcc
        s_cbranch_execz P2_A_DONE
        ds_read_b32 v45, v47 offset:{2048*j}
        s_waitcnt lgkmcnt(0)
        v_lshlrev_b32 v46, 2, v45
        buffer_load_dword v{VD+j}, v46, s[48:51], 0 offen
        buffer_load_dword v{VE+j}, v46, s[52:55], 0 offen
        v_lshlrev_b32 v{VP+j}, 5, v45
        v_mov_b32 v{VT+j}, 0
        s_waitcnt vmcnt(0)
        v_subrev_u32 v{VD+j}, s26, v{VD+j}
        v_lshlrev_b32 v{VD+j}, 2, v{VD+j}
        ds_add_rtn_u32 v{VR+j}, v{VD+j}, v43 offset:{L_NCNT}
        v_lshlrev_b32 v{VE+j}, 7, v{VE+j}
        """)
    a.lab("P2_A_DONE")
    a("s_mov_b64 exec, -1")
    a.stamp3(9)
    a(f"""
    v_lshlrev_b32 v44, 2, v1
    s_waitcnt lgkmcnt(0)
    s_barrier
    """)
    a.stamp3(10)
    a.stamp(2)
    a(f"""
    ds_read_b32 v45, v44 offset:{L_NCNT}
    ds_read_b32 v47, v41 offset:{L_FLAG}
    s_waitcnt lgkmcnt(0)
    v_add_u32 v32, 3, v45
    v_and_b32 v32, -4, v32
    v_mov_b32 v33, v32
    v_readfirstlane_b32 s14, v47
    """)
    a.wave_scan(33)
    a(f"""
    s_nop 0
    v_readlane_b32 s12, v33, 63
    v_add_u32 v34, -1, v33
    v_sub_u32 v33, v33, v32
    s_cmp_lg_u32 s24, 0
    s_cbranch_scc1 P2_CHK_DONE
    s_and_b32 s14, s14, 1
    s_cmp_gt_u32 s12, {SLOTS}
    s_cselect_b32 s14, 1, s14
    s_cmp_eq_u32 s14, 0
    s_cbranch_scc1 P2_CHK_DONE
    """)
    a(f"""
    s_mov_b32 s24, {E}
    s_waitcnt vmcnt(0)
    s_barrier
    s_branch P2_ROUND
    """)
    a.lab("P2_CHK_DONE")
    for k in range(NK):
        for pos in range(4):
            j = 4 * k + pos
            if pos == 2:
                a(f"v_cmp_ne_u32 vcc, -1, v{VT+j}\ns_cbranch_vccz P2_B1_{k}")
            a(f"ds_bpermute_b32 v{VD+j}, v{VD+j}, v33")
        a.lab(f"P2_B1_{k}")
    a(f"""
    s_add_u32 s12, s12, 31
    s_lshr_b32 s12, s12, 5
    s_add_u32 s21, s12, 7
    s_sub_u32 s21, s21, s3
    s_lshr_b32 s21, s21, 3
    s_lshr_b32 s13, s12, 3
    s_and_b32 s14, s12, 7
    """)
    a(f"""
    s_mul_i32 s10, s3, s13
    s_min_u32 s11, s3, s14
    s_add_u32 s10, s10, s11
    s_lshl_b32 s10, s10, 7
    s_lshl_b32 s11, s21, 6
    v_bfe_u32 v53, v1, 3, 1
    v_mul_u32_u24 v53, s11, v53
    v_lshrrev_b32 v54, 4, v1
    v_lshl_add_u32 v53, v54, 4, v53
    v_add_u32 v{V_AS}, s10, v53
    v_bfe_u32 v53, v1, 2, 1
    v_mul_u32_u24 v53, s11, v53
    v_bfe_u32 v54, v1, 3, 2
    v_lshl_add_u32 v53, v54, 4, v53
    v_and_b32 v54, 3, v1
    v_lshl_add_u32 v53, v54, 2, v53
    v_add_u32 v{V_AP}, s10, v53
    v_lshrrev_b32 v53, 5, v1
    v_mul_u32_u24 v53, s11, v53
    v_add_u32 v53, s10, v53
    v_lshrrev_b32 v{V_AG}, 2, v53
    s_waitcnt lgkmcnt(0)
    """)
    a.stamp3(11)
    for k in range(NK):
        for pos in range(4):
            j = 4 * k + pos
            a(f"v_cmpx_ne_u32 vcc, -1, v{VT+j}")
            if pos >= 2:
                a(f"s_cbranch_execz P2_B2_{k}")
            a(f"""
            v_add_lshl_u32 v{VR+j}, v{VR+j}, v{VD+j}, 2
            ds_write2st64_b32 v{VR+j}, v{VE+j}, v{VP+j} offset0:{L_SRC//256} offset1:{L_POS//256}
            """)
        a.lab(f"P2_B2_{k}")
        a("s_mov_b64 exec, -1")
    a.stamp3(12)
    a.stamp(3)
    a("s_waitcnt vmcnt(0) lgkmcnt(0)")
    a.stamp(4)
    a("s_barrier")
    a.stamp(5)
    a.stamp3(13)
    if OPT["stamp"] == "1":
        a("s_memtime s[82:83]\ns_mov_b32 s86, s21")
    if OPT["stamp"] == "2":
        a("s_memtime s[84:85]\ns_memrealtime s[88:89]")
    if "nomain" in OPT["abl"]:
        a("s_mov_b32 s21, 0")
    a.stamp5(0)
    if OPT["stamp"] == "6":
        a("s_memrealtime s[64:65]\ns_waitcnt lgkmcnt(0)\nv_writelane_b32 v9, s64, 0")
    gen_fill1(a, 0)
    a.stamp5(1)
    a(f"""
    s_lshl_b32 s10, s3, 2
    v_add_u32 v64, s10, v33
    v_add_u32 v65, v33, v32
    v_lshlrev_b32 v66, 8, v1
    s_cmp_eq_u32 s3, 0
    s_cselect_b32 s11, 0, -1
    v_mov_b32 v67, s11
    """)
    a.lab("P2_G_L")
    a(f"""
    v_cmpx_lt_u32 vcc, v64, v65
    s_cbranch_execz P2_G_DONE
    ds_write2st64_b32 v64, v66, v67 offset0:{L_GT//256} offset1:{L_GM//256}
    v_add_u32 v64, 32, v64
    v_mov_b32 v67, -1
    s_branch P2_G_L
    """)
    a.lab("P2_G_DONE")
    a("s_mov_b64 exec, -1")
    a(f"""
    s_cmp_lg_u32 s25, 0
    s_cbranch_scc1 P2_PREP_A
    s_lshr_b32 s9, s3, 2
    s_lshl_b32 s10, s9, 12
    s_add_u32 s10, s10, {L_PX}
    s_sub_u32 s10, s10, s20
    """)
    for t in range(4):
        a(f"""
        v_add_u32 v{64+t}, s10, v{V_XR+t}
        ds_read_b128 v[{VX+4*t}:{VX+4*t+3}], v{64+t}
        """)
    a(f"""
    s_lshl_b32 s9, s9, 13
    s_and_b32 s10, s3, 1
    s_lshl_b32 s10, s10, 2
    s_add_u32 s9, s9, s10
    v_lshl_add_u32 v2, v{V_H16}, 6, v{V_N8}
    v_add_u32 v2, s9, v2
    s_waitcnt lgkmcnt(0)
    """)
    for t in range(4):
        c = "0" if t == 0 else f"v[{VAP}:{VAP+15}]"
        a(f"v_mfma_f32_32x32x16_bf16 v[{VAP}:{VAP+15}], v[{VX+4*t}:{VX+4*t+3}], v[{VF+4*t}:{VF+4*t+3}], {c}")
    a.lab("P2_PREP_A")
    a(f"""
    s_add_u32 s10, s13, 1
    s_mul_i32 s11, s14, s10
    s_lshl_b32 s11, s11, 1
    v_cvt_f32_u32 v68, s10
    v_cvt_f32_u32 v69, s13
    v_rcp_f32 v68, v68
    v_rcp_f32 v69, v69
    s_lshl_b32 s10, s14, 1
    v_lshrrev_b32 v64, 4, v33
    v_bfe_u32 v65, v34, 4, 9
    """)
    for v in (64, 65):
        a(f"""
        v_cmp_gt_u32 vcc, s11, v{v}
        v_subrev_u32 v70, s11, v{v}
        s_nop 0
        v_cndmask_b32 v70, v70, v{v}, vcc
        v_cndmask_b32 v71, v69, v68, vcc
        v_cvt_f32_u32 v70, v70
        v_add_f32 v70, 0.5, v70
        v_mul_f32 v70, v70, v71
        v_cvt_u32_f32 v70, v70
        v_add_u32 v71, s10, v70
        v_cndmask_b32 v{v}, v71, v70, vcc
        """)
    a(f"""
    v_sub_u32 v65, v65, v64
    v_add_u32 v65, 1, v65
    v_cmp_ne_u32 vcc, 0, v32
    v_lshrrev_b32 v66, 4, v0
    v_lshlrev_b32 v66, 2, v66
    v_cndmask_b32 v65, 0, v65, vcc
    v_and_b32 v64, 15, v64
    v_lshl_or_b32 v65, v64, 8, v65
    v_add_u32 v67, 128, v66
    ds_bpermute_b32 v7, v66, v65
    ds_bpermute_b32 v8, v67, v65
    s_cmp_lg_u32 s25, 0
    s_cbranch_scc1 P2_PREP_SKIP
    s_bitcmp1_b32 s3, 1
    s_cbranch_scc1 P2_HU
    """)

    def dwrites(base):
        a("s_cmp_ge_u32 s3, 4\ns_cbranch_scc1 " + f"P2_DW1_{base}")
        for i in range(16):
            a(f"ds_write_b32 v2, v{VAP+i} offset:{base+(8*(i//4)+i%4)*256}")
        a(f"s_branch P2_DW2_{base}")
        a.lab(f"P2_DW1_{base}")
        for i in range(8):
            a(f"ds_write_b32 v2, v{VAP+i} offset:{base+(8*(i//4)+i%4)*256}")
        a("s_mov_b32 exec_hi, 0")
        for i in (8, 9):
            a(f"ds_write_b32 v2, v{VAP+i} offset:{base+(8*(i//4)+i%4)*256}")
        a("s_mov_b64 exec, -1")
        a.lab(f"P2_DW2_{base}")

    for i in range(16):
        a(f"v_mul_f32 v{VAP+i}, {NLOG2E:#x}, v{VAP+i}")
    a(f"v_max3_f32 v64, abs(v{VAP}), abs(v{VAP+1}), abs(v{VAP+2})")
    for i in range(3, 15, 2):
        a(f"v_max3_f32 v64, abs(v{VAP+i}), abs(v{VAP+i+1}), v64")
    a(f"""
    v_max_f32 v64, abs(v{VAP+15}), v64
    v_mov_b32 v65, 0x42700000
    v_cmp_lt_f32 s[10:11], v65, v64
    """)
    for i in range(0, 16, 2):
        a(f"""
        v_cmp_u_f32 vcc, v{VAP+i}, v{VAP+i+1}
        s_or_b64 s[10:11], s[10:11], vcc
        """)
    a(f"""
    s_cmp_eq_u64 s[10:11], 0
    s_cbranch_scc1 P2_EA_W
    v_mov_b32 v65, 2
    ds_or_b32 v41, v65 offset:{L_FLAG}
    s_branch P2_EA_W
    """)
    a.lab("P2_HU")
    a(f"v_add_u32 v2, {L_HU}, v2")
    for i in range(16):
        a(f"v_cvt_pk_bf16_f32 v{VAP+i}, v{VAP+i}, v{VAP+i}")
    for i in range(16):
        a(f"v_and_b32 v{VAP+i}, 0xffff0000, v{VAP+i}")
    dwrites(0)
    a.lab("P2_EA_W")
    a(f"""
    v_lshlrev_b32 v64, 4, v1
    v_add_u32 v64, {L_ACC}, v64
    """)
    for f in range(4, 18):
        a(f"ds_read_b128 {wfrag(f)}, v64 offset:{1024*f}")
    a.stamp5(2)
    a(f"""
    s_waitcnt lgkmcnt(0)
    s_barrier
    ds_read_b32 v65, v41 offset:{L_FLAG}
    """)
    a.stamp5(3)
    if OPT['fsplit'] == '1':
        gen_fill1(a, 1)
    a.stamp5(4)
    a(f"""
    s_waitcnt lgkmcnt(0)
    v_readfirstlane_b32 s15, v65
    s_lshr_b32 s15, s15, 1
    s_bitcmp1_b32 s3, 1
    s_cbranch_scc1 P2_EA3
    s_cmp_lg_u32 s15, 0
    s_cbranch_scc1 P2_EA2_W
    """)
    for k in range(16):
        a(f"v_exp_f32 v{VAP+k}, v{VAP+k}")
    a("s_nop 0")
    a.lab("P2_EA2_W")
    dwrites(L_EA)
    a.lab("P2_EA3")
    for f in range(4):
        a(f"ds_read_b128 {wfrag(f)}, v64 offset:{1024*f}")
    a("s_mov_b32 s25, 1")
    a("s_branch P2_PREP_DONE")
    a.lab("P2_PREP_SKIP")
    if OPT['fsplit'] == '1':
        a("s_waitcnt lgkmcnt(0)")
        gen_fill1(a, 1)
    a.lab("P2_PREP_DONE")
    a.stamp5(5)
    a(f"""
    s_waitcnt lgkmcnt(0)
    s_barrier
    """)
    a.stamp5(6)
    a.stamp5(7)
    a.stamp3(14)
    a(f"""
    s_cmp_eq_u32 s21, 0
    s_cbranch_scc1 P2_MAIN_DONE
    """)
    gen_fill2(a)
    if OPT["stamp"] == "6":
        a("s_memrealtime s[64:65]\ns_waitcnt lgkmcnt(0)\nv_writelane_b32 v9, s64, 1\ns_mov_b32 s66, 2")
    a.stamp(14)
    if OPT["stamp"] == "4":
        a("s_mov_b32 s70, 0\ns_mov_b32 s72, 0\ns_mov_b32 s74, 0\ns_memtime s[76:77]\ns_mov_b32 s80, s21")
    a(f"""
    s_cmp_lg_u32 s15, 0
    s_cbranch_scc1 P2_SAFE
    """)
    gen_loop(a, False, "F")
    gen_loop(a, True, "S")
    a.lab("P2_FLUSH")
    for g in range(4):
        a(f"ds_write_b32 v{V_G+g}, v{V_ACC[1]+g} offset:{L_ACC+4}")
    a.lab("P2_MAIN_DONE")
    if OPT["stamp"] == "2":
        a("s_memtime s[86:87]\ns_memrealtime s[90:91]")
    if OPT["stamp"] == "4":
        a("s_memtime s[78:79]")
    a.stamp(6)
    if OPT["stamp"] == "1":
        a("s_memtime s[84:85]\ns_getreg_b32 s88, hwreg(HW_REG_HW_ID)\ns_getreg_b32 s90, hwreg(HW_REG_XCC_ID)")
    a(f"""
    s_waitcnt vmcnt(0) lgkmcnt(0)
    s_barrier
    """)
    a.stamp(7)
    for h in range(2):
        a(f"""
        v_and_b32 v24, 0xff, v{7+h}
        v_and_b32 v25, 0xff00, v{7+h}
        v_add_u32 v25, v25, v3
        v_add_u32 v25, {L_ACC+8192*h}, v25
        """)
        a.lab(f"P2_FOLD{h}")
        a(f"""
        v_cmpx_lt_u32 vcc, 0, v24
        s_cbranch_execz P2_FOLD_DONE{h}
        ds_read_b128 v[32:35], v25
        v_add_u32 v24, -1, v24
        v_add_u32 v25, 0x100, v25
        s_waitcnt lgkmcnt(0)
        v_add_f32 v{V_RUN+4*h}, v{V_RUN+4*h}, v32
        v_add_f32 v{V_RUN+4*h+1}, v{V_RUN+4*h+1}, v33
        v_add_f32 v{V_RUN+4*h+2}, v{V_RUN+4*h+2}, v34
        v_add_f32 v{V_RUN+4*h+3}, v{V_RUN+4*h+3}, v35
        s_branch P2_FOLD{h}
        """)
        a.lab(f"P2_FOLD_DONE{h}")
        a("s_mov_b64 exec, -1")
    a(f"""
    s_cmp_lt_u32 s23, s24
    s_cbranch_scc1 P2_ROUND
    v_lshrrev_b32 v5, 4, v0
    v_and_b32 v6, 15, v0
    v_lshlrev_b32 v5, 7, v5
    v_lshl_add_u32 v5, v6, 2, v5
    v_add_u32 v6, 0x1000, v5
    """)
    for h in range(2):
        R = V_RUN + 4 * h
        a(f"""
        v_add_u32 v24, {L_HU+8192*h}, v3
        ds_read_b128 v[32:35], v24
        v_cvt_pk_bf16_f32 v36, v{R}, v{R+2}
        v_cvt_pk_bf16_f32 v37, v{R+1}, v{R+3}
        v_lshlrev_b32 v28, 16, v36
        v_and_b32 v30, 0xffff0000, v36
        v_lshlrev_b32 v29, 16, v37
        v_and_b32 v31, 0xffff0000, v37
        s_waitcnt lgkmcnt(0)
        v_add_f32 v28, v28, v32
        v_add_f32 v29, v29, v33
        v_add_f32 v30, v30, v34
        v_add_f32 v31, v31, v35
        v_cvt_pk_bf16_f32 v36, v28, v30
        v_cvt_pk_bf16_f32 v37, v29, v31
        v_lshlrev_b32 v28, 16, v36
        v_and_b32 v30, 0xffff0000, v36
        v_lshlrev_b32 v29, 16, v37
        v_and_b32 v31, 0xffff0000, v37
        """)
        for k in range(4):
            a(f"v_mul_f32 v{32+k}, {NLOG2E:#x}, v{28+k}")
        for k in range(4):
            a(f"v_exp_f32 v{32+k}, v{32+k}")
        for k in range(4):
            a(f"v_add_f32 v{32+k}, 1.0, v{32+k}")
        for k in range(4):
            a(f"v_rcp_f32 v{32+k}, v{32+k}")
        for k in range(4):
            a(f"v_mul_f32 v{28+k}, v{28+k}, v{32+k}")
        a(f"""
        v_cvt_pk_bf16_f32 v{38+2*h}, v28, v30
        v_cvt_pk_bf16_f32 v{39+2*h}, v29, v31
        buffer_store_dword v{38+2*h}, v{5+h}, s[44:47], 0 offen
        buffer_store_dword v{39+2*h}, v{5+h}, s[44:47], 0 offen offset:64
        """)
    a.stamp(8)
    if OPT["stamp"] == "6":
        a(f"""
        s_lshl_b32 s10, s2, 3
        s_add_u32 s10, s10, s3
        s_lshl_b32 s10, s10, 6
        s_add_u32 s10, s10, {DBG2_OFF}
        v_lshlrev_b32 v2, 2, v1
        s_mov_b64 exec, 0xffff
        buffer_store_dword v9, v2, s[40:43], s10 offen
        s_endpgm
        """)
    a.stamp_flush(15, 40, 8, DBG2_OFF)
    a.lab("P2_END")
    a("s_endpgm")
    return a.text()


HEAD = open("standalone__edge_featured_mpnn_egc__graph.s.ref").read().split("; Override launch")[0]


def kd(name, vgpr, sgpr):
    acc = (vgpr + 3) // 4 * 4
    return f""".amdhsa_kernel {name}
  .amdhsa_next_free_vgpr {vgpr}
  .amdhsa_next_free_sgpr {sgpr}
  .amdhsa_accum_offset {acc}
  .amdhsa_group_segment_fixed_size 0
  .amdhsa_kernarg_size 80
  .amdhsa_user_sgpr_count 2
  .amdhsa_user_sgpr_kernarg_segment_ptr 1
  .amdhsa_system_sgpr_workgroup_id_x 1
.end_amdhsa_kernel
"""


def main():
    out = HEAD
    out += f"; @launch kernel=p1_kernel grid=({NCH},1,1) block=(704,1,1) lds={P1_LDS}\n"
    out += f"; @launch kernel=p2_kernel grid=({NB},1,1) block=(512,1,1) lds={P2_LDS}\n"
    out += '.amdgcn_target "amdgcn-amd-amdhsa--gfx950"\n.text\n'
    out += ".globl p1_kernel\n.p2align 8\n.type p1_kernel,@function\n" + gen_p1()
    out += ".globl p2_kernel\n.p2align 8\n.type p2_kernel,@function\n" + gen_p2()
    out += '.section .rodata,"a"\n.p2align 6\n' + kd("p1_kernel", 64, 100) + ".p2align 6\n" + kd("p2_kernel", 256, 100)
    open(sys.argv[1], "w").write(out)


main()
```

```python
import sys

N = 12500; E = 800000
NCH = 320; CH = 2500
NK = NCH // 64
TROW = NCH * 128
NB = 256; NPB = 49; MUL = 21400
SUBN = 16
SLOTS = 4096
JS = 7
NLOG2E = 0xBFB8AA3B

T_OFF = 0x0
ENT_OFF = 0xA00000
HDR_OFF = 0xE00000
WF_OFF = 0xE80000
DBG1_OFF = 0x2C00000
DBG2_OFF = 0x2D00000
WS_SIZE = 0x3000000
NFRAG = 34

OPT = dict(p1_store="", p1_tstore="nt", p1_ld="nt", abl="", stamp="", prio_hi="1", prio_lo="0", xpf="0",
           p1_sched="[[0,1],[2,3],[4,5],[6]]", bunch="1", ne="4", e_pol="", epf1="0", epf2="0", epf_pol="", cpf="16", fsplit="1", cpf2="1", cpf1="0", kr_fake="0", tpf="0", la="3", mfo="0", xm="0", t_ld="")
for a_ in sys.argv[2:]:
    k_, v_ = a_.split("=")
    OPT[k_] = v_


class A:
    def __init__(self):
        self.l = []

    def __call__(self, s):
        for x in s.strip().split("\n"):
            self.l.append("    " + x.strip())

    def lab(self, s):
        self.l.append(s + ":")

    def srd(self, d, lo, hi, nrec, add=None):
        if add is None:
            self(f"s_mov_b32 s{d}, s{lo}\ns_mov_b32 s{d+1}, s{hi}")
        else:
            self(f"s_add_u32 s{d}, s{lo}, {add}\ns_addc_u32 s{d+1}, s{hi}, 0")
        self(f"s_mov_b32 s{d+2}, {nrec}\ns_mov_b32 s{d+3}, 0x20000")

    def wave_scan(self, v, full=True):
        for sh in (1, 2, 4, 8):
            self("s_nop 1")
            self(f"v_add_u32_dpp v{v}, v{v}, v{v} row_shr:{sh} row_mask:0xf bank_mask:0xf bound_ctrl:0")
        if full:
            self("s_nop 1")
            self(f"v_add_u32_dpp v{v}, v{v}, v{v} row_bcast:15 row_mask:0xa bank_mask:0xf")
            self("s_nop 1")
            self(f"v_add_u32_dpp v{v}, v{v}, v{v} row_bcast:31 row_mask:0xc bank_mask:0xf")

    def stamp(self, k):
        if OPT["stamp"] == "1":
            self(f"s_memrealtime s[{64+2*k}:{65+2*k}]")

    def stamp5(self, k):
        if OPT["stamp"] == "5":
            self(f"s_memtime s[{64+2*k}:{65+2*k}]")

    def stamp3(self, k):
        if OPT["stamp"] == "3":
            self(f"s_memtime s[{64+2*k}:{65+2*k}]")

    def stamp_flush(self, n, srd, nw, base):
        if not OPT["stamp"]:
            return
        self(f"""
        s_waitcnt lgkmcnt(0)
        s_mov_b64 exec, -1
        s_mul_i32 s10, s2, {nw}
        s_add_u32 s10, s10, s3
        s_lshl_b32 s10, s10, 6
        s_add_u32 s10, s10, {base}
        v_mov_b32 v1, 0
        """)
        for k in range(n):
            self(f"v_mov_b32 v2, s{64+2*k}\nbuffer_store_dword v2, v1, s[{srd}:{srd+3}], s10 offen offset:{4*k}\ns_nop 1")

    def text(self):
        return "\n".join(self.l) + "\n"


def sub_dl(j):
    return (1 if j < 10 else 8) + (j % 10) // 5, 6 * (j % 5)


def sub_src(j):
    return (3 if j < 10 else 10) + (j % 10) // 2, 16 * (j % 2)


P1_HIST = 0; P1_TI = 1024
P1_LDS = P1_TI + 32768


def gen_p1():
    a = A()
    ST = OPT["p1_store"]; TST = OPT["p1_tstore"]; LD = OPT["p1_ld"]
    a.lab("p1_kernel")
    a(f"""
    s_cmp_ge_u32 s2, {NCH}
    s_cbranch_scc1 P1_END
    """)
    a.stamp(0)
    if OPT["cpf1"] != "0":
        a("s_getpc_b64 s[52:53]")
        a.lab("P1_PC0")
        a(f"""
        s_mov_b32 s54, P1_END-P1_PC0
        s_mov_b32 s55, 0x20000
        v_lshlrev_b32 v62, 7, v0
        buffer_load_dword v63, v62, s[52:55], 0 offen
        """)
    a(f"""
    s_load_dwordx16 s[16:31], s[0:1], 0
    s_load_dwordx4 s[32:35], s[0:1], 64
    v_and_b32 v1, 63, v0
    v_lshrrev_b32 v5, 6, v0
    v_lshlrev_b32 v2, 4, v0
    v_lshlrev_b32 v3, 2, v0
    v_readfirstlane_b32 s3, v5
    v_lshlrev_b32 v4, 4, v1
    v_mov_b32 v6, 0
    v_and_b32 v7, 0x3fc, v3
    ds_write_b32 v7, v6 offset:{P1_HIST}
    s_mul_i32 s4, s2, {CH*4}
    v_and_b32 v24, 31, v1
    v_lshrrev_b32 v25, 5, v1
    s_waitcnt lgkmcnt(0)
    """)
    a.srd(44, 22, 23, CH * 4, "s4")
    a.srd(40, 20, 21, CH * 4, "s4")
    a(f"""
    buffer_load_dwordx4 v[8:11], v2, s[44:47], 0 offen {LD}
    buffer_load_dwordx4 v[12:15], v2, s[40:43], 0 offen {LD}
    """)
    if OPT["epf1"] != "0":
        nl = 625 * int(OPT["epf1"]) // 8
        a(f"s_mul_i32 s5, s2, {CH*32}")
        a.srd(36, 18, 19, nl * 128, "s5")
        a(f"v_lshlrev_b32 v60, 7, v0\nbuffer_load_dword v61, v60, s[36:39], 0 offen {OPT['epf_pol']}")
    a.srd(48, 34, 35, WS_SIZE)
    a.srd(56, 28, 29, 2048 - 64)
    a(f"""
    v_lshlrev_b32 v26, 10, v25
    v_lshl_add_u32 v26, v24, 1, v26
    s_mov_b32 s14, 1.0
    s_cmp_lg_u32 s3, 10
    s_cbranch_scc1 P1_FL_DONE
    s_cmp_ge_u32 s2, {NFRAG}
    s_cbranch_scc1 P1_FL_DONE
    s_sub_u32 s5, s2, 2
    s_cmp_ge_u32 s2, 18
    s_cselect_b32 s5, s5, s2
    s_and_b32 s6, s5, 3
    s_lshl_b32 s6, s6, 11
    s_lshr_b32 s7, s5, 2
    s_and_b32 s7, s7, 1
    s_lshl_b32 s7, s7, 6
    s_add_u32 s6, s6, s7
    s_cmp_ge_u32 s2, 8
    s_cbranch_scc1 P1_FL1
    s_add_u32 s6, s6, 8192
    s_mov_b32 s14, {NLOG2E}
    s_branch P1_FL3
    """)
    a.lab("P1_FL1")
    a(f"""
    s_cmp_ge_u32 s2, 16
    s_cbranch_scc1 P1_FL2
    s_mov_b32 s56, s26
    s_mov_b32 s57, s27
    s_branch P1_FL3
    """)
    a.lab("P1_FL2")
    a(f"""
    s_cmp_ge_u32 s2, 26
    s_cselect_b32 s56, s24, s28
    s_cselect_b32 s57, s25, s29
    s_cmp_ge_u32 s2, 18
    s_cbranch_scc1 P1_FL3
    s_mov_b32 s14, {NLOG2E}
    s_and_b32 s6, s2, 1
    s_lshl_b32 s6, s6, 6
    s_add_u32 s6, s6, 16384
    """)
    a.lab("P1_FL3")
    a(f"""
    s_add_u32 s56, s56, s6
    s_addc_u32 s57, s57, 0
    """)
    for jj in range(8):
        a(f"buffer_load_ushort v{40+jj}, v26, s[56:59], 0 offen offset:{jj*128}")
    a("s_waitcnt vmcnt(0)")
    for jj in range(8):
        a(f"v_lshlrev_b32 v{40+jj}, 16, v{40+jj}")
    for jj in range(8):
        a(f"v_mul_f32 v{40+jj}, s14, v{40+jj}")
    for q in range(4):
        a(f"v_cvt_pk_bf16_f32 v{48+q}, v{40+2*q}, v{40+2*q+1}")
    a(f"""
    s_lshl_b32 s6, s2, 10
    s_add_u32 s6, s6, {WF_OFF}
    buffer_store_dwordx4 v[48:51], v4, s[48:51], s6 offen
    s_endpgm
    """)
    a.lab("P1_FL_DONE")
    if OPT["cpf"] != "0":
        a(f"""
        s_cmp_lg_u32 s3, 10
        s_cbranch_scc1 P1_CPF_DONE
        s_cmp_ge_u32 s2, {64+int(OPT["cpf"])}
        s_cbranch_scc1 P1_XM
        s_getpc_b64 s[52:53]
        """)
        a.lab("P1_PC")
        a(f"""
        s_add_u32 s52, s52, p2_kernel-P1_PC
        s_addc_u32 s53, s53, 0
        s_mov_b32 s54, P2_END-p2_kernel
        s_mov_b32 s55, 0x20000
        v_lshlrev_b32 v40, 6, v1
        """)
        for k in range(6):
            a(f"buffer_load_dword v41, v40, s[52:55], 0 offen\nv_add_u32 v40, 0x1000, v40")
        if OPT["tpf"] != "0":
            sh = int(OPT["tpf"])
            a.srd(36, 18, 19, E * 32)
            a(f"v_lshlrev_b32 v40, {sh}, v1")
            for k in range(-(-E * 32 // (64 << sh))):
                a(f"buffer_load_dword v41, v40, s[36:39], 0 offen\nv_add_u32 v40, {64 << sh}, v40")
            a(f"v_lshlrev_b32 v40, {min(sh, 15)}, v1")
            a.srd(36, 16, 17, N * 128)
            a("buffer_load_dword v41, v40, s[36:39], 0 offen")
            a.srd(36, 30, 31, N * 128)
            a("buffer_load_dword v41, v40, s[36:39], 0 offen")
        a("s_endpgm")
        a.lab("P1_XM")
        if OPT["xm"] != "0":
            a.srd(36, 16, 17, N * 128)
            a(f"""
            s_sub_u32 s5, s2, {64+int(OPT["cpf"])}
            s_lshl_b32 s5, s5, 13
            v_lshlrev_b32 v40, 7, v1
            buffer_load_dword v41, v40, s[36:39], s5 offen
            """)
        a("s_endpgm")
        a.lab("P1_CPF_DONE")
    a(f"""
    s_cmp_ge_u32 s3, 10
    s_cbranch_scc1 P1_END
    v_mov_b32 v40, -1
    v_mov_b32 v41, -1
    v_mov_b32 v42, -1
    v_mov_b32 v43, -1
    ds_write_b128 v2, v[40:43] offset:{P1_TI}
    ds_write_b128 v2, v[40:43] offset:{P1_TI+10240}
    ds_write_b128 v2, v[40:43] offset:{P1_TI+20480}
    v_min_u32 v44, {127*16}, v2
    ds_write_b128 v44, v[40:43] offset:{P1_TI+30720}
    v_cmp_gt_u32 vcc, {CH//4}, v0
    s_mov_b64 s[8:9], vcc
    v_mov_b32 v30, 1
    v_lshrrev_b32 v7, 3, v0
    v_lshlrev_b32 v6, 2, v7
    v_and_b32 v27, 7, v0
    s_lshl_b32 s6, s2, 7
    s_add_u32 s6, s6, {T_OFF}
    v_mul_u32_u24 v28, {TROW}, v7
    v_lshl_or_b32 v28, v27, 4, v28
    s_waitcnt lgkmcnt(0)
    s_barrier
    s_waitcnt vmcnt(1)
    """)
    a.stamp(1)
    a("s_mov_b64 exec, s[8:9]")
    for e in range(4):
        a(f"""
        v_mul_u32_u24 v{16+e}, {MUL}, v{8+e}
        v_lshrrev_b32 v31, 20, v{16+e}
        v_lshlrev_b32 v{16+e}, 2, v31
        ds_add_rtn_u32 v{20+e}, v{16+e}, v30 offset:{P1_HIST}
        v_mul_u32_u24 v31, {NPB}, v31
        v_sub_u32 v{8+e}, v{8+e}, v31
        """)
    a("s_waitcnt vmcnt(0)")
    for e in range(4):
        a(f"""
        v_lshl_or_b32 v{36+e}, v{8+e}, 14, v{12+e}
        v_add_u32 v31, {e}, v3
        v_lshl_or_b32 v{36+e}, v31, 20, v{36+e}
        """)
    a.stamp(2)
    for e in range(4):
        a(f"""
        s_waitcnt lgkmcnt(3)
        v_and_b32 v31, 7, v{20+e}
        v_lshlrev_b32 v31, 4, v31
        v_lshl_add_u32 v{16+e}, v{16+e}, 5, v31
        v_lshrrev_b32 v31, 3, v{20+e}
        v_cmp_gt_u32 vcc, 32, v{20+e}
        v_lshl_add_u32 v{16+e}, v31, 2, v{16+e}
        s_and_b64 exec, s[8:9], vcc
        ds_write_b32 v{16+e}, v{36+e} offset:{P1_TI}
        s_mov_b64 exec, s[8:9]
        """)
    a("s_mov_b64 exec, -1\ns_waitcnt lgkmcnt(0)")
    a.stamp(3)
    a("s_barrier")
    a.stamp(4)
    a.stamp(5)
    a.stamp(6)
    for r in range(4):
        a(f"""
        ds_read_b32 v{44+r}, v6 offset:{P1_HIST+320*r}
        ds_read_b128 v[{8+4*r}:{11+4*r}], v2 offset:{P1_TI+10240*r}
        """)
    for r in range(4):
        if r == 3:
            a(f"""
            s_cmp_ge_u32 s3, 2
            s_cbranch_scc1 P1_FIN
            """)
        a(f"""
        s_waitcnt lgkmcnt({7-2*r})
        v_cmp_lt_u32 vcc, 32, v{44+r}
        s_waitcnt lgkmcnt({6-2*r})
        s_nop 0
        v_cndmask_b32 v{8+4*r}, v{8+4*r}, -2, vcc
        buffer_store_dwordx4 v[{8+4*r}:{11+4*r}], v28, s[48:51], s6 offen {TST}
        s_add_u32 s6, s6, {80*TROW}
        """)
    a.lab("P1_FIN")
    a.stamp(7)
    if OPT["stamp"]:
        a("s_waitcnt vmcnt(0)")
    a.stamp(8)
    a.stamp_flush(9, 48, 16, DBG1_OFF)
    a.lab("P1_END")
    a("s_endpgm")
    return a.text()


L_NCNT = 0; L_FLAG = 256; L_WT = 272
L_SRC = 512; L_POS = L_SRC + 16384; L_GT = L_POS + 16384; L_GM = L_GT + 4096; L_EA = L_GM + 4096
NROW = 50
L_ACC = L_EA + NROW * 256
L_XB = L_ACC + 18432
L_HU = L_XB + 65536
L_PX = L_HU + NROW * 256
P2_LDS = L_PX + 8192
assert P2_LDS <= 163840 and L_ACC + 4 < 65536 and (16 + NROW) * 256 <= 18432
SENT = 0x40000000

V_W = 184
V_Z0 = 64; V_H0 = 80; V_Z1 = 96; V_H1 = 112
V_XA = (128, 28); V_EA = (144, 44, 24, 56)
V_G = 148; V_GR = 152; V_EV = 156
V_SL = 164
V_ACC = (168, 52)
V_XR = 172
V_PS = 176
V_AS = 177; V_AP = 178; V_AG = 179
V_N8 = 181; V_H16 = 182; V_N8H = 183
V_K = (180, 10, 11, 12)
V_GE = 60
V_GM = 48
V_RUN = 16
NE = int(OPT["ne"])
LA = int(OPT["la"])


def wfrag(f):
    return f"v[{V_W+4*f}:{V_W+4*f+3}]"


def mf_list(u, Z, H, ph):
    xa = V_XA[ph % 2]; ea = V_EA[ph % NE]
    l = [f"v_mfma_f32_32x32x16_bf16 v[{Z}:{Z+15}], v[{ea}:{ea+3}], {wfrag(16+u)}, 0"]
    for t in range(4):
        l.append(f"v_mfma_f32_32x32x16_bf16 v[{Z}:{Z+15}], v[{xa+4*t}:{xa+4*t+3}], {wfrag(u*4+t)}, v[{Z}:{Z+15}]")
    for t in range(4):
        c = "0" if t == 0 else f"v[{H}:{H+15}]"
        l.append(f"v_mfma_f32_32x32x16_bf16 v[{H}:{H+15}], v[{xa+4*t}:{xa+4*t+3}], {wfrag(8+u*4+t)}, {c}")
    if OPT["mfo"] == "1":
        l = [l[0], l[1], l[5], l[2], l[6], l[3], l[7], l[4], l[8]]
    return l


RAMP_POS = {2: 5, 3: 6, 4: 13, 5: 2}


def body(ph, safe, ramp=False):
    out = []
    par = ph % 2
    npar = 1 - par
    PH = OPT["prio_hi"]; PL = OPT["prio_lo"]
    cnt = [0]
    bunch = OPT["bunch"] == "1"

    def lstamp():
        if OPT["stamp"] == "2" and ph == 1:
            out.append(f"s_memtime s[{64+2*cnt[0]}:{65+2*cnt[0]}]")
            cnt[0] += 1

    def trun(instrs, mf, fill):
        lstamp()
        if PH != PL:
            out.append(f"s_setprio {PH}")
        mf = list(mf)
        for k, x in enumerate(instrs):
            out.append(x)
            if k % 3 == 0 and mf:
                out.append(mf.pop(0))
            elif fill:
                if bunch:
                    out.extend(fill); del fill[:]
                else:
                    out.append(fill.pop(0))
        assert not mf
        if PH != PL:
            out.append(f"s_setprio {PL}")

    def half(u, Z, H, mf, fill, preF, postF, fillR, preM, postM):
        ev = lambda i: V_EV + 2 * (i // 4) + u
        if safe:
            if u == 0:
                out.append(("W", "ev3"))
            out.extend(f"v_add_f32 v{Z+i}, v{ev(i)}, v{Z+i}" for i in range(16))
        trun([f"v_exp_f32 v{Z+i}, v{Z+i}" for i in range(16)], mf[:5], fill)
        lstamp()
        out.extend(preF)
        if safe:
            out.extend(f"v_add_f32 v{Z+i}, 1.0, v{Z+i}" for i in range(16))
        else:
            out.extend(f"v_fma_f32 v{Z+i}, v{Z+i}, v{ev(i)}, 1.0" for i in range(16))
        out.extend(postF)
        fill.extend(fillR)
        trun([f"v_rcp_f32 v{Z+i}, v{Z+i}" for i in range(16)], mf[5:], fill)
        assert not fill, fill
        lstamp()
        out.extend(preM)
        A_ = V_ACC[u]
        for g in range(4):
            out.append(f"v_and_b32 v{A_+g}, v{A_+(g+3)%4}, v{V_GM+g}")
            out.extend(f"v_fmac_f32 v{A_+g}, v{Z+4*g+k}, v{H+4*g+k}" for k in range(4))
        out.extend(postM)

    def accw(u):
        return [("L", f"ds_write_b32 v{V_G+g}, v{V_ACC[u]+g} offset:{L_ACC+4*u}", None) for g in range(4)]

    xa = V_XA[npar]
    def eload(k, reg):
        return [f"s_cmp_gt_u32 s21, {k-ph}", "s_cselect_b32 s58, s18, 0",
                ("M", f"buffer_load_dwordx4 v[{V_EA[k%NE]}:{V_EA[k%NE]+3}], v{reg}, s[56:59], 0 offen {OPT['e_pol']}", f"e{k}")]
    if ramp and ph < LA - 2:
        fill = eload(2 + 2 * ph, RAMP_POS[2 + 2 * ph]) + accw(1)
    else:
        fill = eload(ph + LA, V_PS) + accw(1)
    fill.append(("L", f"ds_read_b128 v[{V_GM}:{V_GM+3}], v{V_AG} offset:{L_GM+16*ph}", "gm"))
    preF = [f"v_add_u32 v{V_G+g}, v{V_GR+g}, v{V_N8H}" for g in range(4)] + ([] if safe else [("W", "ev3")])
    fillR = [("V", (f"x{ph+1}_3", f"e{ph+1}"))] if ramp else [f"s_waitcnt vmcnt({5 if NE == 2 else 6})"]
    for t in range(4):
        fillR.append(("L", f"ds_read_b128 v[{xa+4*t}:{xa+4*t+3}], v{V_XR+t} offset:{npar*4096}", f"xa{t}"))
    fillR += [("L", f"ds_read_b128 v[{V_SL}:{V_SL+3}], v{V_AS} offset:{L_SRC+64*(3+ph)}", "sl"),
              ("L", f"ds_read_b128 v[{V_GR}:{V_GR+3}], v{V_AG} offset:{L_GT+16*(1+ph)}", "gr"),
              ("L", f"ds_read_b32 v{V_PS}, v{V_AP} offset:{L_POS+64*(LA+1+ph)}", "pos"),
              "s_cmp_gt_u32 s21, 3", "s_cselect_b32 s38, s19, 0", f"s_add_u32 m0, s20, {npar*4096}"]
    postM = [("W", "sl")] + [f"v_or_b32 v{V_SL+j}, v{V_SL+j}, v{V_K[j]}" for j in range(4)]
    half(0, V_Z0, V_H0, mf_list(1, V_Z1, V_H1, ph), fill, preF, [], fillR, [("W", "gm")], postM)
    fill = []
    aw = accw(0)
    for j in range(4):
        fill.append(("M", f"buffer_load_dwordx4 v{V_SL+j}, s[36:39], 0 offen lds", f"x{ph+3}_{j}"))
        if j < 3:
            fill.append(f"s_add_u32 m0, s20, {npar*4096+(j+1)*1024}")
        fill.append(aw[j])
    if ramp and ph < LA - 2:
        fill += eload(3 + 2 * ph, RAMP_POS[3 + 2 * ph])
    postF = [("W", "pos")] + [f"v_add_u32 v{V_GE+g}, v{V_GR+g}, v{V_N8}" for g in range(4)]
    postF.append(f"v_add_u32 v{V_PS}, v{V_PS}, v{V_H16}")
    fillR = [("L", f"ds_read_b64 v[{V_EV+2*g}:{V_EV+2*g+1}], v{V_GE+g} offset:{L_EA}", f"ev{g}") for g in range(4)]
    half(1, V_Z1, V_H1, mf_list(0, V_Z0, V_H0, ph + 1), fill, [], postF, fillR, [], [])
    lstamp()
    if "nomfma" in OPT["abl"]:
        out = [x for x in out if not (isinstance(x, str) and "mfma" in x)]
    if "novalu" in OPT["abl"]:
        out = [x for x in out if not (isinstance(x, str) and any(k in x for k in ("v_exp", "v_rcp", "v_fma", "v_fmac")))]
    return out


def instrument(items):
    out = []
    for x in items:
        acc = None
        if isinstance(x, str):
            if x.startswith("s_waitcnt vmcnt"): acc = 70
            elif x.startswith("buffer_load") and "lds" not in x: acc = 71
            elif x.startswith("buffer_load"): acc = 72
        if acc:
            out += ["s_memtime s[64:65]", "s_waitcnt lgkmcnt(0)", x, "s_memtime s[66:67]", "s_waitcnt lgkmcnt(0)",
                    "s_sub_u32 s68, s66, s64", f"s_add_u32 s{acc+2*(acc-70)+4-0 if False else {70:70,71:72,72:74}[acc]}, s{ {70:70,71:72,72:74}[acc] }, s68"]
        else:
            out.append(x)
    return out


def resolve(prev, cur, vm=None):
    seq = prev + cur
    res = []
    for i, x in enumerate(seq):
        if i < len(prev):
            continue
        if isinstance(x, str):
            res.append(x)
        elif x[0] == "L":
            res.append(x[1])
        elif x[0] == "M":
            res.append(x[1])
            if vm is not None:
                vm.append(x[2])
        elif x[0] == "V":
            last = max(vm.index(t) for t in x[1])
            res.append(f"s_waitcnt vmcnt({len(vm)-1-last})")
        else:
            n = 0
            k = i - 1
            while not (isinstance(seq[k], tuple) and seq[k][0] == "L" and seq[k][2] == x[1]):
                if isinstance(seq[k], tuple) and seq[k][0] == "L":
                    n += 1
                k -= 1
                assert k >= 0, x
            res.append(f"s_waitcnt lgkmcnt({min(n, 15)})")
    return res


def eld(a, k):
    a(f"""
    s_cmp_gt_u32 s21, {k}
    s_cselect_b32 s58, s18, 0
    v_add_u32 v{V_GE+k}, v{V_GE+k}, v{V_H16}
    buffer_load_dwordx4 v[{V_EA[k]}:{V_EA[k]+3}], v{V_GE+k}, s[56:59], 0 offen {OPT['e_pol']}
    """)


def gen_fill1(a, part):
    if part == 0:
        a(f"""
        ds_read_b128 v[{V_SL}:{V_SL+3}], v{V_AS} offset:{L_SRC}
        ds_read_b32 v{V_GE}, v{V_AP} offset:{L_POS}
        ds_read_b32 v{V_GE+1}, v{V_AP} offset:{L_POS+64}
        ds_read_b128 v[{V_ACC[0]}:{V_ACC[0]+3}], v{V_AS} offset:{L_SRC+64}
        s_waitcnt lgkmcnt(2)
        """)
        eld(a, 0)
        xld(a, 0, V_SL, 0)
        a(f"ds_read_b128 v[{V_SL}:{V_SL+3}], v{V_AS} offset:{L_SRC+128}")
    elif part == 1:
        eld(a, 1)
        xld(a, 1, V_ACC[0], 1)


def xld(a, b, vb, k):
    a(f"s_cmp_gt_u32 s21, {k}\ns_cselect_b32 s38, s19, 0")
    for j in range(4):
        a(f"""
        s_add_u32 m0, s20, {b*4096+j*1024}
        v_or_b32 v{vb+j}, v{vb+j}, v{V_K[j]}
        buffer_load_dwordx4 v{vb+j}, s[36:39], 0 offen lds
        """)


def gen_fill2(a):
    xa = V_XA[0]
    a(f"ds_read_b128 v[{V_GR}:{V_GR+3}], v{V_AG} offset:{L_GT}")
    for k, r in RAMP_POS.items():
        a(f"ds_read_b32 v{r}, v{V_AP} offset:{L_POS+64*k}")
    a(f"""
    v_mov_b32 v{V_ACC[0]+3}, 0
    v_mov_b32 v{V_ACC[1]+3}, 0
    s_waitcnt vmcnt(5)
    """)
    for t in range(4):
        a(f"ds_read_b128 v[{xa+4*t}:{xa+4*t+3}], v{V_XR+t}")
    a("s_waitcnt lgkmcnt(4)")
    for g in range(4):
        a(f"""
        v_add_u32 v{V_GE+g}, v{V_GR+g}, v{V_N8}
        v_add_u32 v{V_G+g}, v{V_GR+g}, v{V_N8H}
        ds_read_b64 v[{V_EV+2*g}:{V_EV+2*g+1}], v{V_GE+g} offset:{L_EA}
        """)
    for k, r in RAMP_POS.items():
        a(f"v_add_u32 v{r}, v{r}, v{V_H16}")
    a("s_waitcnt lgkmcnt(4)")
    for m in mf_list(0, V_Z0, V_H0, 0):
        a(m)
    xld(a, 0, V_SL, 2)
    a("s_waitcnt lgkmcnt(0)\ns_nop 3")


def loop_tail(a, tag, last):
    if OPT["stamp"] == "6":
        a("s_memrealtime s[64:65]\ns_waitcnt lgkmcnt(0)\ns_mov_b32 m0, s66\ns_nop 3\nv_writelane_b32 v9, s64, m0\ns_add_u32 s66, s66, 1")
    if not last:
        a(f"""
        s_sub_u32 s21, s21, 1
        s_cmp_eq_u32 s21, 0
        s_cbranch_scc1 P2_FLUSH
        """)
    else:
        a(f"""
        v_add_u32 v{V_AS}, {64*NE}, v{V_AS}
        v_add_u32 v{V_AP}, {64*NE}, v{V_AP}
        v_add_u32 v{V_AG}, {16*NE}, v{V_AG}
        s_sub_u32 s21, s21, 1
        s_cmp_lg_u32 s21, 0
        s_cbranch_scc1 P2_LOOP{tag}
        s_branch P2_FLUSH
        """)


def gen_loop(a, safe, tag):
    bs = [body(p, safe) for p in range(NE)]
    if safe:
        a.lab("P2_SAFE")
        for k in range(2, LA):
            a(f"""
            s_cmp_gt_u32 s21, {k}
            s_cselect_b32 s58, s18, 0
            buffer_load_dwordx4 v[{V_EA[k]}:{V_EA[k]+3}], v{RAMP_POS[k]}, s[56:59], 0 offen
            """)
        a(f"v_mov_b32 v{V_PS}, v{RAMP_POS[LA]}\ns_waitcnt vmcnt(0)")
    else:
        rb = [body(p, safe, ramp=True) for p in range(NE)]
        vm = ["e0"] + [f"x0_{j}" for j in range(4)] + ["e1"] + [f"x1_{j}" for j in range(4)] + [f"x2_{j}" for j in range(4)]
        for p in range(NE):
            for x in resolve(rb[p - 1], rb[p], vm):
                a(x)
            loop_tail(a, tag, p == NE - 1)
    a.lab(f"P2_LOOP{tag}")
    for p in range(NE):
        rs = resolve(bs[p - 1], bs[p])
        if OPT["stamp"] == "4":
            rs = instrument(rs)
        for x in rs:
            a(x)
        loop_tail(a, tag, p == NE - 1)


def gen_p2():
    a = A()
    VT = 64
    VP = 84
    VR = 104
    VD = 124
    VE = 144
    VF = 200
    VX = 216
    VAP = 184
    a.lab("p2_kernel")
    a(f"""
    s_cmp_ge_u32 s2, {NB}
    s_cbranch_scc1 P2_END
    """)
    a.stamp(0)
    a.stamp3(0)
    if OPT["cpf2"] != "0":
        a("s_getpc_b64 s[52:53]")
        a.lab("P2_PC")
        a(f"""
        s_mov_b32 s54, P2_END-P2_PC
        s_mov_b32 s55, 0x20000
        v_lshlrev_b32 v28, 7, v0
        buffer_load_dword v29, v28, s[52:55], 0 offen
        """)
    a(f"""
    s_load_dwordx4 s[16:19], s[0:1], 0
    s_load_dwordx4 s[28:31], s[0:1], 16
    s_load_dwordx2 s[12:13], s[0:1], 56
    s_load_dwordx2 s[34:35], s[0:1], 72
    s_and_b32 s4, s2, 7
    s_lshl_b32 s4, s4, 5
    s_lshr_b32 s5, s2, 3
    s_add_u32 s4, s4, s5
    v_and_b32 v1, 63, v0
    v_lshrrev_b32 v5, 6, v0
    v_lshlrev_b32 v3, 4, v0
    v_lshlrev_b32 v4, 2, v0
    v_readfirstlane_b32 s3, v5
    s_mul_i32 s8, s4, {TROW}
    s_add_u32 s8, s8, {T_OFF}
    s_mul_i32 s6, s4, {NPB*128}
    v_and_b32 v56, 31, v1
    v_lshrrev_b32 v57, 5, v1
    v_and_b32 v58, 7, v1
    v_lshlrev_b32 v59, 2, v57
    v_xor_b32 v58, v58, v59
    v_lshlrev_b32 v{V_K[0]}, 4, v58
    s_waitcnt lgkmcnt(0)
    """)
    a.stamp3(1)
    a.srd(40, 34, 35, WS_SIZE)
    for k in range(NK):
        a(f"buffer_load_dwordx4 v[{VT+4*k}:{VT+4*k+3}], v3, s[40:43], s8 offen {OPT['t_ld']}\ns_add_u32 s8, s8, 8192")
    a.srd(36, 16, 17, N * 128)
    a.srd(56, 18, 19, E * 32)
    if OPT["epf2"] != "0":
        f1 = 625 * int(OPT["epf1"]) // 8
        a(f"""
        v_add_u32 v60, {f1}, v0
        v_cmp_gt_u32 vcc, 625, v60
        v_lshlrev_b32 v60, 7, v60
        s_mul_i32 s9, s2, {CH*32}
        s_mov_b64 exec, vcc
        buffer_load_dword v61, v60, s[56:59], s9 offen {OPT['epf_pol']}
        s_add_u32 s9, s9, {256*CH*32}
        buffer_load_dword v61, v60, s[56:59], s9 offen {OPT['epf_pol']}
        s_mov_b64 exec, -1
        """)
    if OPT["xpf"] == "2":
        a(f"""
        s_mul_i32 s9, s5, {391*128}
        v_lshlrev_b32 v26, 7, v0
        v_cmp_gt_u32 vcc, 391, v0
        s_mov_b64 exec, vcc
        buffer_load_dword v28, v26, s[36:39], s9 offen
        s_mov_b64 exec, -1
        """)
    a(f"""
    s_add_u32 s44, s12, s6
    s_addc_u32 s45, s13, 0
    s_sub_u32 s46, {N*128}, s6
    s_min_u32 s46, s46, {NPB*128}
    s_mov_b32 s47, 0x20000
    s_mov_b32 s19, {0 if "nox" in OPT["abl"] else N*128}
    s_mov_b32 s18, {0 if "noe" in OPT["abl"] else E*32}
    """)
    NLD = 0
    a.stamp3(2)
    a(f"""
    s_lshl_b32 s20, s3, 13
    s_add_u32 s20, s20, {L_XB}
    v_lshlrev_b32 v{V_N8}, 3, v56
    v_lshlrev_b32 v{V_H16}, 4, v57
    v_lshrrev_b32 v58, 5, v0
    v_lshl_add_u32 v{V_N8H}, v58, 8, v{V_N8}
    v_xor_b32 v{V_K[1]}, 16, v{V_K[0]}
    v_xor_b32 v{V_K[2]}, 32, v{V_K[0]}
    v_xor_b32 v{V_K[3]}, 48, v{V_K[0]}
    v_and_b32 v58, 3, v56
    v_lshrrev_b32 v59, 2, v56
    v_lshl_add_u32 v59, v58, 3, v59
    v_lshlrev_b32 v59, 7, v59
    v_add_u32 v59, s20, v59
    v_lshrrev_b32 v60, 4, v56
    v_lshl_add_u32 v58, v60, 2, v58
    v_xor_b32 v58, v58, v57
    """)
    for t in range(4):
        a(f"""
        v_xor_b32 v60, {2*t}, v58
        v_lshl_add_u32 v{V_XR+t}, v60, 4, v59
        """)
    for k in range(8):
        a(f"v_mov_b32 v{V_RUN+k}, 0")
    a(f"""
    ds_write_b32 v{V_RUN}, v{V_RUN} offset:{L_FLAG}
    s_mov_b32 s23, 0
    s_mov_b32 s24, 0
    s_mov_b32 s25, 0
    s_mov_b32 s15, 0
    """)
    a.lab("P2_ROUND")
    a(f"""
    v_mov_b32 v32, {SENT}
    v_mov_b32 v33, {SENT}
    v_mov_b32 v34, {SENT}
    v_mov_b32 v35, {SENT}
    ds_write_b128 v3, v[32:35] offset:{L_SRC}
    ds_write_b128 v3, v[32:35] offset:{L_SRC+8192}
    ds_write_b128 v3, v[32:35] offset:{L_POS}
    ds_write_b128 v3, v[32:35] offset:{L_POS+8192}
    v_mov_b32 v36, {(NROW-1)*256}
    v_mov_b32 v37, {(NROW-1)*256}
    v_lshlrev_b32 v40, 3, v0
    ds_write_b64 v40, v[36:37] offset:{L_GT}
    v_mov_b32 v38, -1
    v_mov_b32 v39, -1
    ds_write_b64 v40, v[38:39] offset:{L_GM}
    v_mov_b32 v41, 0
    v_and_b32 v42, 0xfc, v4
    ds_write_b32 v42, v41 offset:{L_NCNT}
    v_mov_b32 v43, 1
    s_cmp_lg_u32 s24, 0
    s_cbranch_scc1 P2_SLOW
    """)
    a(f"""
    v_lshrrev_b32 v44, 3, v0
    v_mul_u32_u24 v13, {CH}, v44
    """)
    a.stamp3(3)
    a("s_waitcnt lgkmcnt(0)\ns_barrier")
    a.stamp3(4)
    for k in range(NK):
        a(f"s_waitcnt vmcnt({NK-1-k+(2 if OPT['epf2'] != '0' else 0)+(1 if OPT['xpf'] == '2' else 0)})")
        if k == 0:
            a.stamp(1)
        if k < 4:
            a.stamp3(5 + k)
        a(f"""
        v_cmp_eq_u32 vcc, -2, v{VT+4*k}
        s_cbranch_vccz P2_NOOVF{k}
        ds_or_b32 v41, v43 offset:{L_FLAG}
        s_branch P2_A_LD
        """)
        a.lab(f"P2_NOOVF{k}")
        for pos in range(4):
            j = 4 * k + pos
            a(f"v_cmpx_ne_u32 vcc, -1, v{VT+j}")
            if pos >= 2:
                a(f"s_cbranch_execz P2_A{k}")
            a(f"""
            v_bfe_u32 v{VD+j}, v{VT+j}, 14, 6
            v_lshlrev_b32 v{VD+j}, 2, v{VD+j}
            ds_add_rtn_u32 v{VR+j}, v{VD+j}, v43 offset:{L_NCNT}
            v_lshrrev_b32 v{VP+j}, 20, v{VT+j}
            v_add_lshl_u32 v{VP+j}, v{VP+j}, v13, 5
            v_and_b32 v{VE+j}, 0x3fff, v{VT+j}
            v_lshlrev_b32 v{VE+j}, 7, v{VE+j}
            """)
        a.lab(f"P2_A{k}")
        a(f"""
        s_mov_b64 exec, -1
        v_add_u32 v13, {64*CH}, v13
        """)
    a.lab("P2_A_LD")
    a("s_mov_b64 exec, -1")
    if OPT["xpf"] == "1":
        a(f"""
        s_mul_i32 s9, s5, {391*128}
        v_lshlrev_b32 v26, 7, v0
        v_cmp_gt_u32 vcc, 391, v0
        s_mov_b64 exec, vcc
        buffer_load_dword v28, v26, s[36:39], s9 offen
        s_mov_b64 exec, -1
        """)
    a(f"""
    s_and_b32 s9, s3, 3
    s_lshl_b32 s10, s9, 4
    v_xor_b32 v26, s10, v{V_K[0]}
    v_lshrrev_b32 v27, 3, v1
    v_lshl_add_u32 v26, v27, 9, v26
    s_lshr_b32 s10, s3, 2
    s_lshl_b32 s10, s10, 12
    s_lshl_b32 s11, s9, 7
    s_add_u32 s10, s10, s11
    s_add_u32 s10, s10, s6
    s_lshl_b32 s11, s3, 10
    s_add_u32 m0, s11, {L_PX}
    v_lshlrev_b32 v27, 4, v1
    buffer_load_dwordx4 v26, s[36:39], s10 offen lds
    s_add_u32 m0, s11, {L_ACC}
    s_add_u32 s10, s11, {WF_OFF}
    buffer_load_dwordx4 v27, s[40:43], s10 offen lds
    s_add_u32 m0, s11, {L_ACC+8192}
    s_add_u32 s10, s11, {WF_OFF+8192}
    buffer_load_dwordx4 v27, s[40:43], s10 offen lds
    s_and_b32 s11, s11, 0x400
    s_add_u32 m0, s11, {L_ACC+16384}
    s_add_u32 s10, s11, {WF_OFF+16384}
    buffer_load_dwordx4 v27, s[40:43], s10 offen lds
    s_lshl_b32 s9, s9, 12
    s_add_u32 s9, s9, {WF_OFF+18*1024}
    """)
    for t in range(4):
        a(f"buffer_load_dwordx4 v[{VF+4*t}:{VF+4*t+3}], v27, s[40:43], s9 offen offset:{1024*t}")
    a("s_branch P2_A_DONE")
    QCAP = 512 * JS
    a.lab("P2_SLOW")
    a.srd(48, 30, 31, E * 4)
    a.srd(52, 28, 29, E * 4)
    a(f"""
    ds_write_b32 v41, v41 offset:{L_WT}
    s_mul_i32 s26, s4, {NPB}
    v_mov_b32 v13, {L_XB}
    s_waitcnt lgkmcnt(0)
    s_barrier
    """)
    a.lab("P2_SCAN")
    a(f"""
    s_lshl_b32 s10, s23, 2
    v_add_u32 v45, s23, v0
    buffer_load_dword v44, v4, s[48:51], s10 offen
    v_cmp_gt_u32 vcc, {E}, v45
    s_mov_b64 s[10:11], vcc
    s_waitcnt vmcnt(0)
    v_subrev_u32 v44, s26, v44
    v_cmp_gt_u32 vcc, {NPB}, v44
    s_and_b64 exec, vcc, s[10:11]
    ds_add_rtn_u32 v46, v41, v43 offset:{L_WT}
    s_waitcnt lgkmcnt(0)
    v_lshl_add_u32 v46, v46, 2, v13
    ds_write_b32 v46, v45
    s_mov_b64 exec, -1
    s_add_u32 s23, s23, 512
    s_waitcnt lgkmcnt(0)
    s_barrier
    ds_read_b32 v46, v41 offset:{L_WT}
    s_waitcnt lgkmcnt(0)
    v_readfirstlane_b32 s27, v46
    s_barrier
    s_cmp_gt_u32 s27, {QCAP-512}
    s_cbranch_scc1 P2_SCAN_DONE
    s_cmp_lt_u32 s23, {E}
    s_cbranch_scc1 P2_SCAN
    """)
    a.lab("P2_SCAN_DONE")
    for j in range(4 * NK):
        a(f"v_mov_b32 v{VT+j}, -1")
    a(f"v_add_u32 v47, {L_XB}, v4")
    for j in range(JS):
        a(f"""
        v_add_u32 v44, {512*j}, v0
        v_cmp_gt_u32 vcc, s27, v44
        s_and_saveexec_b64 s[10:11], vcc
        s_cbranch_execz P2_A_DONE
        ds_read_b32 v45, v47 offset:{2048*j}
        s_waitcnt lgkmcnt(0)
        v_lshlrev_b32 v46, 2, v45
        buffer_load_dword v{VD+j}, v46, s[48:51], 0 offen
        buffer_load_dword v{VE+j}, v46, s[52:55], 0 offen
        v_lshlrev_b32 v{VP+j}, 5, v45
        v_mov_b32 v{VT+j}, 0
        s_waitcnt vmcnt(0)
        v_subrev_u32 v{VD+j}, s26, v{VD+j}
        v_lshlrev_b32 v{VD+j}, 2, v{VD+j}
        ds_add_rtn_u32 v{VR+j}, v{VD+j}, v43 offset:{L_NCNT}
        v_lshlrev_b32 v{VE+j}, 7, v{VE+j}
        """)
    a.lab("P2_A_DONE")
    a("s_mov_b64 exec, -1")
    a.stamp3(9)
    a(f"""
    v_lshlrev_b32 v44, 2, v1
    s_waitcnt lgkmcnt(0)
    s_barrier
    """)
    a.stamp3(10)
    a.stamp(2)
    a(f"""
    ds_read_b32 v45, v44 offset:{L_NCNT}
    ds_read_b32 v47, v41 offset:{L_FLAG}
    s_waitcnt lgkmcnt(0)
    v_add_u32 v32, 3, v45
    v_and_b32 v32, -4, v32
    v_mov_b32 v33, v32
    v_readfirstlane_b32 s14, v47
    """)
    a.wave_scan(33)
    a(f"""
    s_nop 0
    v_readlane_b32 s12, v33, 63
    v_add_u32 v34, -1, v33
    v_sub_u32 v33, v33, v32
    s_cmp_lg_u32 s24, 0
    s_cbranch_scc1 P2_CHK_DONE
    s_and_b32 s14, s14, 1
    s_cmp_gt_u32 s12, {SLOTS}
    s_cselect_b32 s14, 1, s14
    s_cmp_eq_u32 s14, 0
    s_cbranch_scc1 P2_CHK_DONE
    """)
    a(f"""
    s_mov_b32 s24, {E}
    s_waitcnt vmcnt(0)
    s_barrier
    s_branch P2_ROUND
    """)
    a.lab("P2_CHK_DONE")
    for k in range(NK):
        for pos in range(4):
            j = 4 * k + pos
            if pos == 2:
                a(f"v_cmp_ne_u32 vcc, -1, v{VT+j}\ns_cbranch_vccz P2_B1_{k}")
            a(f"ds_bpermute_b32 v{VD+j}, v{VD+j}, v33")
        a.lab(f"P2_B1_{k}")
    a(f"""
    s_add_u32 s12, s12, 31
    s_lshr_b32 s12, s12, 5
    s_add_u32 s21, s12, 7
    s_sub_u32 s21, s21, s3
    s_lshr_b32 s21, s21, 3
    s_lshr_b32 s13, s12, 3
    s_and_b32 s14, s12, 7
    """)
    a(f"""
    s_mul_i32 s10, s3, s13
    s_min_u32 s11, s3, s14
    s_add_u32 s10, s10, s11
    s_lshl_b32 s10, s10, 7
    s_lshl_b32 s11, s21, 6
    v_bfe_u32 v53, v1, 3, 1
    v_mul_u32_u24 v53, s11, v53
    v_lshrrev_b32 v54, 4, v1
    v_lshl_add_u32 v53, v54, 4, v53
    v_add_u32 v{V_AS}, s10, v53
    v_bfe_u32 v53, v1, 2, 1
    v_mul_u32_u24 v53, s11, v53
    v_bfe_u32 v54, v1, 3, 2
    v_lshl_add_u32 v53, v54, 4, v53
    v_and_b32 v54, 3, v1
    v_lshl_add_u32 v53, v54, 2, v53
    v_add_u32 v{V_AP}, s10, v53
    v_lshrrev_b32 v53, 5, v1
    v_mul_u32_u24 v53, s11, v53
    v_add_u32 v53, s10, v53
    v_lshrrev_b32 v{V_AG}, 2, v53
    s_waitcnt lgkmcnt(0)
    """)
    a.stamp3(11)
    for k in range(NK):
        for pos in range(4):
            j = 4 * k + pos
            a(f"v_cmpx_ne_u32 vcc, -1, v{VT+j}")
            if pos >= 2:
                a(f"s_cbranch_execz P2_B2_{k}")
            a(f"""
            v_add_lshl_u32 v{VR+j}, v{VR+j}, v{VD+j}, 2
            ds_write2st64_b32 v{VR+j}, v{VE+j}, v{VP+j} offset0:{L_SRC//256} offset1:{L_POS//256}
            """)
        a.lab(f"P2_B2_{k}")
        a("s_mov_b64 exec, -1")
    a.stamp3(12)
    a.stamp(3)
    a("s_waitcnt vmcnt(0) lgkmcnt(0)")
    a.stamp(4)
    a("s_barrier")
    a.stamp(5)
    a.stamp3(13)
    if OPT["stamp"] == "1":
        a("s_memtime s[82:83]\ns_mov_b32 s86, s21")
    if OPT["stamp"] == "2":
        a("s_memtime s[84:85]\ns_memrealtime s[88:89]")
    if "nomain" in OPT["abl"]:
        a("s_mov_b32 s21, 0")
    a.stamp5(0)
    if OPT["stamp"] == "6":
        a("s_memrealtime s[64:65]\ns_waitcnt lgkmcnt(0)\nv_writelane_b32 v9, s64, 0")
    gen_fill1(a, 0)
    a.stamp5(1)
    a(f"""
    s_lshl_b32 s10, s3, 2
    v_add_u32 v64, s10, v33
    v_add_u32 v65, v33, v32
    v_lshlrev_b32 v66, 8, v1
    s_cmp_eq_u32 s3, 0
    s_cselect_b32 s11, 0, -1
    v_mov_b32 v67, s11
    """)
    a.lab("P2_G_L")
    a(f"""
    v_cmpx_lt_u32 vcc, v64, v65
    s_cbranch_execz P2_G_DONE
    ds_write2st64_b32 v64, v66, v67 offset0:{L_GT//256} offset1:{L_GM//256}
    v_add_u32 v64, 32, v64
    v_mov_b32 v67, -1
    s_branch P2_G_L
    """)
    a.lab("P2_G_DONE")
    a("s_mov_b64 exec, -1")
    a(f"""
    s_cmp_lg_u32 s25, 0
    s_cbranch_scc1 P2_PREP_A
    s_lshr_b32 s9, s3, 2
    s_lshl_b32 s10, s9, 12
    s_add_u32 s10, s10, {L_PX}
    s_sub_u32 s10, s10, s20
    """)
    for t in range(4):
        a(f"""
        v_add_u32 v{64+t}, s10, v{V_XR+t}
        ds_read_b128 v[{VX+4*t}:{VX+4*t+3}], v{64+t}
        """)
    a(f"""
    s_lshl_b32 s9, s9, 13
    s_and_b32 s10, s3, 1
    s_lshl_b32 s10, s10, 2
    s_add_u32 s9, s9, s10
    v_lshl_add_u32 v2, v{V_H16}, 6, v{V_N8}
    v_add_u32 v2, s9, v2
    s_waitcnt lgkmcnt(0)
    """)
    for t in range(4):
        c = "0" if t == 0 else f"v[{VAP}:{VAP+15}]"
        a(f"v_mfma_f32_32x32x16_bf16 v[{VAP}:{VAP+15}], v[{VX+4*t}:{VX+4*t+3}], v[{VF+4*t}:{VF+4*t+3}], {c}")
    a.lab("P2_PREP_A")
    a(f"""
    s_add_u32 s10, s13, 1
    s_mul_i32 s11, s14, s10
    s_lshl_b32 s11, s11, 1
    v_cvt_f32_u32 v68, s10
    v_cvt_f32_u32 v69, s13
    v_rcp_f32 v68, v68
    v_rcp_f32 v69, v69
    s_lshl_b32 s10, s14, 1
    v_lshrrev_b32 v64, 4, v33
    v_bfe_u32 v65, v34, 4, 9
    """)
    for v in (64, 65):
        a(f"""
        v_cmp_gt_u32 vcc, s11, v{v}
        v_subrev_u32 v70, s11, v{v}
        s_nop 0
        v_cndmask_b32 v70, v70, v{v}, vcc
        v_cndmask_b32 v71, v69, v68, vcc
        v_cvt_f32_u32 v70, v70
        v_add_f32 v70, 0.5, v70
        v_mul_f32 v70, v70, v71
        v_cvt_u32_f32 v70, v70
        v_add_u32 v71, s10, v70
        v_cndmask_b32 v{v}, v71, v70, vcc
        """)
    a(f"""
    v_sub_u32 v65, v65, v64
    v_add_u32 v65, 1, v65
    v_cmp_ne_u32 vcc, 0, v32
    v_lshrrev_b32 v66, 4, v0
    v_lshlrev_b32 v66, 2, v66
    v_cndmask_b32 v65, 0, v65, vcc
    v_and_b32 v64, 15, v64
    v_lshl_or_b32 v65, v64, 8, v65
    v_add_u32 v67, 128, v66
    ds_bpermute_b32 v7, v66, v65
    ds_bpermute_b32 v8, v67, v65
    s_cmp_lg_u32 s25, 0
    s_cbranch_scc1 P2_PREP_SKIP
    s_bitcmp1_b32 s3, 1
    s_cbranch_scc1 P2_HU
    """)

    def dwrites(base):
        a("s_cmp_ge_u32 s3, 4\ns_cbranch_scc1 " + f"P2_DW1_{base}")
        for i in range(16):
            a(f"ds_write_b32 v2, v{VAP+i} offset:{base+(8*(i//4)+i%4)*256}")
        a(f"s_branch P2_DW2_{base}")
        a.lab(f"P2_DW1_{base}")
        for i in range(8):
            a(f"ds_write_b32 v2, v{VAP+i} offset:{base+(8*(i//4)+i%4)*256}")
        a("s_mov_b32 exec_hi, 0")
        for i in (8, 9):
            a(f"ds_write_b32 v2, v{VAP+i} offset:{base+(8*(i//4)+i%4)*256}")
        a("s_mov_b64 exec, -1")
        a.lab(f"P2_DW2_{base}")

    for i in range(16):
        a(f"v_mul_f32 v{VAP+i}, {NLOG2E:#x}, v{VAP+i}")
    a(f"v_max3_f32 v64, abs(v{VAP}), abs(v{VAP+1}), abs(v{VAP+2})")
    for i in range(3, 15, 2):
        a(f"v_max3_f32 v64, abs(v{VAP+i}), abs(v{VAP+i+1}), v64")
    a(f"""
    v_max_f32 v64, abs(v{VAP+15}), v64
    v_mov_b32 v65, 0x42700000
    v_cmp_lt_f32 s[10:11], v65, v64
    """)
    for i in range(0, 16, 2):
        a(f"""
        v_cmp_u_f32 vcc, v{VAP+i}, v{VAP+i+1}
        s_or_b64 s[10:11], s[10:11], vcc
        """)
    a(f"""
    s_cmp_eq_u64 s[10:11], 0
    s_cbranch_scc1 P2_EA_W
    v_mov_b32 v65, 2
    ds_or_b32 v41, v65 offset:{L_FLAG}
    s_branch P2_EA_W
    """)
    a.lab("P2_HU")
    a(f"v_add_u32 v2, {L_HU}, v2")
    for i in range(16):
        a(f"v_cvt_pk_bf16_f32 v{VAP+i}, v{VAP+i}, v{VAP+i}")
    for i in range(16):
        a(f"v_and_b32 v{VAP+i}, 0xffff0000, v{VAP+i}")
    dwrites(0)
    a.lab("P2_EA_W")
    a(f"""
    v_lshlrev_b32 v64, 4, v1
    v_add_u32 v64, {L_ACC}, v64
    """)
    for f in range(4, 18):
        a(f"ds_read_b128 {wfrag(f)}, v64 offset:{1024*f}")
    a.stamp5(2)
    a(f"""
    s_waitcnt lgkmcnt(0)
    s_barrier
    ds_read_b32 v65, v41 offset:{L_FLAG}
    """)
    a.stamp5(3)
    if OPT['fsplit'] == '1':
        gen_fill1(a, 1)
    a.stamp5(4)
    a(f"""
    s_waitcnt lgkmcnt(0)
    v_readfirstlane_b32 s15, v65
    s_lshr_b32 s15, s15, 1
    s_bitcmp1_b32 s3, 1
    s_cbranch_scc1 P2_EA3
    s_cmp_lg_u32 s15, 0
    s_cbranch_scc1 P2_EA2_W
    """)
    for k in range(16):
        a(f"v_exp_f32 v{VAP+k}, v{VAP+k}")
    a("s_nop 0")
    a.lab("P2_EA2_W")
    dwrites(L_EA)
    a.lab("P2_EA3")
    for f in range(4):
        a(f"ds_read_b128 {wfrag(f)}, v64 offset:{1024*f}")
    a("s_mov_b32 s25, 1")
    a("s_branch P2_PREP_DONE")
    a.lab("P2_PREP_SKIP")
    if OPT['fsplit'] == '1':
        a("s_waitcnt lgkmcnt(0)")
        gen_fill1(a, 1)
    a.lab("P2_PREP_DONE")
    a.stamp5(5)
    a(f"""
    s_waitcnt lgkmcnt(0)
    s_barrier
    """)
    a.stamp5(6)
    a.stamp5(7)
    a.stamp3(14)
    a(f"""
    s_cmp_eq_u32 s21, 0
    s_cbranch_scc1 P2_MAIN_DONE
    """)
    gen_fill2(a)
    if OPT["stamp"] == "6":
        a("s_memrealtime s[64:65]\ns_waitcnt lgkmcnt(0)\nv_writelane_b32 v9, s64, 1\ns_mov_b32 s66, 2")
    a.stamp(14)
    if OPT["stamp"] == "4":
        a("s_mov_b32 s70, 0\ns_mov_b32 s72, 0\ns_mov_b32 s74, 0\ns_memtime s[76:77]\ns_mov_b32 s80, s21")
    a(f"""
    s_cmp_lg_u32 s15, 0
    s_cbranch_scc1 P2_SAFE
    """)
    gen_loop(a, False, "F")
    gen_loop(a, True, "S")
    a.lab("P2_FLUSH")
    for g in range(4):
        a(f"ds_write_b32 v{V_G+g}, v{V_ACC[1]+g} offset:{L_ACC+4}")
    a.lab("P2_MAIN_DONE")
    if OPT["stamp"] == "2":
        a("s_memtime s[86:87]\ns_memrealtime s[90:91]")
    if OPT["stamp"] == "4":
        a("s_memtime s[78:79]")
    a.stamp(6)
    if OPT["stamp"] == "1":
        a("s_memtime s[84:85]\ns_getreg_b32 s88, hwreg(HW_REG_HW_ID)\ns_getreg_b32 s90, hwreg(HW_REG_XCC_ID)")
    a(f"""
    s_waitcnt vmcnt(0) lgkmcnt(0)
    s_barrier
    """)
    a.stamp(7)
    for h in range(2):
        a(f"""
        v_and_b32 v24, 0xff, v{7+h}
        v_and_b32 v25, 0xff00, v{7+h}
        v_add_u32 v25, v25, v3
        v_add_u32 v25, {L_ACC+8192*h}, v25
        """)
        a.lab(f"P2_FOLD{h}")
        a(f"""
        v_cmpx_lt_u32 vcc, 0, v24
        s_cbranch_execz P2_FOLD_DONE{h}
        ds_read_b128 v[32:35], v25
        v_add_u32 v24, -1, v24
        v_add_u32 v25, 0x100, v25
        s_waitcnt lgkmcnt(0)
        v_add_f32 v{V_RUN+4*h}, v{V_RUN+4*h}, v32
        v_add_f32 v{V_RUN+4*h+1}, v{V_RUN+4*h+1}, v33
        v_add_f32 v{V_RUN+4*h+2}, v{V_RUN+4*h+2}, v34
        v_add_f32 v{V_RUN+4*h+3}, v{V_RUN+4*h+3}, v35
        s_branch P2_FOLD{h}
        """)
        a.lab(f"P2_FOLD_DONE{h}")
        a("s_mov_b64 exec, -1")
    a(f"""
    s_cmp_lt_u32 s23, s24
    s_cbranch_scc1 P2_ROUND
    v_lshrrev_b32 v5, 4, v0
    v_and_b32 v6, 15, v0
    v_lshlrev_b32 v5, 7, v5
    v_lshl_add_u32 v5, v6, 2, v5
    v_add_u32 v6, 0x1000, v5
    """)
    for h in range(2):
        R = V_RUN + 4 * h
        a(f"""
        v_add_u32 v24, {L_HU+8192*h}, v3
        ds_read_b128 v[32:35], v24
        v_cvt_pk_bf16_f32 v36, v{R}, v{R+2}
        v_cvt_pk_bf16_f32 v37, v{R+1}, v{R+3}
        v_lshlrev_b32 v28, 16, v36
        v_and_b32 v30, 0xffff0000, v36
        v_lshlrev_b32 v29, 16, v37
        v_and_b32 v31, 0xffff0000, v37
        s_waitcnt lgkmcnt(0)
        v_add_f32 v28, v28, v32
        v_add_f32 v29, v29, v33
        v_add_f32 v30, v30, v34
        v_add_f32 v31, v31, v35
        v_cvt_pk_bf16_f32 v36, v28, v30
        v_cvt_pk_bf16_f32 v37, v29, v31
        v_lshlrev_b32 v28, 16, v36
        v_and_b32 v30, 0xffff0000, v36
        v_lshlrev_b32 v29, 16, v37
        v_and_b32 v31, 0xffff0000, v37
        """)
        for k in range(4):
            a(f"v_mul_f32 v{32+k}, {NLOG2E:#x}, v{28+k}")
        for k in range(4):
            a(f"v_exp_f32 v{32+k}, v{32+k}")
        for k in range(4):
            a(f"v_add_f32 v{32+k}, 1.0, v{32+k}")
        for k in range(4):
            a(f"v_rcp_f32 v{32+k}, v{32+k}")
        for k in range(4):
            a(f"v_mul_f32 v{28+k}, v{28+k}, v{32+k}")
        a(f"""
        v_cvt_pk_bf16_f32 v{38+2*h}, v28, v30
        v_cvt_pk_bf16_f32 v{39+2*h}, v29, v31
        buffer_store_dword v{38+2*h}, v{5+h}, s[44:47], 0 offen
        buffer_store_dword v{39+2*h}, v{5+h}, s[44:47], 0 offen offset:64
        """)
    a.stamp(8)
    if OPT["stamp"] == "6":
        a(f"""
        s_lshl_b32 s10, s2, 3
        s_add_u32 s10, s10, s3
        s_lshl_b32 s10, s10, 6
        s_add_u32 s10, s10, {DBG2_OFF}
        v_lshlrev_b32 v2, 2, v1
        s_mov_b64 exec, 0xffff
        buffer_store_dword v9, v2, s[40:43], s10 offen
        s_endpgm
        """)
    a.stamp_flush(15, 40, 8, DBG2_OFF)
    a.lab("P2_END")
    a("s_endpgm")
    return a.text()


HEAD = open("standalone__edge_featured_mpnn_egc__graph.s.ref").read().split("; Override launch")[0]


def kd(name, vgpr, sgpr):
    acc = (vgpr + 3) // 4 * 4
    return f""".amdhsa_kernel {name}
  .amdhsa_next_free_vgpr {vgpr}
  .amdhsa_next_free_sgpr {sgpr}
  .amdhsa_accum_offset {acc}
  .amdhsa_group_segment_fixed_size 0
  .amdhsa_kernarg_size 80
  .amdhsa_user_sgpr_count 2
  .amdhsa_user_sgpr_kernarg_segment_ptr 1
  .amdhsa_system_sgpr_workgroup_id_x 1
.end_amdhsa_kernel
"""


def main():
    out = HEAD
    out += f"; @launch kernel=p1_kernel grid=({NCH},1,1) block=(704,1,1) lds={P1_LDS}\n"
    out += f"; @launch kernel=p2_kernel grid=({NB},1,1) block=(512,1,1) lds={P2_LDS}\n"
    out += '.amdgcn_target "amdgcn-amd-amdhsa--gfx950"\n.text\n'
    out += ".globl p1_kernel\n.p2align 8\n.type p1_kernel,@function\n" + gen_p1()
    out += ".globl p2_kernel\n.p2align 8\n.type p2_kernel,@function\n" + gen_p2()
    out += '.section .rodata,"a"\n.p2align 6\n' + kd("p1_kernel", 64, 100) + ".p2align 6\n" + kd("p2_kernel", 256, 100)
    open(sys.argv[1], "w").write(out)


main()
```

```python
import sys

N = 12500; E = 800000
NCH = 320; CH = 2500
NK = NCH // 64
TROW = NCH * 128
NB = 256; NPB = 49; MUL = 21400
SUBN = 16
SLOTS = 4096
JS = 7
NLOG2E = 0xBFB8AA3B

T_OFF = 0x0
ENT_OFF = 0xA00000
HDR_OFF = 0xE00000
WF_OFF = 0xE80000
DBG1_OFF = 0x2C00000
DBG2_OFF = 0x2D00000
WS_SIZE = 0x3000000
NFRAG = 34

OPT = dict(p1_store="", p1_tstore="nt", p1_ld="nt", abl="", stamp="", prio_hi="1", prio_lo="0", xpf="0",
           p1_sched="[[0,1],[2,3],[4,5],[6]]", bunch="1", ne="4", e_pol="", epf1="0", epf2="0", epf_pol="", cpf="16", fsplit="1", cpf2="1", cpf1="0", kr_fake="0", tpf="0", la="3", mfo="0", xm="1", t_ld="", p1_w="5", x_pol="")
for a_ in sys.argv[2:]:
    k_, v_ = a_.split("=")
    OPT[k_] = v_


class A:
    def __init__(self):
        self.l = []

    def __call__(self, s):
        for x in s.strip().split("\n"):
            self.l.append("    " + x.strip())

    def lab(self, s):
        self.l.append(s + ":")

    def srd(self, d, lo, hi, nrec, add=None):
        if add is None:
            self(f"s_mov_b32 s{d}, s{lo}\ns_mov_b32 s{d+1}, s{hi}")
        else:
            self(f"s_add_u32 s{d}, s{lo}, {add}\ns_addc_u32 s{d+1}, s{hi}, 0")
        self(f"s_mov_b32 s{d+2}, {nrec}\ns_mov_b32 s{d+3}, 0x20000")

    def wave_scan(self, v, full=True):
        for sh in (1, 2, 4, 8):
            self("s_nop 1")
            self(f"v_add_u32_dpp v{v}, v{v}, v{v} row_shr:{sh} row_mask:0xf bank_mask:0xf bound_ctrl:0")
        if full:
            self("s_nop 1")
            self(f"v_add_u32_dpp v{v}, v{v}, v{v} row_bcast:15 row_mask:0xa bank_mask:0xf")
            self("s_nop 1")
            self(f"v_add_u32_dpp v{v}, v{v}, v{v} row_bcast:31 row_mask:0xc bank_mask:0xf")

    def stamp(self, k):
        if OPT["stamp"] == "1":
            self(f"s_memrealtime s[{64+2*k}:{65+2*k}]")

    def stamp5(self, k):
        if OPT["stamp"] == "5":
            self(f"s_memtime s[{64+2*k}:{65+2*k}]")

    def stamp3(self, k):
        if OPT["stamp"] == "3":
            self(f"s_memtime s[{64+2*k}:{65+2*k}]")

    def stamp_flush(self, n, srd, nw, base):
        if not OPT["stamp"]:
            return
        self(f"""
        s_waitcnt lgkmcnt(0)
        s_mov_b64 exec, -1
        s_mul_i32 s10, s2, {nw}
        s_add_u32 s10, s10, s3
        s_lshl_b32 s10, s10, 6
        s_add_u32 s10, s10, {base}
        v_mov_b32 v1, 0
        """)
        for k in range(n):
            self(f"v_mov_b32 v2, s{64+2*k}\nbuffer_store_dword v2, v1, s[{srd}:{srd+3}], s10 offen offset:{4*k}\ns_nop 1")

    def text(self):
        return "\n".join(self.l) + "\n"


def sub_dl(j):
    return (1 if j < 10 else 8) + (j % 10) // 5, 6 * (j % 5)


def sub_src(j):
    return (3 if j < 10 else 10) + (j % 10) // 2, 16 * (j % 2)


P1_HIST = 0; P1_TI = 1024
P1_LDS = P1_TI + 32768


def gen_p1():
    a = A()
    TST = OPT["p1_tstore"]; LD = OPT["p1_ld"]
    SW = int(OPT["p1_w"])
    NT = 64 * SW
    NQ = -(-625 // NT)
    NR = -(-2048 // NT)
    a.lab("p1_kernel")
    a(f"""
    s_cmp_ge_u32 s2, {NCH}
    s_cbranch_scc1 P1_END
    """)
    a.stamp(0)
    a(f"""
    s_load_dwordx16 s[16:31], s[0:1], 0
    s_load_dwordx4 s[32:35], s[0:1], 64
    v_and_b32 v1, 63, v0
    v_lshrrev_b32 v5, 6, v0
    v_lshlrev_b32 v2, 4, v0
    v_lshlrev_b32 v3, 2, v0
    v_readfirstlane_b32 s3, v5
    v_lshlrev_b32 v4, 4, v1
    s_mul_i32 s4, s2, {CH*4}
    s_cmp_ge_u32 s3, {SW}
    s_cbranch_scc1 P1_AUX
    v_mov_b32 v6, 0
    v_and_b32 v7, 0x3fc, v3
    ds_write_b32 v7, v6 offset:{P1_HIST}
    s_waitcnt lgkmcnt(0)
    """)
    a.srd(44, 22, 23, CH * 4, "s4")
    a.srd(40, 20, 21, CH * 4, "s4")
    VDs = [40 + 8 * q for q in range(NQ)]
    for q in range(NQ):
        a(f"s_mov_b32 s5, {NT*16*q}\nbuffer_load_dwordx4 v[{VDs[q]}:{VDs[q]+3}], v2, s[44:47], s5 offen {LD}")
    for q in range(NQ):
        a(f"s_mov_b32 s5, {NT*16*q}\nbuffer_load_dwordx4 v[{VDs[q]+4}:{VDs[q]+7}], v2, s[40:43], s5 offen {LD}")
    a.srd(48, 34, 35, WS_SIZE)
    a("v_mov_b32 v8, -1\nv_mov_b32 v9, -1\nv_mov_b32 v10, -1\nv_mov_b32 v11, -1")
    for r in range(NR):
        if (r + 1) * NT <= 2048:
            a(f"ds_write_b128 v2, v[8:11] offset:{P1_TI+NT*16*r}")
        else:
            a(f"v_min_u32 v12, {(2048-r*NT-1)*16}, v2\nds_write_b128 v12, v[8:11] offset:{P1_TI+NT*16*r}")
    a(f"""
    v_cmp_gt_u32 vcc, {625-(NQ-1)*NT}, v0
    s_mov_b64 s[8:9], vcc
    v_mov_b32 v30, 1
    v_lshrrev_b32 v7, 3, v0
    v_lshlrev_b32 v6, 2, v7
    v_and_b32 v27, 7, v0
    s_lshl_b32 s6, s2, 7
    s_add_u32 s6, s6, {T_OFF}
    v_mul_u32_u24 v28, {TROW}, v7
    v_lshl_or_b32 v28, v27, 4, v28
    s_waitcnt lgkmcnt(0)
    s_barrier
    """)
    VB = 40 + 8 * NQ; VRK = VB + 4 * NQ
    for q in range(NQ):
        a(f"s_waitcnt vmcnt({2*NQ-1-q})")
        if q == 0:
            a.stamp(1)
        if q == NQ - 1:
            a("s_mov_b64 exec, s[8:9]")
        for e in range(4):
            d = VDs[q] + e; b = VB + 4 * q + e
            a(f"""
            v_mul_u32_u24 v{b}, {MUL}, v{d}
            v_lshrrev_b32 v31, 20, v{b}
            v_lshlrev_b32 v{b}, 2, v31
            ds_add_rtn_u32 v{VRK+4*q+e}, v{b}, v30 offset:{P1_HIST}
            v_mul_u32_u24 v31, {NPB}, v31
            v_sub_u32 v{d}, v{d}, v31
            """)
    a("s_mov_b64 exec, -1\ns_waitcnt vmcnt(0)")
    for q in range(NQ):
        for e in range(4):
            d = VDs[q] + e
            a(f"""
            v_lshl_or_b32 v{d}, v{d}, 14, v{d+4}
            v_add_u32 v31, {4*NT*q+e}, v3
            v_lshl_or_b32 v{d}, v31, 20, v{d}
            """)
    a.stamp(2)
    a("s_mov_b64 s[10:11], -1")
    for q in range(NQ):
        if q == NQ - 1:
            a("s_mov_b64 s[10:11], s[8:9]")
        for e in range(4):
            d = VDs[q] + e; b = VB + 4 * q + e; rk = VRK + 4 * q + e
            a(f"""
            s_waitcnt lgkmcnt({min(4*NQ-1, 15)})
            v_and_b32 v31, 7, v{rk}
            v_lshlrev_b32 v31, 4, v31
            v_lshl_add_u32 v{b}, v{b}, 5, v31
            v_lshrrev_b32 v31, 3, v{rk}
            v_cmp_gt_u32 vcc, 32, v{rk}
            v_lshl_add_u32 v{b}, v31, 2, v{b}
            s_and_b64 exec, s[10:11], vcc
            ds_write_b32 v{b}, v{d} offset:{P1_TI}
            s_mov_b64 exec, -1
            """)
    a("s_waitcnt lgkmcnt(0)")
    a.stamp(3)
    a("s_barrier")
    for k in (4, 5, 6):
        a.stamp(k)
    for r in range(NR):
        a(f"""
        ds_read_b32 v{32+r}, v6 offset:{P1_HIST+NT//2*r}
        ds_read_b128 v[{40+4*r}:{43+4*r}], v2 offset:{P1_TI+NT*16*r}
        """)
    for r in range(NR):
        if (r + 1) * NT > 2048:
            a(f"""
            s_cmp_ge_u32 s3, {(2048-r*NT)//64}
            s_cbranch_scc1 P1_FIN
            """)
        a(f"""
        s_waitcnt lgkmcnt({2*(NR-r)-1})
        v_cmp_lt_u32 vcc, 32, v{32+r}
        s_waitcnt lgkmcnt({2*(NR-r)-2})
        s_nop 0
        v_cndmask_b32 v{40+4*r}, v{40+4*r}, -2, vcc
        buffer_store_dwordx4 v[{40+4*r}:{43+4*r}], v28, s[48:51], s6 offen {TST}
        s_add_u32 s6, s6, {NT//8*TROW}
        """)
    a.lab("P1_FIN")
    a.stamp(7)
    if OPT["stamp"]:
        a("s_waitcnt vmcnt(0)")
    a.stamp(8)
    a.stamp_flush(9, 48, 16, DBG1_OFF)
    a("s_endpgm")
    a.lab("P1_AUX")
    a(f"""
    v_and_b32 v24, 31, v1
    v_lshrrev_b32 v25, 5, v1
    v_lshlrev_b32 v26, 10, v25
    v_lshl_add_u32 v26, v24, 1, v26
    s_mov_b32 s14, 1.0
    s_waitcnt lgkmcnt(0)
    """)
    a.srd(48, 34, 35, WS_SIZE)
    a.srd(56, 28, 29, 2048 - 64)
    a(f"""
    s_cmp_ge_u32 s2, {NFRAG}
    s_cbranch_scc1 P1_PF
    s_sub_u32 s5, s2, 2
    s_cmp_ge_u32 s2, 18
    s_cselect_b32 s5, s5, s2
    s_and_b32 s6, s5, 3
    s_lshl_b32 s6, s6, 11
    s_lshr_b32 s7, s5, 2
    s_and_b32 s7, s7, 1
    s_lshl_b32 s7, s7, 6
    s_add_u32 s6, s6, s7
    s_cmp_ge_u32 s2, 8
    s_cbranch_scc1 P1_FL1
    s_add_u32 s6, s6, 8192
    s_mov_b32 s14, {NLOG2E}
    s_branch P1_FL3
    """)
    a.lab("P1_FL1")
    a(f"""
    s_cmp_ge_u32 s2, 16
    s_cbranch_scc1 P1_FL2
    s_mov_b32 s56, s26
    s_mov_b32 s57, s27
    s_branch P1_FL3
    """)
    a.lab("P1_FL2")
    a(f"""
    s_cmp_ge_u32 s2, 26
    s_cselect_b32 s56, s24, s28
    s_cselect_b32 s57, s25, s29
    s_cmp_ge_u32 s2, 18
    s_cbranch_scc1 P1_FL3
    s_mov_b32 s14, {NLOG2E}
    s_and_b32 s6, s2, 1
    s_lshl_b32 s6, s6, 6
    s_add_u32 s6, s6, 16384
    """)
    a.lab("P1_FL3")
    a(f"""
    s_add_u32 s56, s56, s6
    s_addc_u32 s57, s57, 0
    """)
    for jj in range(8):
        a(f"buffer_load_ushort v{40+jj}, v26, s[56:59], 0 offen offset:{jj*128}")
    a("s_waitcnt vmcnt(0)")
    for jj in range(8):
        a(f"v_lshlrev_b32 v{40+jj}, 16, v{40+jj}")
    for jj in range(8):
        a(f"v_mul_f32 v{40+jj}, s14, v{40+jj}")
    for q in range(4):
        a(f"v_cvt_pk_bf16_f32 v{48+q}, v{40+2*q}, v{40+2*q+1}")
    a(f"""
    s_lshl_b32 s6, s2, 10
    s_add_u32 s6, s6, {WF_OFF}
    buffer_store_dwordx4 v[48:51], v4, s[48:51], s6 offen
    s_endpgm
    """)
    a.lab("P1_PF")
    a(f"""
    s_cmp_ge_u32 s2, 80
    s_cbranch_scc1 P1_XM
    s_getpc_b64 s[52:53]
    """)
    a.lab("P1_PC")
    a(f"""
    s_add_u32 s52, s52, p2_kernel-P1_PC
    s_addc_u32 s53, s53, 0
    s_mov_b32 s54, P2_END-p2_kernel
    s_mov_b32 s55, 0x20000
    v_lshlrev_b32 v40, 6, v1
    """)
    for k in range(6):
        a(f"buffer_load_dword v41, v40, s[52:55], 0 offen\nv_add_u32 v40, 0x1000, v40")
    a("s_endpgm")
    a.lab("P1_XM")
    a.srd(36, 16, 17, N * 128)
    a(f"""
    s_sub_u32 s5, s2, 80
    s_lshl_b32 s5, s5, 13
    v_lshlrev_b32 v40, 7, v1
    buffer_load_dword v41, v40, s[36:39], s5 offen
    """)
    a.lab("P1_END")
    a("s_endpgm")
    return a.text()


L_NCNT = 0; L_FLAG = 256; L_WT = 272
L_SRC = 512; L_POS = L_SRC + 16384; L_GT = L_POS + 16384; L_GM = L_GT + 4096; L_EA = L_GM + 4096
NROW = 50
L_ACC = L_EA + NROW * 256
L_XB = L_ACC + 18432
L_HU = L_XB + 65536
L_PX = L_HU + NROW * 256
P2_LDS = L_PX + 8192
assert P2_LDS <= 163840 and L_ACC + 4 < 65536 and (16 + NROW) * 256 <= 18432
SENT = 0x40000000

V_W = 184
V_Z0 = 64; V_H0 = 80; V_Z1 = 96; V_H1 = 112
V_XA = (128, 28); V_EA = (144, 44, 24, 56)
V_G = 148; V_GR = 152; V_EV = 156
V_SL = 164
V_ACC = (168, 52)
V_XR = 172
V_PS = 176
V_AS = 177; V_AP = 178; V_AG = 179
V_N8 = 181; V_H16 = 182; V_N8H = 183
V_K = (180, 10, 11, 12)
V_GE = 60
V_GM = 48
V_RUN = 16
NE = int(OPT["ne"])
LA = int(OPT["la"])


def wfrag(f):
    return f"v[{V_W+4*f}:{V_W+4*f+3}]"


def mf_list(u, Z, H, ph):
    xa = V_XA[ph % 2]; ea = V_EA[ph % NE]
    l = [f"v_mfma_f32_32x32x16_bf16 v[{Z}:{Z+15}], v[{ea}:{ea+3}], {wfrag(16+u)}, 0"]
    for t in range(4):
        l.append(f"v_mfma_f32_32x32x16_bf16 v[{Z}:{Z+15}], v[{xa+4*t}:{xa+4*t+3}], {wfrag(u*4+t)}, v[{Z}:{Z+15}]")
    for t in range(4):
        c = "0" if t == 0 else f"v[{H}:{H+15}]"
        l.append(f"v_mfma_f32_32x32x16_bf16 v[{H}:{H+15}], v[{xa+4*t}:{xa+4*t+3}], {wfrag(8+u*4+t)}, {c}")
    if OPT["mfo"] == "1":
        l = [l[0], l[1], l[5], l[2], l[6], l[3], l[7], l[4], l[8]]
    return l


RAMP_POS = {2: 5, 3: 6, 4: 13, 5: 2}


def body(ph, safe, ramp=False):
    out = []
    par = ph % 2
    npar = 1 - par
    PH = OPT["prio_hi"]; PL = OPT["prio_lo"]
    cnt = [0]
    bunch = OPT["bunch"] == "1"

    def lstamp():
        if OPT["stamp"] == "2" and ph == 1:
            out.append(f"s_memtime s[{64+2*cnt[0]}:{65+2*cnt[0]}]")
            cnt[0] += 1

    def trun(instrs, mf, fill):
        lstamp()
        if PH != PL:
            out.append(f"s_setprio {PH}")
        mf = list(mf)
        for k, x in enumerate(instrs):
            out.append(x)
            if k % 3 == 0 and mf:
                out.append(mf.pop(0))
            elif fill:
                if bunch:
                    out.extend(fill); del fill[:]
                else:
                    out.append(fill.pop(0))
        assert not mf
        if PH != PL:
            out.append(f"s_setprio {PL}")

    def half(u, Z, H, mf, fill, preF, postF, fillR, preM, postM):
        ev = lambda i: V_EV + 2 * (i // 4) + u
        if safe:
            if u == 0:
                out.append(("W", "ev3"))
            out.extend(f"v_add_f32 v{Z+i}, v{ev(i)}, v{Z+i}" for i in range(16))
        trun([f"v_exp_f32 v{Z+i}, v{Z+i}" for i in range(16)], mf[:5], fill)
        lstamp()
        out.extend(preF)
        if safe:
            out.extend(f"v_add_f32 v{Z+i}, 1.0, v{Z+i}" for i in range(16))
        else:
            out.extend(f"v_fma_f32 v{Z+i}, v{Z+i}, v{ev(i)}, 1.0" for i in range(16))
        out.extend(postF)
        fill.extend(fillR)
        trun([f"v_rcp_f32 v{Z+i}, v{Z+i}" for i in range(16)], mf[5:], fill)
        assert not fill, fill
        lstamp()
        out.extend(preM)
        A_ = V_ACC[u]
        for g in range(4):
            out.append(f"v_and_b32 v{A_+g}, v{A_+(g+3)%4}, v{V_GM+g}")
            out.extend(f"v_fmac_f32 v{A_+g}, v{Z+4*g+k}, v{H+4*g+k}" for k in range(4))
        out.extend(postM)

    def accw(u):
        return [("L", f"ds_write_b32 v{V_G+g}, v{V_ACC[u]+g} offset:{L_ACC+4*u}", None) for g in range(4)]

    xa = V_XA[npar]
    def eload(k, reg):
        return [f"s_cmp_gt_u32 s21, {k-ph}", "s_cselect_b32 s58, s18, 0",
                ("M", f"buffer_load_dwordx4 v[{V_EA[k%NE]}:{V_EA[k%NE]+3}], v{reg}, s[56:59], 0 offen {OPT['e_pol']}", f"e{k}")]
    if ramp and ph < LA - 2:
        fill = eload(2 + 2 * ph, RAMP_POS[2 + 2 * ph]) + accw(1)
    else:
        fill = eload(ph + LA, V_PS) + accw(1)
    fill.append(("L", f"ds_read_b128 v[{V_GM}:{V_GM+3}], v{V_AG} offset:{L_GM+16*ph}", "gm"))
    preF = [f"v_add_u32 v{V_G+g}, v{V_GR+g}, v{V_N8H}" for g in range(4)] + ([] if safe else [("W", "ev3")])
    fillR = [("V", (f"x{ph+1}_3", f"e{ph+1}"))] if ramp else [f"s_waitcnt vmcnt({5 if NE == 2 else 6})"]
    for t in range(4):
        fillR.append(("L", f"ds_read_b128 v[{xa+4*t}:{xa+4*t+3}], v{V_XR+t} offset:{npar*4096}", f"xa{t}"))
    fillR += [("L", f"ds_read_b128 v[{V_SL}:{V_SL+3}], v{V_AS} offset:{L_SRC+64*(3+ph)}", "sl"),
              ("L", f"ds_read_b128 v[{V_GR}:{V_GR+3}], v{V_AG} offset:{L_GT+16*(1+ph)}", "gr"),
              ("L", f"ds_read_b32 v{V_PS}, v{V_AP} offset:{L_POS+64*(LA+1+ph)}", "pos"),
              "s_cmp_gt_u32 s21, 3", "s_cselect_b32 s38, s19, 0", f"s_add_u32 m0, s20, {npar*4096}"]
    postM = [("W", "sl")] + [f"v_or_b32 v{V_SL+j}, v{V_SL+j}, v{V_K[j]}" for j in range(4)]
    half(0, V_Z0, V_H0, mf_list(1, V_Z1, V_H1, ph), fill, preF, [], fillR, [("W", "gm")], postM)
    fill = []
    aw = accw(0)
    for j in range(4):
        fill.append(("M", f"buffer_load_dwordx4 v{V_SL+j}, s[36:39], 0 offen {OPT['x_pol']} lds", f"x{ph+3}_{j}"))
        if j < 3:
            fill.append(f"s_add_u32 m0, s20, {npar*4096+(j+1)*1024}")
        fill.append(aw[j])
    if ramp and ph < LA - 2:
        fill += eload(3 + 2 * ph, RAMP_POS[3 + 2 * ph])
    postF = [("W", "pos")] + [f"v_add_u32 v{V_GE+g}, v{V_GR+g}, v{V_N8}" for g in range(4)]
    postF.append(f"v_add_u32 v{V_PS}, v{V_PS}, v{V_H16}")
    fillR = [("L", f"ds_read_b64 v[{V_EV+2*g}:{V_EV+2*g+1}], v{V_GE+g} offset:{L_EA}", f"ev{g}") for g in range(4)]
    half(1, V_Z1, V_H1, mf_list(0, V_Z0, V_H0, ph + 1), fill, [], postF, fillR, [], [])
    lstamp()
    if "nomfma" in OPT["abl"]:
        out = [x for x in out if not (isinstance(x, str) and "mfma" in x)]
    if "novalu" in OPT["abl"]:
        out = [x for x in out if not (isinstance(x, str) and any(k in x for k in ("v_exp", "v_rcp", "v_fma", "v_fmac")))]
    return out


def instrument(items):
    out = []
    for x in items:
        acc = None
        if isinstance(x, str):
            if x.startswith("s_waitcnt vmcnt"): acc = 70
            elif x.startswith("buffer_load") and "lds" not in x: acc = 71
            elif x.startswith("buffer_load"): acc = 72
        if acc:
            out += ["s_memtime s[64:65]", "s_waitcnt lgkmcnt(0)", x, "s_memtime s[66:67]", "s_waitcnt lgkmcnt(0)",
                    "s_sub_u32 s68, s66, s64", f"s_add_u32 s{acc+2*(acc-70)+4-0 if False else {70:70,71:72,72:74}[acc]}, s{ {70:70,71:72,72:74}[acc] }, s68"]
        else:
            out.append(x)
    return out


def resolve(prev, cur, vm=None):
    seq = prev + cur
    res = []
    for i, x in enumerate(seq):
        if i < len(prev):
            continue
        if isinstance(x, str):
            res.append(x)
        elif x[0] == "L":
            res.append(x[1])
        elif x[0] == "M":
            res.append(x[1])
            if vm is not None:
                vm.append(x[2])
        elif x[0] == "V":
            last = max(vm.index(t) for t in x[1])
            res.append(f"s_waitcnt vmcnt({len(vm)-1-last})")
        else:
            n = 0
            k = i - 1
            while not (isinstance(seq[k], tuple) and seq[k][0] == "L" and seq[k][2] == x[1]):
                if isinstance(seq[k], tuple) and seq[k][0] == "L":
                    n += 1
                k -= 1
                assert k >= 0, x
            res.append(f"s_waitcnt lgkmcnt({min(n, 15)})")
    return res


def eld(a, k):
    a(f"""
    s_cmp_gt_u32 s21, {k}
    s_cselect_b32 s58, s18, 0
    v_add_u32 v{V_GE+k}, v{V_GE+k}, v{V_H16}
    buffer_load_dwordx4 v[{V_EA[k]}:{V_EA[k]+3}], v{V_GE+k}, s[56:59], 0 offen {OPT['e_pol']}
    """)


def gen_fill1(a, part):
    if part == 0:
        a(f"""
        ds_read_b128 v[{V_SL}:{V_SL+3}], v{V_AS} offset:{L_SRC}
        ds_read_b32 v{V_GE}, v{V_AP} offset:{L_POS}
        ds_read_b32 v{V_GE+1}, v{V_AP} offset:{L_POS+64}
        ds_read_b128 v[{V_ACC[0]}:{V_ACC[0]+3}], v{V_AS} offset:{L_SRC+64}
        s_waitcnt lgkmcnt(2)
        """)
        eld(a, 0)
        xld(a, 0, V_SL, 0)
        a(f"ds_read_b128 v[{V_SL}:{V_SL+3}], v{V_AS} offset:{L_SRC+128}")
    elif part == 1:
        eld(a, 1)
        xld(a, 1, V_ACC[0], 1)


def xld(a, b, vb, k):
    a(f"s_cmp_gt_u32 s21, {k}\ns_cselect_b32 s38, s19, 0")
    for j in range(4):
        a(f"""
        s_add_u32 m0, s20, {b*4096+j*1024}
        v_or_b32 v{vb+j}, v{vb+j}, v{V_K[j]}
        buffer_load_dwordx4 v{vb+j}, s[36:39], 0 offen {OPT['x_pol']} lds
        """)


def gen_fill2(a):
    xa = V_XA[0]
    a(f"ds_read_b128 v[{V_GR}:{V_GR+3}], v{V_AG} offset:{L_GT}")
    for k, r in RAMP_POS.items():
        a(f"ds_read_b32 v{r}, v{V_AP} offset:{L_POS+64*k}")
    a(f"""
    v_mov_b32 v{V_ACC[0]+3}, 0
    v_mov_b32 v{V_ACC[1]+3}, 0
    s_waitcnt vmcnt(5)
    """)
    for t in range(4):
        a(f"ds_read_b128 v[{xa+4*t}:{xa+4*t+3}], v{V_XR+t}")
    a("s_waitcnt lgkmcnt(4)")
    for g in range(4):
        a(f"""
        v_add_u32 v{V_GE+g}, v{V_GR+g}, v{V_N8}
        v_add_u32 v{V_G+g}, v{V_GR+g}, v{V_N8H}
        ds_read_b64 v[{V_EV+2*g}:{V_EV+2*g+1}], v{V_GE+g} offset:{L_EA}
        """)
    for k, r in RAMP_POS.items():
        a(f"v_add_u32 v{r}, v{r}, v{V_H16}")
    a("s_waitcnt lgkmcnt(4)")
    for m in mf_list(0, V_Z0, V_H0, 0):
        a(m)
    xld(a, 0, V_SL, 2)
    a("s_waitcnt lgkmcnt(0)\ns_nop 3")


def loop_tail(a, tag, last):
    if OPT["stamp"] == "6":
        a("s_memrealtime s[64:65]\ns_waitcnt lgkmcnt(0)\ns_mov_b32 m0, s66\ns_nop 3\nv_writelane_b32 v9, s64, m0\ns_add_u32 s66, s66, 1")
    if not last:
        a(f"""
        s_sub_u32 s21, s21, 1
        s_cmp_eq_u32 s21, 0
        s_cbranch_scc1 P2_FLUSH
        """)
    else:
        a(f"""
        v_add_u32 v{V_AS}, {64*NE}, v{V_AS}
        v_add_u32 v{V_AP}, {64*NE}, v{V_AP}
        v_add_u32 v{V_AG}, {16*NE}, v{V_AG}
        s_sub_u32 s21, s21, 1
        s_cmp_lg_u32 s21, 0
        s_cbranch_scc1 P2_LOOP{tag}
        s_branch P2_FLUSH
        """)


def gen_loop(a, safe, tag):
    bs = [body(p, safe) for p in range(NE)]
    if safe:
        a.lab("P2_SAFE")
        for k in range(2, LA):
            a(f"""
            s_cmp_gt_u32 s21, {k}
            s_cselect_b32 s58, s18, 0
            buffer_load_dwordx4 v[{V_EA[k]}:{V_EA[k]+3}], v{RAMP_POS[k]}, s[56:59], 0 offen
            """)
        a(f"v_mov_b32 v{V_PS}, v{RAMP_POS[LA]}\ns_waitcnt vmcnt(0)")
    else:
        rb = [body(p, safe, ramp=True) for p in range(NE)]
        vm = ["e0"] + [f"x0_{j}" for j in range(4)] + ["e1"] + [f"x1_{j}" for j in range(4)] + [f"x2_{j}" for j in range(4)]
        for p in range(NE):
            for x in resolve(rb[p - 1], rb[p], vm):
                a(x)
            loop_tail(a, tag, p == NE - 1)
    a.lab(f"P2_LOOP{tag}")
    for p in range(NE):
        rs = resolve(bs[p - 1], bs[p])
        if OPT["stamp"] == "4":
            rs = instrument(rs)
        for x in rs:
            a(x)
        loop_tail(a, tag, p == NE - 1)


def gen_p2():
    a = A()
    VT = 64
    VP = 84
    VR = 104
    VD = 124
    VE = 144
    VF = 200
    VX = 216
    VAP = 184
    a.lab("p2_kernel")
    a(f"""
    s_cmp_ge_u32 s2, {NB}
    s_cbranch_scc1 P2_END
    """)
    a.stamp(0)
    a.stamp3(0)
    if OPT["cpf2"] != "0":
        a("s_getpc_b64 s[52:53]")
        a.lab("P2_PC")
        a(f"""
        s_mov_b32 s54, P2_END-P2_PC
        s_mov_b32 s55, 0x20000
        v_lshlrev_b32 v28, 7, v0
        buffer_load_dword v29, v28, s[52:55], 0 offen
        """)
    a(f"""
    s_load_dwordx4 s[16:19], s[0:1], 0
    s_load_dwordx4 s[28:31], s[0:1], 16
    s_load_dwordx2 s[12:13], s[0:1], 56
    s_load_dwordx2 s[34:35], s[0:1], 72
    s_and_b32 s4, s2, 7
    s_lshl_b32 s4, s4, 5
    s_lshr_b32 s5, s2, 3
    s_add_u32 s4, s4, s5
    v_and_b32 v1, 63, v0
    v_lshrrev_b32 v5, 6, v0
    v_lshlrev_b32 v3, 4, v0
    v_lshlrev_b32 v4, 2, v0
    v_readfirstlane_b32 s3, v5
    s_mul_i32 s8, s4, {TROW}
    s_add_u32 s8, s8, {T_OFF}
    s_mul_i32 s6, s4, {NPB*128}
    v_and_b32 v56, 31, v1
    v_lshrrev_b32 v57, 5, v1
    v_and_b32 v58, 7, v1
    v_lshlrev_b32 v59, 2, v57
    v_xor_b32 v58, v58, v59
    v_lshlrev_b32 v{V_K[0]}, 4, v58
    s_waitcnt lgkmcnt(0)
    """)
    a.stamp3(1)
    a.srd(40, 34, 35, WS_SIZE)
    for k in range(NK):
        a(f"buffer_load_dwordx4 v[{VT+4*k}:{VT+4*k+3}], v3, s[40:43], s8 offen {OPT['t_ld']}\ns_add_u32 s8, s8, 8192")
    a.srd(36, 16, 17, N * 128)
    a.srd(56, 18, 19, E * 32)
    if OPT["epf2"] != "0":
        f1 = 625 * int(OPT["epf1"]) // 8
        a(f"""
        v_add_u32 v60, {f1}, v0
        v_cmp_gt_u32 vcc, 625, v60
        v_lshlrev_b32 v60, 7, v60
        s_mul_i32 s9, s2, {CH*32}
        s_mov_b64 exec, vcc
        buffer_load_dword v61, v60, s[56:59], s9 offen {OPT['epf_pol']}
        s_add_u32 s9, s9, {256*CH*32}
        buffer_load_dword v61, v60, s[56:59], s9 offen {OPT['epf_pol']}
        s_mov_b64 exec, -1
        """)
    if OPT["xpf"] == "2":
        a(f"""
        s_mul_i32 s9, s5, {391*128}
        v_lshlrev_b32 v26, 7, v0
        v_cmp_gt_u32 vcc, 391, v0
        s_mov_b64 exec, vcc
        buffer_load_dword v28, v26, s[36:39], s9 offen
        s_mov_b64 exec, -1
        """)
    a(f"""
    s_add_u32 s44, s12, s6
    s_addc_u32 s45, s13, 0
    s_sub_u32 s46, {N*128}, s6
    s_min_u32 s46, s46, {NPB*128}
    s_mov_b32 s47, 0x20000
    s_mov_b32 s19, {0 if "nox" in OPT["abl"] else N*128}
    s_mov_b32 s18, {0 if "noe" in OPT["abl"] else E*32}
    """)
    NLD = 0
    a.stamp3(2)
    a(f"""
    s_lshl_b32 s20, s3, 13
    s_add_u32 s20, s20, {L_XB}
    v_lshlrev_b32 v{V_N8}, 3, v56
    v_lshlrev_b32 v{V_H16}, 4, v57
    v_lshrrev_b32 v58, 5, v0
    v_lshl_add_u32 v{V_N8H}, v58, 8, v{V_N8}
    v_xor_b32 v{V_K[1]}, 16, v{V_K[0]}
    v_xor_b32 v{V_K[2]}, 32, v{V_K[0]}
    v_xor_b32 v{V_K[3]}, 48, v{V_K[0]}
    v_and_b32 v58, 3, v56
    v_lshrrev_b32 v59, 2, v56
    v_lshl_add_u32 v59, v58, 3, v59
    v_lshlrev_b32 v59, 7, v59
    v_add_u32 v59, s20, v59
    v_lshrrev_b32 v60, 4, v56
    v_lshl_add_u32 v58, v60, 2, v58
    v_xor_b32 v58, v58, v57
    """)
    for t in range(4):
        a(f"""
        v_xor_b32 v60, {2*t}, v58
        v_lshl_add_u32 v{V_XR+t}, v60, 4, v59
        """)
    for k in range(8):
        a(f"v_mov_b32 v{V_RUN+k}, 0")
    a(f"""
    ds_write_b32 v{V_RUN}, v{V_RUN} offset:{L_FLAG}
    s_mov_b32 s23, 0
    s_mov_b32 s24, 0
    s_mov_b32 s25, 0
    s_mov_b32 s15, 0
    """)
    a.lab("P2_ROUND")
    a(f"""
    v_mov_b32 v32, {SENT}
    v_mov_b32 v33, {SENT}
    v_mov_b32 v34, {SENT}
    v_mov_b32 v35, {SENT}
    ds_write_b128 v3, v[32:35] offset:{L_SRC}
    ds_write_b128 v3, v[32:35] offset:{L_SRC+8192}
    ds_write_b128 v3, v[32:35] offset:{L_POS}
    ds_write_b128 v3, v[32:35] offset:{L_POS+8192}
    v_mov_b32 v36, {(NROW-1)*256}
    v_mov_b32 v37, {(NROW-1)*256}
    v_lshlrev_b32 v40, 3, v0
    ds_write_b64 v40, v[36:37] offset:{L_GT}
    v_mov_b32 v38, -1
    v_mov_b32 v39, -1
    ds_write_b64 v40, v[38:39] offset:{L_GM}
    v_mov_b32 v41, 0
    v_and_b32 v42, 0xfc, v4
    ds_write_b32 v42, v41 offset:{L_NCNT}
    v_mov_b32 v43, 1
    s_cmp_lg_u32 s24, 0
    s_cbranch_scc1 P2_SLOW
    """)
    a(f"""
    v_lshrrev_b32 v44, 3, v0
    v_mul_u32_u24 v13, {CH}, v44
    """)
    a.stamp3(3)
    a("s_waitcnt lgkmcnt(0)\ns_barrier")
    a.stamp3(4)
    for k in range(NK):
        a(f"s_waitcnt vmcnt({NK-1-k+(2 if OPT['epf2'] != '0' else 0)+(1 if OPT['xpf'] == '2' else 0)})")
        if k == 0:
            a.stamp(1)
        if k < 4:
            a.stamp3(5 + k)
        a(f"""
        v_cmp_eq_u32 vcc, -2, v{VT+4*k}
        s_cbranch_vccz P2_NOOVF{k}
        ds_or_b32 v41, v43 offset:{L_FLAG}
        s_branch P2_A_LD
        """)
        a.lab(f"P2_NOOVF{k}")
        for pos in range(4):
            j = 4 * k + pos
            a(f"v_cmpx_ne_u32 vcc, -1, v{VT+j}")
            if pos >= 2:
                a(f"s_cbranch_execz P2_A{k}")
            a(f"""
            v_bfe_u32 v{VD+j}, v{VT+j}, 14, 6
            v_lshlrev_b32 v{VD+j}, 2, v{VD+j}
            ds_add_rtn_u32 v{VR+j}, v{VD+j}, v43 offset:{L_NCNT}
            v_lshrrev_b32 v{VP+j}, 20, v{VT+j}
            v_add_lshl_u32 v{VP+j}, v{VP+j}, v13, 5
            v_and_b32 v{VE+j}, 0x3fff, v{VT+j}
            v_lshlrev_b32 v{VE+j}, 7, v{VE+j}
            """)
        a.lab(f"P2_A{k}")
        a(f"""
        s_mov_b64 exec, -1
        v_add_u32 v13, {64*CH}, v13
        """)
    a.lab("P2_A_LD")
    a("s_mov_b64 exec, -1")
    if OPT["xpf"] == "1":
        a(f"""
        s_mul_i32 s9, s5, {391*128}
        v_lshlrev_b32 v26, 7, v0
        v_cmp_gt_u32 vcc, 391, v0
        s_mov_b64 exec, vcc
        buffer_load_dword v28, v26, s[36:39], s9 offen
        s_mov_b64 exec, -1
        """)
    a(f"""
    s_and_b32 s9, s3, 3
    s_lshl_b32 s10, s9, 4
    v_xor_b32 v26, s10, v{V_K[0]}
    v_lshrrev_b32 v27, 3, v1
    v_lshl_add_u32 v26, v27, 9, v26
    s_lshr_b32 s10, s3, 2
    s_lshl_b32 s10, s10, 12
    s_lshl_b32 s11, s9, 7
    s_add_u32 s10, s10, s11
    s_add_u32 s10, s10, s6
    s_lshl_b32 s11, s3, 10
    s_add_u32 m0, s11, {L_PX}
    v_lshlrev_b32 v27, 4, v1
    buffer_load_dwordx4 v26, s[36:39], s10 offen lds
    s_add_u32 m0, s11, {L_ACC}
    s_add_u32 s10, s11, {WF_OFF}
    buffer_load_dwordx4 v27, s[40:43], s10 offen lds
    s_add_u32 m0, s11, {L_ACC+8192}
    s_add_u32 s10, s11, {WF_OFF+8192}
    buffer_load_dwordx4 v27, s[40:43], s10 offen lds
    s_and_b32 s11, s11, 0x400
    s_add_u32 m0, s11, {L_ACC+16384}
    s_add_u32 s10, s11, {WF_OFF+16384}
    buffer_load_dwordx4 v27, s[40:43], s10 offen lds
    s_lshl_b32 s9, s9, 12
    s_add_u32 s9, s9, {WF_OFF+18*1024}
    """)
    for t in range(4):
        a(f"buffer_load_dwordx4 v[{VF+4*t}:{VF+4*t+3}], v27, s[40:43], s9 offen offset:{1024*t}")
    a("s_branch P2_A_DONE")
    QCAP = 512 * JS
    a.lab("P2_SLOW")
    a.srd(48, 30, 31, E * 4)
    a.srd(52, 28, 29, E * 4)
    a(f"""
    ds_write_b32 v41, v41 offset:{L_WT}
    s_mul_i32 s26, s4, {NPB}
    v_mov_b32 v13, {L_XB}
    s_waitcnt lgkmcnt(0)
    s_barrier
    """)
    a.lab("P2_SCAN")
    a(f"""
    s_lshl_b32 s10, s23, 2
    v_add_u32 v45, s23, v0
    buffer_load_dword v44, v4, s[48:51], s10 offen
    v_cmp_gt_u32 vcc, {E}, v45
    s_mov_b64 s[10:11], vcc
    s_waitcnt vmcnt(0)
    v_subrev_u32 v44, s26, v44
    v_cmp_gt_u32 vcc, {NPB}, v44
    s_and_b64 exec, vcc, s[10:11]
    ds_add_rtn_u32 v46, v41, v43 offset:{L_WT}
    s_waitcnt lgkmcnt(0)
    v_lshl_add_u32 v46, v46, 2, v13
    ds_write_b32 v46, v45
    s_mov_b64 exec, -1
    s_add_u32 s23, s23, 512
    s_waitcnt lgkmcnt(0)
    s_barrier
    ds_read_b32 v46, v41 offset:{L_WT}
    s_waitcnt lgkmcnt(0)
    v_readfirstlane_b32 s27, v46
    s_barrier
    s_cmp_gt_u32 s27, {QCAP-512}
    s_cbranch_scc1 P2_SCAN_DONE
    s_cmp_lt_u32 s23, {E}
    s_cbranch_scc1 P2_SCAN
    """)
    a.lab("P2_SCAN_DONE")
    for j in range(4 * NK):
        a(f"v_mov_b32 v{VT+j}, -1")
    a(f"v_add_u32 v47, {L_XB}, v4")
    for j in range(JS):
        a(f"""
        v_add_u32 v44, {512*j}, v0
        v_cmp_gt_u32 vcc, s27, v44
        s_and_saveexec_b64 s[10:11], vcc
        s_cbranch_execz P2_A_DONE
        ds_read_b32 v45, v47 offset:{2048*j}
        s_waitcnt lgkmcnt(0)
        v_lshlrev_b32 v46, 2, v45
        buffer_load_dword v{VD+j}, v46, s[48:51], 0 offen
        buffer_load_dword v{VE+j}, v46, s[52:55], 0 offen
        v_lshlrev_b32 v{VP+j}, 5, v45
        v_mov_b32 v{VT+j}, 0
        s_waitcnt vmcnt(0)
        v_subrev_u32 v{VD+j}, s26, v{VD+j}
        v_lshlrev_b32 v{VD+j}, 2, v{VD+j}
        ds_add_rtn_u32 v{VR+j}, v{VD+j}, v43 offset:{L_NCNT}
        v_lshlrev_b32 v{VE+j}, 7, v{VE+j}
        """)
    a.lab("P2_A_DONE")
    a("s_mov_b64 exec, -1")
    a.stamp3(9)
    a(f"""
    v_lshlrev_b32 v44, 2, v1
    s_waitcnt lgkmcnt(0)
    s_barrier
    """)
    a.stamp3(10)
    a.stamp(2)
    a(f"""
    ds_read_b32 v45, v44 offset:{L_NCNT}
    ds_read_b32 v47, v41 offset:{L_FLAG}
    s_waitcnt lgkmcnt(0)
    v_add_u32 v32, 3, v45
    v_and_b32 v32, -4, v32
    v_mov_b32 v33, v32
    v_readfirstlane_b32 s14, v47
    """)
    a.wave_scan(33)
    a(f"""
    s_nop 0
    v_readlane_b32 s12, v33, 63
    v_add_u32 v34, -1, v33
    v_sub_u32 v33, v33, v32
    s_cmp_lg_u32 s24, 0
    s_cbranch_scc1 P2_CHK_DONE
    s_and_b32 s14, s14, 1
    s_cmp_gt_u32 s12, {SLOTS}
    s_cselect_b32 s14, 1, s14
    s_cmp_eq_u32 s14, 0
    s_cbranch_scc1 P2_CHK_DONE
    """)
    a(f"""
    s_mov_b32 s24, {E}
    s_waitcnt vmcnt(0)
    s_barrier
    s_branch P2_ROUND
    """)
    a.lab("P2_CHK_DONE")
    for k in range(NK):
        for pos in range(4):
            j = 4 * k + pos
            if pos == 2:
                a(f"v_cmp_ne_u32 vcc, -1, v{VT+j}\ns_cbranch_vccz P2_B1_{k}")
            a(f"ds_bpermute_b32 v{VD+j}, v{VD+j}, v33")
        a.lab(f"P2_B1_{k}")
    a(f"""
    s_add_u32 s12, s12, 31
    s_lshr_b32 s12, s12, 5
    s_add_u32 s21, s12, 7
    s_sub_u32 s21, s21, s3
    s_lshr_b32 s21, s21, 3
    s_lshr_b32 s13, s12, 3
    s_and_b32 s14, s12, 7
    """)
    a(f"""
    s_mul_i32 s10, s3, s13
    s_min_u32 s11, s3, s14
    s_add_u32 s10, s10, s11
    s_lshl_b32 s10, s10, 7
    s_lshl_b32 s11, s21, 6
    v_bfe_u32 v53, v1, 3, 1
    v_mul_u32_u24 v53, s11, v53
    v_lshrrev_b32 v54, 4, v1
    v_lshl_add_u32 v53, v54, 4, v53
    v_add_u32 v{V_AS}, s10, v53
    v_bfe_u32 v53, v1, 2, 1
    v_mul_u32_u24 v53, s11, v53
    v_bfe_u32 v54, v1, 3, 2
    v_lshl_add_u32 v53, v54, 4, v53
    v_and_b32 v54, 3, v1
    v_lshl_add_u32 v53, v54, 2, v53
    v_add_u32 v{V_AP}, s10, v53
    v_lshrrev_b32 v53, 5, v1
    v_mul_u32_u24 v53, s11, v53
    v_add_u32 v53, s10, v53
    v_lshrrev_b32 v{V_AG}, 2, v53
    s_waitcnt lgkmcnt(0)
    """)
    a.stamp3(11)
    for k in range(NK):
        for pos in range(4):
            j = 4 * k + pos
            a(f"v_cmpx_ne_u32 vcc, -1, v{VT+j}")
            if pos >= 2:
                a(f"s_cbranch_execz P2_B2_{k}")
            a(f"""
            v_add_lshl_u32 v{VR+j}, v{VR+j}, v{VD+j}, 2
            ds_write2st64_b32 v{VR+j}, v{VE+j}, v{VP+j} offset0:{L_SRC//256} offset1:{L_POS//256}
            """)
        a.lab(f"P2_B2_{k}")
        a("s_mov_b64 exec, -1")
    a.stamp3(12)
    a.stamp(3)
    a("s_waitcnt vmcnt(0) lgkmcnt(0)")
    a.stamp(4)
    a("s_barrier")
    a.stamp(5)
    a.stamp3(13)
    if OPT["stamp"] == "1":
        a("s_memtime s[82:83]\ns_mov_b32 s86, s21")
    if OPT["stamp"] == "2":
        a("s_memtime s[84:85]\ns_memrealtime s[88:89]")
    if "nomain" in OPT["abl"]:
        a("s_mov_b32 s21, 0")
    a.stamp5(0)
    if OPT["stamp"] == "6":
        a("s_memrealtime s[64:65]\ns_waitcnt lgkmcnt(0)\nv_writelane_b32 v9, s64, 0")
    gen_fill1(a, 0)
    a.stamp5(1)
    a(f"""
    s_lshl_b32 s10, s3, 2
    v_add_u32 v64, s10, v33
    v_add_u32 v65, v33, v32
    v_lshlrev_b32 v66, 8, v1
    s_cmp_eq_u32 s3, 0
    s_cselect_b32 s11, 0, -1
    v_mov_b32 v67, s11
    """)
    a.lab("P2_G_L")
    a(f"""
    v_cmpx_lt_u32 vcc, v64, v65
    s_cbranch_execz P2_G_DONE
    ds_write2st64_b32 v64, v66, v67 offset0:{L_GT//256} offset1:{L_GM//256}
    v_add_u32 v64, 32, v64
    v_mov_b32 v67, -1
    s_branch P2_G_L
    """)
    a.lab("P2_G_DONE")
    a("s_mov_b64 exec, -1")
    a(f"""
    s_cmp_lg_u32 s25, 0
    s_cbranch_scc1 P2_PREP_A
    s_lshr_b32 s9, s3, 2
    s_lshl_b32 s10, s9, 12
    s_add_u32 s10, s10, {L_PX}
    s_sub_u32 s10, s10, s20
    """)
    for t in range(4):
        a(f"""
        v_add_u32 v{64+t}, s10, v{V_XR+t}
        ds_read_b128 v[{VX+4*t}:{VX+4*t+3}], v{64+t}
        """)
    a(f"""
    s_lshl_b32 s9, s9, 13
    s_and_b32 s10, s3, 1
    s_lshl_b32 s10, s10, 2
    s_add_u32 s9, s9, s10
    v_lshl_add_u32 v2, v{V_H16}, 6, v{V_N8}
    v_add_u32 v2, s9, v2
    s_waitcnt lgkmcnt(0)
    """)
    for t in range(4):
        c = "0" if t == 0 else f"v[{VAP}:{VAP+15}]"
        a(f"v_mfma_f32_32x32x16_bf16 v[{VAP}:{VAP+15}], v[{VX+4*t}:{VX+4*t+3}], v[{VF+4*t}:{VF+4*t+3}], {c}")
    a.lab("P2_PREP_A")
    a(f"""
    s_add_u32 s10, s13, 1
    s_mul_i32 s11, s14, s10
    s_lshl_b32 s11, s11, 1
    v_cvt_f32_u32 v68, s10
    v_cvt_f32_u32 v69, s13
    v_rcp_f32 v68, v68
    v_rcp_f32 v69, v69
    s_lshl_b32 s10, s14, 1
    v_lshrrev_b32 v64, 4, v33
    v_bfe_u32 v65, v34, 4, 9
    """)
    for v in (64, 65):
        a(f"""
        v_cmp_gt_u32 vcc, s11, v{v}
        v_subrev_u32 v70, s11, v{v}
        s_nop 0
        v_cndmask_b32 v70, v70, v{v}, vcc
        v_cndmask_b32 v71, v69, v68, vcc
        v_cvt_f32_u32 v70, v70
        v_add_f32 v70, 0.5, v70
        v_mul_f32 v70, v70, v71
        v_cvt_u32_f32 v70, v70
        v_add_u32 v71, s10, v70
        v_cndmask_b32 v{v}, v71, v70, vcc
        """)
    a(f"""
    v_sub_u32 v65, v65, v64
    v_add_u32 v65, 1, v65
    v_cmp_ne_u32 vcc, 0, v32
    v_lshrrev_b32 v66, 4, v0
    v_lshlrev_b32 v66, 2, v66
    v_cndmask_b32 v65, 0, v65, vcc
    v_and_b32 v64, 15, v64
    v_lshl_or_b32 v65, v64, 8, v65
    v_add_u32 v67, 128, v66
    ds_bpermute_b32 v7, v66, v65
    ds_bpermute_b32 v8, v67, v65
    s_cmp_lg_u32 s25, 0
    s_cbranch_scc1 P2_PREP_SKIP
    s_bitcmp1_b32 s3, 1
    s_cbranch_scc1 P2_HU
    """)

    def dwrites(base):
        a("s_cmp_ge_u32 s3, 4\ns_cbranch_scc1 " + f"P2_DW1_{base}")
        for i in range(16):
            a(f"ds_write_b32 v2, v{VAP+i} offset:{base+(8*(i//4)+i%4)*256}")
        a(f"s_branch P2_DW2_{base}")
        a.lab(f"P2_DW1_{base}")
        for i in range(8):
            a(f"ds_write_b32 v2, v{VAP+i} offset:{base+(8*(i//4)+i%4)*256}")
        a("s_mov_b32 exec_hi, 0")
        for i in (8, 9):
            a(f"ds_write_b32 v2, v{VAP+i} offset:{base+(8*(i//4)+i%4)*256}")
        a("s_mov_b64 exec, -1")
        a.lab(f"P2_DW2_{base}")

    for i in range(16):
        a(f"v_mul_f32 v{VAP+i}, {NLOG2E:#x}, v{VAP+i}")
    a(f"v_max3_f32 v64, abs(v{VAP}), abs(v{VAP+1}), abs(v{VAP+2})")
    for i in range(3, 15, 2):
        a(f"v_max3_f32 v64, abs(v{VAP+i}), abs(v{VAP+i+1}), v64")
    a(f"""
    v_max_f32 v64, abs(v{VAP+15}), v64
    v_mov_b32 v65, 0x42700000
    v_cmp_lt_f32 s[10:11], v65, v64
    """)
    for i in range(0, 16, 2):
        a(f"""
        v_cmp_u_f32 vcc, v{VAP+i}, v{VAP+i+1}
        s_or_b64 s[10:11], s[10:11], vcc
        """)
    a(f"""
    s_cmp_eq_u64 s[10:11], 0
    s_cbranch_scc1 P2_EA_W
    v_mov_b32 v65, 2
    ds_or_b32 v41, v65 offset:{L_FLAG}
    s_branch P2_EA_W
    """)
    a.lab("P2_HU")
    a(f"v_add_u32 v2, {L_HU}, v2")
    for i in range(16):
        a(f"v_cvt_pk_bf16_f32 v{VAP+i}, v{VAP+i}, v{VAP+i}")
    for i in range(16):
        a(f"v_and_b32 v{VAP+i}, 0xffff0000, v{VAP+i}")
    dwrites(0)
    a.lab("P2_EA_W")
    a(f"""
    v_lshlrev_b32 v64, 4, v1
    v_add_u32 v64, {L_ACC}, v64
    """)
    for f in range(4, 18):
        a(f"ds_read_b128 {wfrag(f)}, v64 offset:{1024*f}")
    a.stamp5(2)
    a(f"""
    s_waitcnt lgkmcnt(0)
    s_barrier
    ds_read_b32 v65, v41 offset:{L_FLAG}
    """)
    a.stamp5(3)
    if OPT['fsplit'] == '1':
        gen_fill1(a, 1)
    a.stamp5(4)
    a(f"""
    s_waitcnt lgkmcnt(0)
    v_readfirstlane_b32 s15, v65
    s_lshr_b32 s15, s15, 1
    s_bitcmp1_b32 s3, 1
    s_cbranch_scc1 P2_EA3
    s_cmp_lg_u32 s15, 0
    s_cbranch_scc1 P2_EA2_W
    """)
    for k in range(16):
        a(f"v_exp_f32 v{VAP+k}, v{VAP+k}")
    a("s_nop 0")
    a.lab("P2_EA2_W")
    dwrites(L_EA)
    a.lab("P2_EA3")
    for f in range(4):
        a(f"ds_read_b128 {wfrag(f)}, v64 offset:{1024*f}")
    a("s_mov_b32 s25, 1")
    a("s_branch P2_PREP_DONE")
    a.lab("P2_PREP_SKIP")
    if OPT['fsplit'] == '1':
        a("s_waitcnt lgkmcnt(0)")
        gen_fill1(a, 1)
    a.lab("P2_PREP_DONE")
    a.stamp5(5)
    a(f"""
    s_waitcnt lgkmcnt(0)
    s_barrier
    """)
    a.stamp5(6)
    a.stamp5(7)
    a.stamp3(14)
    a(f"""
    s_cmp_eq_u32 s21, 0
    s_cbranch_scc1 P2_MAIN_DONE
    """)
    gen_fill2(a)
    if OPT["stamp"] == "6":
        a("s_memrealtime s[64:65]\ns_waitcnt lgkmcnt(0)\nv_writelane_b32 v9, s64, 1\ns_mov_b32 s66, 2")
    a.stamp(14)
    if OPT["stamp"] == "4":
        a("s_mov_b32 s70, 0\ns_mov_b32 s72, 0\ns_mov_b32 s74, 0\ns_memtime s[76:77]\ns_mov_b32 s80, s21")
    a(f"""
    s_cmp_lg_u32 s15, 0
    s_cbranch_scc1 P2_SAFE
    """)
    gen_loop(a, False, "F")
    gen_loop(a, True, "S")
    a.lab("P2_FLUSH")
    for g in range(4):
        a(f"ds_write_b32 v{V_G+g}, v{V_ACC[1]+g} offset:{L_ACC+4}")
    a.lab("P2_MAIN_DONE")
    if OPT["stamp"] == "2":
        a("s_memtime s[86:87]\ns_memrealtime s[90:91]")
    if OPT["stamp"] == "4":
        a("s_memtime s[78:79]")
    a.stamp(6)
    if OPT["stamp"] == "1":
        a("s_memtime s[84:85]\ns_getreg_b32 s88, hwreg(HW_REG_HW_ID)\ns_getreg_b32 s90, hwreg(HW_REG_XCC_ID)")
    a(f"""
    s_waitcnt vmcnt(0) lgkmcnt(0)
    s_barrier
    """)
    a.stamp(7)
    for h in range(2):
        a(f"""
        v_and_b32 v24, 0xff, v{7+h}
        v_and_b32 v25, 0xff00, v{7+h}
        v_add_u32 v25, v25, v3
        v_add_u32 v25, {L_ACC+8192*h}, v25
        """)
        a.lab(f"P2_FOLD{h}")
        a(f"""
        v_cmpx_lt_u32 vcc, 0, v24
        s_cbranch_execz P2_FOLD_DONE{h}
        ds_read_b128 v[32:35], v25
        v_add_u32 v24, -1, v24
        v_add_u32 v25, 0x100, v25
        s_waitcnt lgkmcnt(0)
        v_add_f32 v{V_RUN+4*h}, v{V_RUN+4*h}, v32
        v_add_f32 v{V_RUN+4*h+1}, v{V_RUN+4*h+1}, v33
        v_add_f32 v{V_RUN+4*h+2}, v{V_RUN+4*h+2}, v34
        v_add_f32 v{V_RUN+4*h+3}, v{V_RUN+4*h+3}, v35
        s_branch P2_FOLD{h}
        """)
        a.lab(f"P2_FOLD_DONE{h}")
        a("s_mov_b64 exec, -1")
    a(f"""
    s_cmp_lt_u32 s23, s24
    s_cbranch_scc1 P2_ROUND
    v_lshrrev_b32 v5, 4, v0
    v_and_b32 v6, 15, v0
    v_lshlrev_b32 v5, 7, v5
    v_lshl_add_u32 v5, v6, 2, v5
    v_add_u32 v6, 0x1000, v5
    """)
    for h in range(2):
        R = V_RUN + 4 * h
        a(f"""
        v_add_u32 v24, {L_HU+8192*h}, v3
        ds_read_b128 v[32:35], v24
        v_cvt_pk_bf16_f32 v36, v{R}, v{R+2}
        v_cvt_pk_bf16_f32 v37, v{R+1}, v{R+3}
        v_lshlrev_b32 v28, 16, v36
        v_and_b32 v30, 0xffff0000, v36
        v_lshlrev_b32 v29, 16, v37
        v_and_b32 v31, 0xffff0000, v37
        s_waitcnt lgkmcnt(0)
        v_add_f32 v28, v28, v32
        v_add_f32 v29, v29, v33
        v_add_f32 v30, v30, v34
        v_add_f32 v31, v31, v35
        v_cvt_pk_bf16_f32 v36, v28, v30
        v_cvt_pk_bf16_f32 v37, v29, v31
        v_lshlrev_b32 v28, 16, v36
        v_and_b32 v30, 0xffff0000, v36
        v_lshlrev_b32 v29, 16, v37
        v_and_b32 v31, 0xffff0000, v37
        """)
        for k in range(4):
            a(f"v_mul_f32 v{32+k}, {NLOG2E:#x}, v{28+k}")
        for k in range(4):
            a(f"v_exp_f32 v{32+k}, v{32+k}")
        for k in range(4):
            a(f"v_add_f32 v{32+k}, 1.0, v{32+k}")
        for k in range(4):
            a(f"v_rcp_f32 v{32+k}, v{32+k}")
        for k in range(4):
            a(f"v_mul_f32 v{28+k}, v{28+k}, v{32+k}")
        a(f"""
        v_cvt_pk_bf16_f32 v{38+2*h}, v28, v30
        v_cvt_pk_bf16_f32 v{39+2*h}, v29, v31
        buffer_store_dword v{38+2*h}, v{5+h}, s[44:47], 0 offen
        buffer_store_dword v{39+2*h}, v{5+h}, s[44:47], 0 offen offset:64
        """)
    a.stamp(8)
    if OPT["stamp"] == "6":
        a(f"""
        s_lshl_b32 s10, s2, 3
        s_add_u32 s10, s10, s3
        s_lshl_b32 s10, s10, 6
        s_add_u32 s10, s10, {DBG2_OFF}
        v_lshlrev_b32 v2, 2, v1
        s_mov_b64 exec, 0xffff
        buffer_store_dword v9, v2, s[40:43], s10 offen
        s_endpgm
        """)
    a.stamp_flush(15, 40, 8, DBG2_OFF)
    a.lab("P2_END")
    a("s_endpgm")
    return a.text()


HEAD = open("standalone__edge_featured_mpnn_egc__graph.s.ref").read().split("; Override launch")[0]


def kd(name, vgpr, sgpr):
    acc = (vgpr + 3) // 4 * 4
    return f""".amdhsa_kernel {name}
  .amdhsa_next_free_vgpr {vgpr}
  .amdhsa_next_free_sgpr {sgpr}
  .amdhsa_accum_offset {acc}
  .amdhsa_group_segment_fixed_size 0
  .amdhsa_kernarg_size 80
  .amdhsa_user_sgpr_count 2
  .amdhsa_user_sgpr_kernarg_segment_ptr 1
  .amdhsa_system_sgpr_workgroup_id_x 1
.end_amdhsa_kernel
"""


def main():
    out = HEAD
    out += f"; @launch kernel=p1_kernel grid=({NCH},1,1) block=({64*int(OPT['p1_w'])+64},1,1) lds={P1_LDS}\n"
    out += f"; @launch kernel=p2_kernel grid=({NB},1,1) block=(512,1,1) lds={P2_LDS}\n"
    out += '.amdgcn_target "amdgcn-amd-amdhsa--gfx950"\n.text\n'
    out += ".globl p1_kernel\n.p2align 8\n.type p1_kernel,@function\n" + gen_p1()
    out += ".globl p2_kernel\n.p2align 8\n.type p2_kernel,@function\n" + gen_p2()
    out += '.section .rodata,"a"\n.p2align 6\n' + kd("p1_kernel", 96, 100) + ".p2align 6\n" + kd("p2_kernel", 256, 100)
    open(sys.argv[1], "w").write(out)


main()
```

```python
import sys

N = 12500; E = 800000
NCH = 320; CH = 2500
NK = NCH // 64
TROW = NCH * 128
NB = 256; NPB = 49; MUL = 21400
SUBN = 16
SLOTS = 4096
JS = 7
NLOG2E = 0xBFB8AA3B

T_OFF = 0x0
ENT_OFF = 0xA00000
HDR_OFF = 0xE00000
WF_OFF = 0xE80000
DBG1_OFF = 0x2C00000
DBG2_OFF = 0x2D00000
WS_SIZE = 0x3000000
NFRAG = 44

OPT = dict(p1_store="", p1_tstore="nt", p1_ld="nt", abl="", stamp="", prio_hi="1", prio_lo="0", xpf="0",
           p1_sched="[[0,1],[2,3],[4,5],[6]]", bunch="1", ne="4", e_pol="sc1", epf1="0", epf2="0", epf_pol="", cpf="16", fsplit="1", cpf2="1", cpf1="0", kr_fake="0", tpf="0", la="3", mfo="0", xm="1", t_ld="", p1_w="5", x_pol="")
for a_ in sys.argv[2:]:
    k_, v_ = a_.split("=")
    OPT[k_] = v_


class A:
    def __init__(self):
        self.l = []

    def __call__(self, s):
        for x in s.strip().split("\n"):
            self.l.append("    " + x.strip())

    def lab(self, s):
        self.l.append(s + ":")

    def srd(self, d, lo, hi, nrec, add=None):
        if add is None:
            self(f"s_mov_b32 s{d}, s{lo}\ns_mov_b32 s{d+1}, s{hi}")
        else:
            self(f"s_add_u32 s{d}, s{lo}, {add}\ns_addc_u32 s{d+1}, s{hi}, 0")
        self(f"s_mov_b32 s{d+2}, {nrec}\ns_mov_b32 s{d+3}, 0x20000")

    def wave_scan(self, v, full=True):
        for sh in (1, 2, 4, 8):
            self("s_nop 1")
            self(f"v_add_u32_dpp v{v}, v{v}, v{v} row_shr:{sh} row_mask:0xf bank_mask:0xf bound_ctrl:0")
        if full:
            self("s_nop 1")
            self(f"v_add_u32_dpp v{v}, v{v}, v{v} row_bcast:15 row_mask:0xa bank_mask:0xf")
            self("s_nop 1")
            self(f"v_add_u32_dpp v{v}, v{v}, v{v} row_bcast:31 row_mask:0xc bank_mask:0xf")

    def stamp(self, k):
        if OPT["stamp"] == "1":
            self(f"s_memrealtime s[{64+2*k}:{65+2*k}]")

    def stamp5(self, k):
        if OPT["stamp"] == "5":
            self(f"s_memtime s[{64+2*k}:{65+2*k}]")

    def stamp3(self, k):
        if OPT["stamp"] == "3":
            self(f"s_memtime s[{64+2*k}:{65+2*k}]")

    def stamp_flush(self, n, srd, nw, base):
        if not OPT["stamp"]:
            return
        self(f"""
        s_waitcnt lgkmcnt(0)
        s_mov_b64 exec, -1
        s_mul_i32 s10, s2, {nw}
        s_add_u32 s10, s10, s3
        s_lshl_b32 s10, s10, 6
        s_add_u32 s10, s10, {base}
        v_mov_b32 v1, 0
        """)
        for k in range(n):
            self(f"v_mov_b32 v2, s{64+2*k}\nbuffer_store_dword v2, v1, s[{srd}:{srd+3}], s10 offen offset:{4*k}\ns_nop 1")

    def text(self):
        return "\n".join(self.l) + "\n"


def sub_dl(j):
    return (1 if j < 10 else 8) + (j % 10) // 5, 6 * (j % 5)


def sub_src(j):
    return (3 if j < 10 else 10) + (j % 10) // 2, 16 * (j % 2)


P1_HIST = 0; P1_TI = 1024
P1_LDS = P1_TI + 32768


def gen_p1():
    a = A()
    TST = OPT["p1_tstore"]; LD = OPT["p1_ld"]
    SW = int(OPT["p1_w"])
    NT = 64 * SW
    NQ = -(-625 // NT)
    NR = -(-2048 // NT)
    a.lab("p1_kernel")
    a(f"""
    s_cmp_ge_u32 s2, {NCH}
    s_cbranch_scc1 P1_END
    """)
    a.stamp(0)
    a(f"""
    s_load_dwordx16 s[16:31], s[0:1], 0
    s_load_dwordx4 s[32:35], s[0:1], 64
    v_and_b32 v1, 63, v0
    v_lshrrev_b32 v5, 6, v0
    v_lshlrev_b32 v2, 4, v0
    v_lshlrev_b32 v3, 2, v0
    v_readfirstlane_b32 s3, v5
    v_lshlrev_b32 v4, 4, v1
    s_mul_i32 s4, s2, {CH*4}
    s_cmp_ge_u32 s3, {SW}
    s_cbranch_scc1 P1_AUX
    v_mov_b32 v6, 0
    v_and_b32 v7, 0x3fc, v3
    ds_write_b32 v7, v6 offset:{P1_HIST}
    s_waitcnt lgkmcnt(0)
    """)
    a.srd(44, 22, 23, CH * 4, "s4")
    a.srd(40, 20, 21, CH * 4, "s4")
    VDs = [40 + 8 * q for q in range(NQ)]
    for q in range(NQ):
        a(f"s_mov_b32 s5, {NT*16*q}\nbuffer_load_dwordx4 v[{VDs[q]}:{VDs[q]+3}], v2, s[44:47], s5 offen {LD}")
    for q in range(NQ):
        a(f"s_mov_b32 s5, {NT*16*q}\nbuffer_load_dwordx4 v[{VDs[q]+4}:{VDs[q]+7}], v2, s[40:43], s5 offen {LD}")
    a.srd(48, 34, 35, WS_SIZE)
    a("v_mov_b32 v8, -1\nv_mov_b32 v9, -1\nv_mov_b32 v10, -1\nv_mov_b32 v11, -1")
    for r in range(NR):
        if (r + 1) * NT <= 2048:
            a(f"ds_write_b128 v2, v[8:11] offset:{P1_TI+NT*16*r}")
        else:
            a(f"v_min_u32 v12, {(2048-r*NT-1)*16}, v2\nds_write_b128 v12, v[8:11] offset:{P1_TI+NT*16*r}")
    a(f"""
    v_cmp_gt_u32 vcc, {625-(NQ-1)*NT}, v0
    s_mov_b64 s[8:9], vcc
    v_mov_b32 v30, 1
    v_lshrrev_b32 v7, 3, v0
    v_lshlrev_b32 v6, 2, v7
    v_and_b32 v27, 7, v0
    s_lshl_b32 s6, s2, 7
    s_add_u32 s6, s6, {T_OFF}
    v_mul_u32_u24 v28, {TROW}, v7
    v_lshl_or_b32 v28, v27, 4, v28
    s_waitcnt lgkmcnt(0)
    s_barrier
    """)
    VB = 40 + 8 * NQ; VRK = VB + 4 * NQ
    for q in range(NQ):
        a(f"s_waitcnt vmcnt({2*NQ-1-q})")
        if q == 0:
            a.stamp(1)
        if q == NQ - 1:
            a("s_mov_b64 exec, s[8:9]")
        for e in range(4):
            d = VDs[q] + e; b = VB + 4 * q + e
            a(f"""
            v_mul_u32_u24 v{b}, {MUL}, v{d}
            v_lshrrev_b32 v31, 20, v{b}
            v_lshlrev_b32 v{b}, 2, v31
            ds_add_rtn_u32 v{VRK+4*q+e}, v{b}, v30 offset:{P1_HIST}
            v_mul_u32_u24 v31, {NPB}, v31
            v_sub_u32 v{d}, v{d}, v31
            """)
    a("s_mov_b64 exec, -1\ns_waitcnt vmcnt(0)")
    for q in range(NQ):
        for e in range(4):
            d = VDs[q] + e
            a(f"""
            v_lshl_or_b32 v{d}, v{d}, 14, v{d+4}
            v_add_u32 v31, {4*NT*q+e}, v3
            v_lshl_or_b32 v{d}, v31, 20, v{d}
            """)
    a.stamp(2)
    a("s_mov_b64 s[10:11], -1")
    for q in range(NQ):
        if q == NQ - 1:
            a("s_mov_b64 s[10:11], s[8:9]")
        for e in range(4):
            d = VDs[q] + e; b = VB + 4 * q + e; rk = VRK + 4 * q + e
            a(f"""
            s_waitcnt lgkmcnt({min(4*NQ-1, 15)})
            v_and_b32 v31, 7, v{rk}
            v_lshlrev_b32 v31, 4, v31
            v_lshl_add_u32 v{b}, v{b}, 5, v31
            v_lshrrev_b32 v31, 3, v{rk}
            v_cmp_gt_u32 vcc, 32, v{rk}
            v_lshl_add_u32 v{b}, v31, 2, v{b}
            s_and_b64 exec, s[10:11], vcc
            ds_write_b32 v{b}, v{d} offset:{P1_TI}
            s_mov_b64 exec, -1
            """)
    a("s_waitcnt lgkmcnt(0)")
    a.stamp(3)
    a("s_barrier")
    for k in (4, 5, 6):
        a.stamp(k)
    for r in range(NR):
        a(f"""
        ds_read_b32 v{32+r}, v6 offset:{P1_HIST+NT//2*r}
        ds_read_b128 v[{40+4*r}:{43+4*r}], v2 offset:{P1_TI+NT*16*r}
        """)
    for r in range(NR):
        if (r + 1) * NT > 2048:
            a(f"""
            s_cmp_ge_u32 s3, {(2048-r*NT)//64}
            s_cbranch_scc1 P1_FIN
            """)
        a(f"""
        s_waitcnt lgkmcnt({2*(NR-r)-1})
        v_cmp_lt_u32 vcc, 32, v{32+r}
        s_waitcnt lgkmcnt({2*(NR-r)-2})
        s_nop 0
        v_cndmask_b32 v{40+4*r}, v{40+4*r}, -2, vcc
        buffer_store_dwordx4 v[{40+4*r}:{43+4*r}], v28, s[48:51], s6 offen {TST}
        s_add_u32 s6, s6, {NT//8*TROW}
        """)
    a.lab("P1_FIN")
    a.stamp(7)
    if OPT["stamp"]:
        a("s_waitcnt vmcnt(0)")
    a.stamp(8)
    a.stamp_flush(9, 48, 16, DBG1_OFF)
    a("s_endpgm")
    a.lab("P1_AUX")
    a(f"""
    v_and_b32 v24, 31, v1
    v_lshrrev_b32 v25, 5, v1
    v_lshlrev_b32 v26, 10, v25
    v_lshl_add_u32 v26, v24, 1, v26
    s_mov_b32 s14, 1.0
    s_waitcnt lgkmcnt(0)
    """)
    a.srd(48, 34, 35, WS_SIZE)
    a.srd(56, 28, 29, 2048 - 64)
    a(f"""
    s_cmp_ge_u32 s2, {NFRAG}
    s_cbranch_scc1 P1_PF
    s_mov_b32 s13, s2
    s_mov_b32 s15, {NLOG2E}
    s_cmp_lt_u32 s2, 34
    s_cbranch_scc1 P1_FL0
    s_mov_b32 s15, 1.0
    s_sub_u32 s13, s2, 34
    s_sub_u32 s5, s2, 26
    s_cmp_ge_u32 s2, 42
    s_cselect_b32 s13, s5, s13
    """)
    a.lab("P1_FL0")
    a(f"""
    s_sub_u32 s5, s13, 2
    s_cmp_ge_u32 s13, 18
    s_cselect_b32 s5, s5, s13
    s_and_b32 s6, s5, 3
    s_lshl_b32 s6, s6, 11
    s_lshr_b32 s7, s5, 2
    s_and_b32 s7, s7, 1
    s_lshl_b32 s7, s7, 6
    s_add_u32 s6, s6, s7
    s_cmp_ge_u32 s13, 8
    s_cbranch_scc1 P1_FL1
    s_add_u32 s6, s6, 8192
    s_mov_b32 s14, s15
    s_branch P1_FL3
    """)
    a.lab("P1_FL1")
    a(f"""
    s_cmp_ge_u32 s13, 16
    s_cbranch_scc1 P1_FL2
    s_mov_b32 s56, s26
    s_mov_b32 s57, s27
    s_branch P1_FL3
    """)
    a.lab("P1_FL2")
    a(f"""
    s_cmp_ge_u32 s13, 26
    s_cselect_b32 s56, s24, s28
    s_cselect_b32 s57, s25, s29
    s_cmp_ge_u32 s13, 18
    s_cbranch_scc1 P1_FL3
    s_mov_b32 s14, s15
    s_and_b32 s6, s13, 1
    s_lshl_b32 s6, s6, 6
    s_add_u32 s6, s6, 16384
    """)
    a.lab("P1_FL3")
    a(f"""
    s_add_u32 s56, s56, s6
    s_addc_u32 s57, s57, 0
    """)
    for jj in range(8):
        a(f"buffer_load_ushort v{40+jj}, v26, s[56:59], 0 offen offset:{jj*128}")
    a("s_waitcnt vmcnt(0)")
    for jj in range(8):
        a(f"v_lshlrev_b32 v{40+jj}, 16, v{40+jj}")
    for jj in range(8):
        a(f"v_mul_f32 v{40+jj}, s14, v{40+jj}")
    for q in range(4):
        a(f"v_cvt_pk_bf16_f32 v{48+q}, v{40+2*q}, v{40+2*q+1}")
    a(f"""
    s_lshl_b32 s6, s2, 10
    s_add_u32 s6, s6, {WF_OFF}
    buffer_store_dwordx4 v[48:51], v4, s[48:51], s6 offen
    s_endpgm
    """)
    a.lab("P1_PF")
    a(f"""
    s_cmp_ge_u32 s2, 80
    s_cbranch_scc1 P1_XM
    s_getpc_b64 s[52:53]
    """)
    a.lab("P1_PC")
    a(f"""
    s_add_u32 s52, s52, p2_kernel-P1_PC
    s_addc_u32 s53, s53, 0
    s_mov_b32 s54, P2_END-p2_kernel
    s_mov_b32 s55, 0x20000
    v_lshlrev_b32 v40, 6, v1
    """)
    for k in range(6):
        a(f"buffer_load_dword v41, v40, s[52:55], 0 offen\nv_add_u32 v40, 0x1000, v40")
    a("s_endpgm")
    a.lab("P1_XM")
    a.srd(36, 16, 17, N * 128)
    a(f"""
    s_sub_u32 s5, s2, 80
    s_lshl_b32 s5, s5, 13
    v_lshlrev_b32 v40, 7, v1
    buffer_load_dword v41, v40, s[36:39], s5 offen
    """)
    a.lab("P1_END")
    a("s_endpgm")
    return a.text()


L_NCNT = 0; L_FLAG = 256; L_WT = 272
L_SRC = 512; L_POS = L_SRC + 16384; L_GT = L_POS + 16384; L_GM = L_GT + 4096; L_EA = L_GM + 4096
NROW = 50
L_ACC = L_EA + NROW * 256
L_XB = L_ACC + 18432
L_HU = L_XB + 65536
L_PX = L_HU + NROW * 256
P2_LDS = L_PX + 8192
assert P2_LDS <= 163840 and L_ACC + 4 < 65536 and (16 + NROW) * 256 <= 18432
SENT = 0x40000000

V_W = 184
V_Z0 = 64; V_H0 = 80; V_Z1 = 96; V_H1 = 112
V_XA = (128, 28); V_EA = (144, 44, 24, 56)
V_G = 148; V_GR = 152; V_EV = 156
V_SL = 164
V_ACC = (168, 52)
V_XR = 172
V_PS = 176
V_AS = 177; V_AP = 178; V_AG = 179
V_N8 = 181; V_H16 = 182; V_N8H = 183
V_K = (180, 10, 11, 12)
V_GE = 60
V_GM = 48
V_RUN = 16
NE = int(OPT["ne"])
LA = int(OPT["la"])


def wfrag(f):
    return f"v[{V_W+4*f}:{V_W+4*f+3}]"


def mf_list(u, Z, H, ph):
    xa = V_XA[ph % 2]; ea = V_EA[ph % NE]
    l = [f"v_mfma_f32_32x32x16_bf16 v[{Z}:{Z+15}], v[{ea}:{ea+3}], {wfrag(16+u)}, 0"]
    for t in range(4):
        l.append(f"v_mfma_f32_32x32x16_bf16 v[{Z}:{Z+15}], v[{xa+4*t}:{xa+4*t+3}], {wfrag(u*4+t)}, v[{Z}:{Z+15}]")
    for t in range(4):
        c = "0" if t == 0 else f"v[{H}:{H+15}]"
        l.append(f"v_mfma_f32_32x32x16_bf16 v[{H}:{H+15}], v[{xa+4*t}:{xa+4*t+3}], {wfrag(8+u*4+t)}, {c}")
    if OPT["mfo"] == "1":
        l = [l[0], l[1], l[5], l[2], l[6], l[3], l[7], l[4], l[8]]
    return l


RAMP_POS = {2: 5, 3: 6, 4: 13, 5: 2}


def body(ph, safe, ramp=False):
    out = []
    par = ph % 2
    npar = 1 - par
    PH = OPT["prio_hi"]; PL = OPT["prio_lo"]
    cnt = [0]
    bunch = OPT["bunch"] == "1"

    def lstamp():
        if OPT["stamp"] == "2" and ph == 1:
            out.append(f"s_memtime s[{64+2*cnt[0]}:{65+2*cnt[0]}]")
            cnt[0] += 1

    def trun(instrs, mf, fill):
        lstamp()
        if PH != PL:
            out.append(f"s_setprio {PH}")
        mf = list(mf)
        for k, x in enumerate(instrs):
            out.append(x)
            if k % 3 == 0 and mf:
                out.append(mf.pop(0))
            elif fill:
                if bunch:
                    out.extend(fill); del fill[:]
                else:
                    out.append(fill.pop(0))
        assert not mf
        if PH != PL:
            out.append(f"s_setprio {PL}")

    def half(u, Z, H, mf, fill, preF, postF, fillR, preM, postM):
        ev = lambda i: V_EV + 2 * (i // 4) + u
        if safe:
            if u == 0:
                out.append(("W", "ev3"))
            out.extend(f"v_fmamk_f32 v{Z+i}, v{Z+i}, {NLOG2E:#x}, v{ev(i)}" for i in range(16))
        trun([f"v_exp_f32 v{Z+i}, v{Z+i}" for i in range(16)], mf[:5], fill)
        lstamp()
        out.extend(preF)
        if safe:
            out.extend(f"v_add_f32 v{Z+i}, 1.0, v{Z+i}" for i in range(16))
        else:
            out.extend(f"v_fma_f32 v{Z+i}, v{Z+i}, v{ev(i)}, 1.0" for i in range(16))
        out.extend(postF)
        fill.extend(fillR)
        trun([f"v_rcp_f32 v{Z+i}, v{Z+i}" for i in range(16)], mf[5:], fill)
        assert not fill, fill
        lstamp()
        out.extend(preM)
        A_ = V_ACC[u]
        for g in range(4):
            out.append(f"v_and_b32 v{A_+g}, v{A_+(g+3)%4}, v{V_GM+g}")
            out.extend(f"v_fmac_f32 v{A_+g}, v{Z+4*g+k}, v{H+4*g+k}" for k in range(4))
        out.extend(postM)

    def accw(u):
        return [("L", f"ds_write_b32 v{V_G+g}, v{V_ACC[u]+g} offset:{L_ACC+4*u}", None) for g in range(4)]

    xa = V_XA[npar]
    def eload(k, reg):
        return [f"s_cmp_gt_u32 s21, {k-ph}", "s_cselect_b32 s58, s18, 0",
                ("M", f"buffer_load_dwordx4 v[{V_EA[k%NE]}:{V_EA[k%NE]+3}], v{reg}, s[56:59], 0 offen {OPT['e_pol']}", f"e{k}")]
    if ramp and ph < LA - 2:
        fill = eload(2 + 2 * ph, RAMP_POS[2 + 2 * ph]) + accw(1)
    else:
        fill = eload(ph + LA, V_PS) + accw(1)
    fill.append(("L", f"ds_read_b128 v[{V_GM}:{V_GM+3}], v{V_AG} offset:{L_GM+16*ph}", "gm"))
    preF = [f"v_add_u32 v{V_G+g}, v{V_GR+g}, v{V_N8H}" for g in range(4)] + ([] if safe else [("W", "ev3")])
    fillR = [("V", (f"x{ph+1}_3", f"e{ph+1}"))] if ramp else [f"s_waitcnt vmcnt({5 if NE == 2 else 6})"]
    for t in range(4):
        fillR.append(("L", f"ds_read_b128 v[{xa+4*t}:{xa+4*t+3}], v{V_XR+t} offset:{npar*4096}", f"xa{t}"))
    fillR += [("L", f"ds_read_b128 v[{V_SL}:{V_SL+3}], v{V_AS} offset:{L_SRC+64*(3+ph)}", "sl"),
              ("L", f"ds_read_b128 v[{V_GR}:{V_GR+3}], v{V_AG} offset:{L_GT+16*(1+ph)}", "gr"),
              ("L", f"ds_read_b32 v{V_PS}, v{V_AP} offset:{L_POS+64*(LA+1+ph)}", "pos"),
              "s_cmp_gt_u32 s21, 3", "s_cselect_b32 s38, s19, 0", f"s_add_u32 m0, s20, {npar*4096}"]
    postM = [("W", "sl")] + [f"v_or_b32 v{V_SL+j}, v{V_SL+j}, v{V_K[j]}" for j in range(4)]
    half(0, V_Z0, V_H0, mf_list(1, V_Z1, V_H1, ph), fill, preF, [], fillR, [("W", "gm")], postM)
    fill = []
    aw = accw(0)
    for j in range(4):
        fill.append(("M", f"buffer_load_dwordx4 v{V_SL+j}, s[36:39], 0 offen {OPT['x_pol']} lds", f"x{ph+3}_{j}"))
        if j < 3:
            fill.append(f"s_add_u32 m0, s20, {npar*4096+(j+1)*1024}")
        fill.append(aw[j])
    if ramp and ph < LA - 2:
        fill += eload(3 + 2 * ph, RAMP_POS[3 + 2 * ph])
    postF = [("W", "pos")] + [f"v_add_u32 v{V_GE+g}, v{V_GR+g}, v{V_N8}" for g in range(4)]
    postF.append(f"v_add_u32 v{V_PS}, v{V_PS}, v{V_H16}")
    fillR = [("L", f"ds_read_b64 v[{V_EV+2*g}:{V_EV+2*g+1}], v{V_GE+g} offset:{L_EA}", f"ev{g}") for g in range(4)]
    half(1, V_Z1, V_H1, mf_list(0, V_Z0, V_H0, ph + 1), fill, [], postF, fillR, [], [])
    lstamp()
    if "nomfma" in OPT["abl"]:
        out = [x for x in out if not (isinstance(x, str) and "mfma" in x)]
    if "novalu" in OPT["abl"]:
        out = [x for x in out if not (isinstance(x, str) and any(k in x for k in ("v_exp", "v_rcp", "v_fma", "v_fmac")))]
    return out


def instrument(items):
    out = []
    for x in items:
        acc = None
        if isinstance(x, str):
            if x.startswith("s_waitcnt vmcnt"): acc = 70
            elif x.startswith("buffer_load") and "lds" not in x: acc = 71
            elif x.startswith("buffer_load"): acc = 72
        if acc:
            out += ["s_memtime s[64:65]", "s_waitcnt lgkmcnt(0)", x, "s_memtime s[66:67]", "s_waitcnt lgkmcnt(0)",
                    "s_sub_u32 s68, s66, s64", f"s_add_u32 s{acc+2*(acc-70)+4-0 if False else {70:70,71:72,72:74}[acc]}, s{ {70:70,71:72,72:74}[acc] }, s68"]
        else:
            out.append(x)
    return out


def resolve(prev, cur, vm=None):
    seq = prev + cur
    res = []
    for i, x in enumerate(seq):
        if i < len(prev):
            continue
        if isinstance(x, str):
            res.append(x)
        elif x[0] == "L":
            res.append(x[1])
        elif x[0] == "M":
            res.append(x[1])
            if vm is not None:
                vm.append(x[2])
        elif x[0] == "V":
            last = max(vm.index(t) for t in x[1])
            res.append(f"s_waitcnt vmcnt({len(vm)-1-last})")
        else:
            n = 0
            k = i - 1
            while not (isinstance(seq[k], tuple) and seq[k][0] == "L" and seq[k][2] == x[1]):
                if isinstance(seq[k], tuple) and seq[k][0] == "L":
                    n += 1
                k -= 1
                assert k >= 0, x
            res.append(f"s_waitcnt lgkmcnt({min(n, 15)})")
    return res


def eld(a, k):
    a(f"""
    s_cmp_gt_u32 s21, {k}
    s_cselect_b32 s58, s18, 0
    v_add_u32 v{V_GE+k}, v{V_GE+k}, v{V_H16}
    buffer_load_dwordx4 v[{V_EA[k]}:{V_EA[k]+3}], v{V_GE+k}, s[56:59], 0 offen {OPT['e_pol']}
    """)


def gen_fill1(a, part):
    if part == 0:
        a(f"""
        ds_read_b128 v[{V_SL}:{V_SL+3}], v{V_AS} offset:{L_SRC}
        ds_read_b32 v{V_GE}, v{V_AP} offset:{L_POS}
        ds_read_b32 v{V_GE+1}, v{V_AP} offset:{L_POS+64}
        ds_read_b128 v[{V_ACC[0]}:{V_ACC[0]+3}], v{V_AS} offset:{L_SRC+64}
        s_waitcnt lgkmcnt(2)
        """)
        eld(a, 0)
        xld(a, 0, V_SL, 0)
        a(f"ds_read_b128 v[{V_SL}:{V_SL+3}], v{V_AS} offset:{L_SRC+128}")
    elif part == 1:
        eld(a, 1)
        xld(a, 1, V_ACC[0], 1)


def xld(a, b, vb, k):
    a(f"s_cmp_gt_u32 s21, {k}\ns_cselect_b32 s38, s19, 0")
    for j in range(4):
        a(f"""
        s_add_u32 m0, s20, {b*4096+j*1024}
        v_or_b32 v{vb+j}, v{vb+j}, v{V_K[j]}
        buffer_load_dwordx4 v{vb+j}, s[36:39], 0 offen {OPT['x_pol']} lds
        """)


def gen_fill2(a):
    xa = V_XA[0]
    a(f"ds_read_b128 v[{V_GR}:{V_GR+3}], v{V_AG} offset:{L_GT}")
    for k, r in RAMP_POS.items():
        a(f"ds_read_b32 v{r}, v{V_AP} offset:{L_POS+64*k}")
    a(f"""
    v_mov_b32 v{V_ACC[0]+3}, 0
    v_mov_b32 v{V_ACC[1]+3}, 0
    s_waitcnt vmcnt(5)
    """)
    for t in range(4):
        a(f"ds_read_b128 v[{xa+4*t}:{xa+4*t+3}], v{V_XR+t}")
    a("s_waitcnt lgkmcnt(4)")
    for g in range(4):
        a(f"""
        v_add_u32 v{V_GE+g}, v{V_GR+g}, v{V_N8}
        v_add_u32 v{V_G+g}, v{V_GR+g}, v{V_N8H}
        ds_read_b64 v[{V_EV+2*g}:{V_EV+2*g+1}], v{V_GE+g} offset:{L_EA}
        """)
    for k, r in RAMP_POS.items():
        a(f"v_add_u32 v{r}, v{r}, v{V_H16}")
    a("s_waitcnt lgkmcnt(4)")
    for m in mf_list(0, V_Z0, V_H0, 0):
        a(m)
    xld(a, 0, V_SL, 2)
    a("s_waitcnt lgkmcnt(0)\ns_nop 3")


def loop_tail(a, tag, last):
    if OPT["stamp"] == "6":
        a("s_memrealtime s[64:65]\ns_waitcnt lgkmcnt(0)\ns_mov_b32 m0, s66\ns_nop 3\nv_writelane_b32 v9, s64, m0\ns_add_u32 s66, s66, 1")
    if not last:
        a(f"""
        s_sub_u32 s21, s21, 1
        s_cmp_eq_u32 s21, 0
        s_cbranch_scc1 P2_FLUSH
        """)
    else:
        a(f"""
        v_add_u32 v{V_AS}, {64*NE}, v{V_AS}
        v_add_u32 v{V_AP}, {64*NE}, v{V_AP}
        v_add_u32 v{V_AG}, {16*NE}, v{V_AG}
        s_sub_u32 s21, s21, 1
        s_cmp_lg_u32 s21, 0
        s_cbranch_scc1 P2_LOOP{tag}
        s_branch P2_FLUSH
        """)


def gen_loop(a, safe, tag):
    bs = [body(p, safe) for p in range(NE)]
    if safe:
        a.lab("P2_SAFE")
        for k in range(2, LA):
            a(f"""
            s_cmp_gt_u32 s21, {k}
            s_cselect_b32 s58, s18, 0
            buffer_load_dwordx4 v[{V_EA[k]}:{V_EA[k]+3}], v{RAMP_POS[k]}, s[56:59], 0 offen
            """)
        a(f"v_mov_b32 v{V_PS}, v{RAMP_POS[LA]}\ns_waitcnt vmcnt(0)")
    else:
        rb = [body(p, safe, ramp=True) for p in range(NE)]
        vm = ["e0"] + [f"x0_{j}" for j in range(4)] + ["e1"] + [f"x1_{j}" for j in range(4)] + [f"x2_{j}" for j in range(4)]
        for p in range(NE):
            for x in resolve(rb[p - 1], rb[p], vm):
                a(x)
            loop_tail(a, tag, p == NE - 1)
    a.lab(f"P2_LOOP{tag}")
    for p in range(NE):
        rs = resolve(bs[p - 1], bs[p])
        if OPT["stamp"] == "4":
            rs = instrument(rs)
        for x in rs:
            a(x)
        loop_tail(a, tag, p == NE - 1)


def gen_p2():
    a = A()
    VT = 64
    VP = 84
    VR = 104
    VD = 124
    VE = 144
    VF = 200
    VX = 216
    VAP = 184
    a.lab("p2_kernel")
    a(f"""
    s_cmp_ge_u32 s2, {NB}
    s_cbranch_scc1 P2_END
    """)
    a.stamp(0)
    a.stamp3(0)
    if OPT["cpf2"] != "0":
        a("s_getpc_b64 s[52:53]")
        a.lab("P2_PC")
        a(f"""
        s_mov_b32 s54, P2_END-P2_PC
        s_mov_b32 s55, 0x20000
        v_lshlrev_b32 v28, 7, v0
        buffer_load_dword v29, v28, s[52:55], 0 offen
        """)
    a(f"""
    s_load_dwordx4 s[16:19], s[0:1], 0
    s_load_dwordx4 s[28:31], s[0:1], 16
    s_load_dwordx2 s[12:13], s[0:1], 56
    s_load_dwordx2 s[34:35], s[0:1], 72
    s_and_b32 s4, s2, 7
    s_lshl_b32 s4, s4, 5
    s_lshr_b32 s5, s2, 3
    s_add_u32 s4, s4, s5
    v_and_b32 v1, 63, v0
    v_lshrrev_b32 v5, 6, v0
    v_lshlrev_b32 v3, 4, v0
    v_lshlrev_b32 v4, 2, v0
    v_readfirstlane_b32 s3, v5
    s_mul_i32 s8, s4, {TROW}
    s_add_u32 s8, s8, {T_OFF}
    s_mul_i32 s6, s4, {NPB*128}
    v_and_b32 v56, 31, v1
    v_lshrrev_b32 v57, 5, v1
    v_and_b32 v58, 7, v1
    v_lshlrev_b32 v59, 2, v57
    v_xor_b32 v58, v58, v59
    v_lshlrev_b32 v{V_K[0]}, 4, v58
    s_waitcnt lgkmcnt(0)
    """)
    a.stamp3(1)
    a.srd(40, 34, 35, WS_SIZE)
    for k in range(NK):
        a(f"buffer_load_dwordx4 v[{VT+4*k}:{VT+4*k+3}], v3, s[40:43], s8 offen {OPT['t_ld']}\ns_add_u32 s8, s8, 8192")
    a.srd(36, 16, 17, N * 128)
    a.srd(56, 18, 19, E * 32)
    if OPT["epf2"] != "0":
        f1 = 625 * int(OPT["epf1"]) // 8
        a(f"""
        v_add_u32 v60, {f1}, v0
        v_cmp_gt_u32 vcc, 625, v60
        v_lshlrev_b32 v60, 7, v60
        s_mul_i32 s9, s2, {CH*32}
        s_mov_b64 exec, vcc
        buffer_load_dword v61, v60, s[56:59], s9 offen {OPT['epf_pol']}
        s_add_u32 s9, s9, {256*CH*32}
        buffer_load_dword v61, v60, s[56:59], s9 offen {OPT['epf_pol']}
        s_mov_b64 exec, -1
        """)
    if OPT["xpf"] == "2":
        a(f"""
        s_mul_i32 s9, s5, {391*128}
        v_lshlrev_b32 v26, 7, v0
        v_cmp_gt_u32 vcc, 391, v0
        s_mov_b64 exec, vcc
        buffer_load_dword v28, v26, s[36:39], s9 offen
        s_mov_b64 exec, -1
        """)
    a(f"""
    s_add_u32 s44, s12, s6
    s_addc_u32 s45, s13, 0
    s_sub_u32 s46, {N*128}, s6
    s_min_u32 s46, s46, {NPB*128}
    s_mov_b32 s47, 0x20000
    s_mov_b32 s19, {0 if "nox" in OPT["abl"] else N*128}
    s_mov_b32 s18, {0 if "noe" in OPT["abl"] else E*32}
    """)
    NLD = 0
    a.stamp3(2)
    a(f"""
    s_lshl_b32 s20, s3, 13
    s_add_u32 s20, s20, {L_XB}
    v_lshlrev_b32 v{V_N8}, 3, v56
    v_lshlrev_b32 v{V_H16}, 4, v57
    v_lshrrev_b32 v58, 5, v0
    v_lshl_add_u32 v{V_N8H}, v58, 8, v{V_N8}
    v_xor_b32 v{V_K[1]}, 16, v{V_K[0]}
    v_xor_b32 v{V_K[2]}, 32, v{V_K[0]}
    v_xor_b32 v{V_K[3]}, 48, v{V_K[0]}
    v_and_b32 v58, 3, v56
    v_lshrrev_b32 v59, 2, v56
    v_lshl_add_u32 v59, v58, 3, v59
    v_lshlrev_b32 v59, 7, v59
    v_add_u32 v59, s20, v59
    v_lshrrev_b32 v60, 4, v56
    v_lshl_add_u32 v58, v60, 2, v58
    v_xor_b32 v58, v58, v57
    """)
    for t in range(4):
        a(f"""
        v_xor_b32 v60, {2*t}, v58
        v_lshl_add_u32 v{V_XR+t}, v60, 4, v59
        """)
    for k in range(8):
        a(f"v_mov_b32 v{V_RUN+k}, 0")
    a(f"""
    ds_write_b32 v{V_RUN}, v{V_RUN} offset:{L_FLAG}
    s_mov_b32 s23, 0
    s_mov_b32 s24, 0
    s_mov_b32 s25, 0
    s_mov_b32 s15, 0
    """)
    a.lab("P2_ROUND")
    a(f"""
    v_mov_b32 v32, {SENT}
    v_mov_b32 v33, {SENT}
    v_mov_b32 v34, {SENT}
    v_mov_b32 v35, {SENT}
    ds_write_b128 v3, v[32:35] offset:{L_SRC}
    ds_write_b128 v3, v[32:35] offset:{L_SRC+8192}
    ds_write_b128 v3, v[32:35] offset:{L_POS}
    ds_write_b128 v3, v[32:35] offset:{L_POS+8192}
    v_mov_b32 v36, {(NROW-1)*256}
    v_mov_b32 v37, {(NROW-1)*256}
    v_lshlrev_b32 v40, 3, v0
    ds_write_b64 v40, v[36:37] offset:{L_GT}
    v_mov_b32 v38, -1
    v_mov_b32 v39, -1
    ds_write_b64 v40, v[38:39] offset:{L_GM}
    v_mov_b32 v41, 0
    v_and_b32 v42, 0xfc, v4
    ds_write_b32 v42, v41 offset:{L_NCNT}
    v_mov_b32 v43, 1
    s_cmp_lg_u32 s24, 0
    s_cbranch_scc1 P2_SLOW
    """)
    a(f"""
    v_lshrrev_b32 v44, 3, v0
    v_mul_u32_u24 v13, {CH}, v44
    """)
    a.stamp3(3)
    a("s_waitcnt lgkmcnt(0)\ns_barrier")
    a.stamp3(4)
    for k in range(NK):
        a(f"s_waitcnt vmcnt({NK-1-k+(2 if OPT['epf2'] != '0' else 0)+(1 if OPT['xpf'] == '2' else 0)})")
        if k == 0:
            a.stamp(1)
        if k < 4:
            a.stamp3(5 + k)
        a(f"""
        v_cmp_eq_u32 vcc, -2, v{VT+4*k}
        s_cbranch_vccz P2_NOOVF{k}
        ds_or_b32 v41, v43 offset:{L_FLAG}
        s_branch P2_A_LD
        """)
        a.lab(f"P2_NOOVF{k}")
        for pos in range(4):
            j = 4 * k + pos
            a(f"v_cmpx_ne_u32 vcc, -1, v{VT+j}")
            if pos >= 2:
                a(f"s_cbranch_execz P2_A{k}")
            a(f"""
            v_bfe_u32 v{VD+j}, v{VT+j}, 14, 6
            v_lshlrev_b32 v{VD+j}, 2, v{VD+j}
            ds_add_rtn_u32 v{VR+j}, v{VD+j}, v43 offset:{L_NCNT}
            v_lshrrev_b32 v{VP+j}, 20, v{VT+j}
            v_add_lshl_u32 v{VP+j}, v{VP+j}, v13, 5
            v_and_b32 v{VE+j}, 0x3fff, v{VT+j}
            v_lshlrev_b32 v{VE+j}, 7, v{VE+j}
            """)
        a.lab(f"P2_A{k}")
        a(f"""
        s_mov_b64 exec, -1
        v_add_u32 v13, {64*CH}, v13
        """)
    a.lab("P2_A_LD")
    a("s_mov_b64 exec, -1")
    if OPT["xpf"] == "1":
        a(f"""
        s_mul_i32 s9, s5, {391*128}
        v_lshlrev_b32 v26, 7, v0
        v_cmp_gt_u32 vcc, 391, v0
        s_mov_b64 exec, vcc
        buffer_load_dword v28, v26, s[36:39], s9 offen
        s_mov_b64 exec, -1
        """)
    a(f"""
    s_and_b32 s9, s3, 3
    s_lshl_b32 s10, s9, 4
    v_xor_b32 v26, s10, v{V_K[0]}
    v_lshrrev_b32 v27, 3, v1
    v_lshl_add_u32 v26, v27, 9, v26
    s_lshr_b32 s10, s3, 2
    s_lshl_b32 s10, s10, 12
    s_lshl_b32 s11, s9, 7
    s_add_u32 s10, s10, s11
    s_add_u32 s10, s10, s6
    s_lshl_b32 s11, s3, 10
    s_add_u32 m0, s11, {L_PX}
    v_lshlrev_b32 v27, 4, v1
    buffer_load_dwordx4 v26, s[36:39], s10 offen lds
    s_add_u32 m0, s11, {L_ACC}
    s_add_u32 s10, s11, {WF_OFF}
    buffer_load_dwordx4 v27, s[40:43], s10 offen lds
    s_add_u32 m0, s11, {L_ACC+8192}
    s_add_u32 s10, s11, {WF_OFF+8192}
    buffer_load_dwordx4 v27, s[40:43], s10 offen lds
    s_and_b32 s11, s11, 0x400
    s_add_u32 m0, s11, {L_ACC+16384}
    s_add_u32 s10, s11, {WF_OFF+16384}
    buffer_load_dwordx4 v27, s[40:43], s10 offen lds
    s_lshl_b32 s9, s9, 12
    s_add_u32 s9, s9, {WF_OFF+18*1024}
    """)
    for t in range(4):
        a(f"buffer_load_dwordx4 v[{VF+4*t}:{VF+4*t+3}], v27, s[40:43], s9 offen offset:{1024*t}")
    a("s_branch P2_A_DONE")
    QCAP = 512 * JS
    a.lab("P2_SLOW")
    a.srd(48, 30, 31, E * 4)
    a.srd(52, 28, 29, E * 4)
    a(f"""
    ds_write_b32 v41, v41 offset:{L_WT}
    s_mul_i32 s26, s4, {NPB}
    v_mov_b32 v13, {L_XB}
    s_waitcnt lgkmcnt(0)
    s_barrier
    """)
    a.lab("P2_SCAN")
    a(f"""
    s_lshl_b32 s10, s23, 2
    v_add_u32 v45, s23, v0
    buffer_load_dword v44, v4, s[48:51], s10 offen
    v_cmp_gt_u32 vcc, {E}, v45
    s_mov_b64 s[10:11], vcc
    s_waitcnt vmcnt(0)
    v_subrev_u32 v44, s26, v44
    v_cmp_gt_u32 vcc, {NPB}, v44
    s_and_b64 exec, vcc, s[10:11]
    ds_add_rtn_u32 v46, v41, v43 offset:{L_WT}
    s_waitcnt lgkmcnt(0)
    v_lshl_add_u32 v46, v46, 2, v13
    ds_write_b32 v46, v45
    s_mov_b64 exec, -1
    s_add_u32 s23, s23, 512
    s_waitcnt lgkmcnt(0)
    s_barrier
    ds_read_b32 v46, v41 offset:{L_WT}
    s_waitcnt lgkmcnt(0)
    v_readfirstlane_b32 s27, v46
    s_barrier
    s_cmp_gt_u32 s27, {QCAP-512}
    s_cbranch_scc1 P2_SCAN_DONE
    s_cmp_lt_u32 s23, {E}
    s_cbranch_scc1 P2_SCAN
    """)
    a.lab("P2_SCAN_DONE")
    for j in range(4 * NK):
        a(f"v_mov_b32 v{VT+j}, -1")
    a(f"v_add_u32 v47, {L_XB}, v4")
    for j in range(JS):
        a(f"""
        v_add_u32 v44, {512*j}, v0
        v_cmp_gt_u32 vcc, s27, v44
        s_and_saveexec_b64 s[10:11], vcc
        s_cbranch_execz P2_A_DONE
        ds_read_b32 v45, v47 offset:{2048*j}
        s_waitcnt lgkmcnt(0)
        v_lshlrev_b32 v46, 2, v45
        buffer_load_dword v{VD+j}, v46, s[48:51], 0 offen
        buffer_load_dword v{VE+j}, v46, s[52:55], 0 offen
        v_lshlrev_b32 v{VP+j}, 5, v45
        v_mov_b32 v{VT+j}, 0
        s_waitcnt vmcnt(0)
        v_subrev_u32 v{VD+j}, s26, v{VD+j}
        v_lshlrev_b32 v{VD+j}, 2, v{VD+j}
        ds_add_rtn_u32 v{VR+j}, v{VD+j}, v43 offset:{L_NCNT}
        v_lshlrev_b32 v{VE+j}, 7, v{VE+j}
        """)
    a.lab("P2_A_DONE")
    a("s_mov_b64 exec, -1")
    a.stamp3(9)
    a(f"""
    v_lshlrev_b32 v44, 2, v1
    s_waitcnt lgkmcnt(0)
    s_barrier
    """)
    a.stamp3(10)
    a.stamp(2)
    a(f"""
    ds_read_b32 v45, v44 offset:{L_NCNT}
    ds_read_b32 v47, v41 offset:{L_FLAG}
    s_waitcnt lgkmcnt(0)
    v_add_u32 v32, 3, v45
    v_and_b32 v32, -4, v32
    v_mov_b32 v33, v32
    v_readfirstlane_b32 s14, v47
    """)
    a.wave_scan(33)
    a(f"""
    s_nop 0
    v_readlane_b32 s12, v33, 63
    v_add_u32 v34, -1, v33
    v_sub_u32 v33, v33, v32
    s_cmp_lg_u32 s24, 0
    s_cbranch_scc1 P2_CHK_DONE
    s_and_b32 s14, s14, 1
    s_cmp_gt_u32 s12, {SLOTS}
    s_cselect_b32 s14, 1, s14
    s_cmp_eq_u32 s14, 0
    s_cbranch_scc1 P2_CHK_DONE
    """)
    a(f"""
    s_mov_b32 s24, {E}
    s_waitcnt vmcnt(0)
    s_barrier
    s_branch P2_ROUND
    """)
    a.lab("P2_CHK_DONE")
    for k in range(NK):
        for pos in range(4):
            j = 4 * k + pos
            if pos == 2:
                a(f"v_cmp_ne_u32 vcc, -1, v{VT+j}\ns_cbranch_vccz P2_B1_{k}")
            a(f"ds_bpermute_b32 v{VD+j}, v{VD+j}, v33")
        a.lab(f"P2_B1_{k}")
    a(f"""
    s_add_u32 s12, s12, 31
    s_lshr_b32 s12, s12, 5
    s_add_u32 s21, s12, 7
    s_sub_u32 s21, s21, s3
    s_lshr_b32 s21, s21, 3
    s_lshr_b32 s13, s12, 3
    s_and_b32 s14, s12, 7
    """)
    a(f"""
    s_mul_i32 s10, s3, s13
    s_min_u32 s11, s3, s14
    s_add_u32 s10, s10, s11
    s_lshl_b32 s10, s10, 7
    s_lshl_b32 s11, s21, 6
    v_bfe_u32 v53, v1, 3, 1
    v_mul_u32_u24 v53, s11, v53
    v_lshrrev_b32 v54, 4, v1
    v_lshl_add_u32 v53, v54, 4, v53
    v_add_u32 v{V_AS}, s10, v53
    v_bfe_u32 v53, v1, 2, 1
    v_mul_u32_u24 v53, s11, v53
    v_bfe_u32 v54, v1, 3, 2
    v_lshl_add_u32 v53, v54, 4, v53
    v_and_b32 v54, 3, v1
    v_lshl_add_u32 v53, v54, 2, v53
    v_add_u32 v{V_AP}, s10, v53
    v_lshrrev_b32 v53, 5, v1
    v_mul_u32_u24 v53, s11, v53
    v_add_u32 v53, s10, v53
    v_lshrrev_b32 v{V_AG}, 2, v53
    s_waitcnt lgkmcnt(0)
    """)
    a.stamp3(11)
    for k in range(NK):
        for pos in range(4):
            j = 4 * k + pos
            a(f"v_cmpx_ne_u32 vcc, -1, v{VT+j}")
            if pos >= 2:
                a(f"s_cbranch_execz P2_B2_{k}")
            a(f"""
            v_add_lshl_u32 v{VR+j}, v{VR+j}, v{VD+j}, 2
            ds_write2st64_b32 v{VR+j}, v{VE+j}, v{VP+j} offset0:{L_SRC//256} offset1:{L_POS//256}
            """)
        a.lab(f"P2_B2_{k}")
        a("s_mov_b64 exec, -1")
    a.stamp3(12)
    a.stamp(3)
    a("s_waitcnt vmcnt(0) lgkmcnt(0)")
    a.stamp(4)
    a("s_barrier")
    a.stamp(5)
    a.stamp3(13)
    if OPT["stamp"] == "1":
        a("s_memtime s[82:83]\ns_mov_b32 s86, s21")
    if OPT["stamp"] == "2":
        a("s_memtime s[84:85]\ns_memrealtime s[88:89]")
    if "nomain" in OPT["abl"]:
        a("s_mov_b32 s21, 0")
    a.stamp5(0)
    if OPT["stamp"] == "6":
        a("s_memrealtime s[64:65]\ns_waitcnt lgkmcnt(0)\nv_writelane_b32 v9, s64, 0")
    gen_fill1(a, 0)
    a.stamp5(1)
    a(f"""
    s_lshl_b32 s10, s3, 2
    v_add_u32 v64, s10, v33
    v_add_u32 v65, v33, v32
    v_lshlrev_b32 v66, 8, v1
    s_cmp_eq_u32 s3, 0
    s_cselect_b32 s11, 0, -1
    v_mov_b32 v67, s11
    """)
    a.lab("P2_G_L")
    a(f"""
    v_cmpx_lt_u32 vcc, v64, v65
    s_cbranch_execz P2_G_DONE
    ds_write2st64_b32 v64, v66, v67 offset0:{L_GT//256} offset1:{L_GM//256}
    v_add_u32 v64, 32, v64
    v_mov_b32 v67, -1
    s_branch P2_G_L
    """)
    a.lab("P2_G_DONE")
    a("s_mov_b64 exec, -1")
    a(f"""
    s_cmp_lg_u32 s25, 0
    s_cbranch_scc1 P2_PREP_A
    s_lshr_b32 s9, s3, 2
    s_lshl_b32 s10, s9, 12
    s_add_u32 s10, s10, {L_PX}
    s_sub_u32 s10, s10, s20
    """)
    for t in range(4):
        a(f"""
        v_add_u32 v{64+t}, s10, v{V_XR+t}
        ds_read_b128 v[{VX+4*t}:{VX+4*t+3}], v{64+t}
        """)
    a(f"""
    s_lshl_b32 s9, s9, 13
    s_and_b32 s10, s3, 1
    s_lshl_b32 s10, s10, 2
    s_add_u32 s9, s9, s10
    v_lshl_add_u32 v2, v{V_H16}, 6, v{V_N8}
    v_add_u32 v2, s9, v2
    s_waitcnt lgkmcnt(0)
    """)
    for t in range(4):
        c = "0" if t == 0 else f"v[{VAP}:{VAP+15}]"
        a(f"v_mfma_f32_32x32x16_bf16 v[{VAP}:{VAP+15}], v[{VX+4*t}:{VX+4*t+3}], v[{VF+4*t}:{VF+4*t+3}], {c}")
    a.lab("P2_PREP_A")
    a(f"""
    s_add_u32 s10, s13, 1
    s_mul_i32 s11, s14, s10
    s_lshl_b32 s11, s11, 1
    v_cvt_f32_u32 v68, s10
    v_cvt_f32_u32 v69, s13
    v_rcp_f32 v68, v68
    v_rcp_f32 v69, v69
    s_lshl_b32 s10, s14, 1
    v_lshrrev_b32 v64, 4, v33
    v_bfe_u32 v65, v34, 4, 9
    """)
    for v in (64, 65):
        a(f"""
        v_cmp_gt_u32 vcc, s11, v{v}
        v_subrev_u32 v70, s11, v{v}
        s_nop 0
        v_cndmask_b32 v70, v70, v{v}, vcc
        v_cndmask_b32 v71, v69, v68, vcc
        v_cvt_f32_u32 v70, v70
        v_add_f32 v70, 0.5, v70
        v_mul_f32 v70, v70, v71
        v_cvt_u32_f32 v70, v70
        v_add_u32 v71, s10, v70
        v_cndmask_b32 v{v}, v71, v70, vcc
        """)
    a(f"""
    v_sub_u32 v65, v65, v64
    v_add_u32 v65, 1, v65
    v_cmp_ne_u32 vcc, 0, v32
    v_lshrrev_b32 v66, 4, v0
    v_lshlrev_b32 v66, 2, v66
    v_cndmask_b32 v65, 0, v65, vcc
    v_and_b32 v64, 15, v64
    v_lshl_or_b32 v65, v64, 8, v65
    v_add_u32 v67, 128, v66
    ds_bpermute_b32 v7, v66, v65
    ds_bpermute_b32 v8, v67, v65
    s_cmp_lg_u32 s25, 0
    s_cbranch_scc1 P2_PREP_SKIP
    s_bitcmp1_b32 s3, 1
    s_cbranch_scc1 P2_HU
    """)

    def dwrites(base):
        a("s_cmp_ge_u32 s3, 4\ns_cbranch_scc1 " + f"P2_DW1_{base}")
        for i in range(16):
            a(f"ds_write_b32 v2, v{VAP+i} offset:{base+(8*(i//4)+i%4)*256}")
        a(f"s_branch P2_DW2_{base}")
        a.lab(f"P2_DW1_{base}")
        for i in range(8):
            a(f"ds_write_b32 v2, v{VAP+i} offset:{base+(8*(i//4)+i%4)*256}")
        a("s_mov_b32 exec_hi, 0")
        for i in (8, 9):
            a(f"ds_write_b32 v2, v{VAP+i} offset:{base+(8*(i//4)+i%4)*256}")
        a("s_mov_b64 exec, -1")
        a.lab(f"P2_DW2_{base}")

    for i in range(16):
        a(f"v_mul_f32 v{VAP+i}, {NLOG2E:#x}, v{VAP+i}")
    a(f"v_max3_f32 v64, abs(v{VAP}), abs(v{VAP+1}), abs(v{VAP+2})")
    for i in range(3, 15, 2):
        a(f"v_max3_f32 v64, abs(v{VAP+i}), abs(v{VAP+i+1}), v64")
    a(f"""
    v_max_f32 v64, abs(v{VAP+15}), v64
    v_mov_b32 v65, 0x41000000
    v_cmp_lt_f32 s[10:11], v65, v64
    """)
    for i in range(0, 16, 2):
        a(f"""
        v_cmp_u_f32 vcc, v{VAP+i}, v{VAP+i+1}
        s_or_b64 s[10:11], s[10:11], vcc
        """)
    a(f"""
    s_cmp_eq_u64 s[10:11], 0
    s_cbranch_scc1 P2_EA_W
    v_mov_b32 v65, 2
    ds_or_b32 v41, v65 offset:{L_FLAG}
    s_branch P2_EA_W
    """)
    a.lab("P2_HU")
    a(f"v_add_u32 v2, {L_HU}, v2")
    for i in range(16):
        a(f"v_cvt_pk_bf16_f32 v{VAP+i}, v{VAP+i}, v{VAP+i}")
    for i in range(16):
        a(f"v_and_b32 v{VAP+i}, 0xffff0000, v{VAP+i}")
    dwrites(0)
    a.lab("P2_EA_W")
    a(f"""
    v_lshlrev_b32 v64, 4, v1
    v_add_u32 v64, {L_ACC}, v64
    """)
    for f in range(4, 18):
        a(f"ds_read_b128 {wfrag(f)}, v64 offset:{1024*f}")
    a.stamp5(2)
    a(f"""
    s_waitcnt lgkmcnt(0)
    s_barrier
    ds_read_b32 v65, v41 offset:{L_FLAG}
    """)
    a.stamp5(3)
    if OPT['fsplit'] == '1':
        gen_fill1(a, 1)
    a.stamp5(4)
    a(f"""
    s_waitcnt lgkmcnt(0)
    v_readfirstlane_b32 s15, v65
    s_lshr_b32 s15, s15, 1
    s_bitcmp1_b32 s3, 1
    s_cbranch_scc1 P2_EA3
    s_cmp_lg_u32 s15, 0
    s_cbranch_scc1 P2_EA2_W
    """)
    for k in range(16):
        a(f"v_exp_f32 v{VAP+k}, v{VAP+k}")
    a("s_nop 0")
    a.lab("P2_EA2_W")
    dwrites(L_EA)
    a.lab("P2_EA3")
    for f in range(4):
        a(f"ds_read_b128 {wfrag(f)}, v64 offset:{1024*f}")
    a(f"""
    s_cmp_eq_u32 s15, 0
    s_cbranch_scc1 P2_EA4
    s_waitcnt lgkmcnt(0)
    v_lshlrev_b32 v65, 4, v1
    s_mov_b32 s9, {WF_OFF+34*1024}
    """)
    for k, f in enumerate(list(range(8)) + [16, 17]):
        a(f"buffer_load_dwordx4 {wfrag(f)}, v65, s[40:43], s9 offen\ns_add_u32 s9, s9, 1024")
    a("s_waitcnt vmcnt(0)")
    a.lab("P2_EA4")
    a("s_mov_b32 s25, 1")
    a("s_branch P2_PREP_DONE")
    a.lab("P2_PREP_SKIP")
    if OPT['fsplit'] == '1':
        a("s_waitcnt lgkmcnt(0)")
        gen_fill1(a, 1)
    a.lab("P2_PREP_DONE")
    a.stamp5(5)
    a(f"""
    s_waitcnt lgkmcnt(0)
    s_barrier
    """)
    a.stamp5(6)
    a.stamp5(7)
    a.stamp3(14)
    a(f"""
    s_cmp_eq_u32 s21, 0
    s_cbranch_scc1 P2_MAIN_DONE
    """)
    gen_fill2(a)
    if OPT["stamp"] == "6":
        a("s_memrealtime s[64:65]\ns_waitcnt lgkmcnt(0)\nv_writelane_b32 v9, s64, 1\ns_mov_b32 s66, 2")
    a.stamp(14)
    if OPT["stamp"] == "4":
        a("s_mov_b32 s70, 0\ns_mov_b32 s72, 0\ns_mov_b32 s74, 0\ns_memtime s[76:77]\ns_mov_b32 s80, s21")
    a(f"""
    s_cmp_lg_u32 s15, 0
    s_cbranch_scc1 P2_SAFE
    """)
    gen_loop(a, False, "F")
    gen_loop(a, True, "S")
    a.lab("P2_FLUSH")
    for g in range(4):
        a(f"ds_write_b32 v{V_G+g}, v{V_ACC[1]+g} offset:{L_ACC+4}")
    a.lab("P2_MAIN_DONE")
    if OPT["stamp"] == "2":
        a("s_memtime s[86:87]\ns_memrealtime s[90:91]")
    if OPT["stamp"] == "4":
        a("s_memtime s[78:79]")
    a.stamp(6)
    if OPT["stamp"] == "1":
        a("s_memtime s[84:85]\ns_getreg_b32 s88, hwreg(HW_REG_HW_ID)\ns_getreg_b32 s90, hwreg(HW_REG_XCC_ID)")
    a(f"""
    s_waitcnt vmcnt(0) lgkmcnt(0)
    s_barrier
    """)
    a.stamp(7)
    for h in range(2):
        a(f"""
        v_and_b32 v24, 0xff, v{7+h}
        v_and_b32 v25, 0xff00, v{7+h}
        v_add_u32 v25, v25, v3
        v_add_u32 v25, {L_ACC+8192*h}, v25
        """)
        a.lab(f"P2_FOLD{h}")
        a(f"""
        v_cmpx_lt_u32 vcc, 0, v24
        s_cbranch_execz P2_FOLD_DONE{h}
        ds_read_b128 v[32:35], v25
        v_add_u32 v24, -1, v24
        v_add_u32 v25, 0x100, v25
        s_waitcnt lgkmcnt(0)
        v_add_f32 v{V_RUN+4*h}, v{V_RUN+4*h}, v32
        v_add_f32 v{V_RUN+4*h+1}, v{V_RUN+4*h+1}, v33
        v_add_f32 v{V_RUN+4*h+2}, v{V_RUN+4*h+2}, v34
        v_add_f32 v{V_RUN+4*h+3}, v{V_RUN+4*h+3}, v35
        s_branch P2_FOLD{h}
        """)
        a.lab(f"P2_FOLD_DONE{h}")
        a("s_mov_b64 exec, -1")
    a(f"""
    s_cmp_lt_u32 s23, s24
    s_cbranch_scc1 P2_ROUND
    v_lshrrev_b32 v5, 4, v0
    v_and_b32 v6, 15, v0
    v_lshlrev_b32 v5, 7, v5
    v_lshl_add_u32 v5, v6, 2, v5
    v_add_u32 v6, 0x1000, v5
    """)
    for h in range(2):
        R = V_RUN + 4 * h
        a(f"""
        v_add_u32 v24, {L_HU+8192*h}, v3
        ds_read_b128 v[32:35], v24
        v_cvt_pk_bf16_f32 v36, v{R}, v{R+2}
        v_cvt_pk_bf16_f32 v37, v{R+1}, v{R+3}
        v_lshlrev_b32 v28, 16, v36
        v_and_b32 v30, 0xffff0000, v36
        v_lshlrev_b32 v29, 16, v37
        v_and_b32 v31, 0xffff0000, v37
        s_waitcnt lgkmcnt(0)
        v_add_f32 v28, v28, v32
        v_add_f32 v29, v29, v33
        v_add_f32 v30, v30, v34
        v_add_f32 v31, v31, v35
        v_cvt_pk_bf16_f32 v36, v28, v30
        v_cvt_pk_bf16_f32 v37, v29, v31
        v_lshlrev_b32 v28, 16, v36
        v_and_b32 v30, 0xffff0000, v36
        v_lshlrev_b32 v29, 16, v37
        v_and_b32 v31, 0xffff0000, v37
        """)
        for k in range(4):
            a(f"v_mul_f32 v{32+k}, {NLOG2E:#x}, v{28+k}")
        for k in range(4):
            a(f"v_exp_f32 v{32+k}, v{32+k}")
        for k in range(4):
            a(f"v_add_f32 v{32+k}, 1.0, v{32+k}")
        for k in range(4):
            a(f"v_rcp_f32 v{32+k}, v{32+k}")
        for k in range(4):
            a(f"v_mul_f32 v{28+k}, v{28+k}, v{32+k}")
        a(f"""
        v_cvt_pk_bf16_f32 v{38+2*h}, v28, v30
        v_cvt_pk_bf16_f32 v{39+2*h}, v29, v31
        buffer_store_dword v{38+2*h}, v{5+h}, s[44:47], 0 offen
        buffer_store_dword v{39+2*h}, v{5+h}, s[44:47], 0 offen offset:64
        """)
    a.stamp(8)
    if OPT["stamp"] == "6":
        a(f"""
        s_lshl_b32 s10, s2, 3
        s_add_u32 s10, s10, s3
        s_lshl_b32 s10, s10, 6
        s_add_u32 s10, s10, {DBG2_OFF}
        v_lshlrev_b32 v2, 2, v1
        s_mov_b64 exec, 0xffff
        buffer_store_dword v9, v2, s[40:43], s10 offen
        s_endpgm
        """)
    a.stamp_flush(15, 40, 8, DBG2_OFF)
    a.lab("P2_END")
    a("s_endpgm")
    return a.text()


HEAD = open("standalone__edge_featured_mpnn_egc__graph.s.ref").read().split("; Override launch")[0]


def kd(name, vgpr, sgpr):
    acc = (vgpr + 3) // 4 * 4
    return f""".amdhsa_kernel {name}
  .amdhsa_next_free_vgpr {vgpr}
  .amdhsa_next_free_sgpr {sgpr}
  .amdhsa_accum_offset {acc}
  .amdhsa_group_segment_fixed_size 0
  .amdhsa_kernarg_size 80
  .amdhsa_user_sgpr_count 2
  .amdhsa_user_sgpr_kernarg_segment_ptr 1
  .amdhsa_system_sgpr_workgroup_id_x 1
.end_amdhsa_kernel
"""


def main():
    out = HEAD
    out += f"; @launch kernel=p1_kernel grid=({NCH},1,1) block=({64*int(OPT['p1_w'])+64},1,1) lds={P1_LDS}\n"
    out += f"; @launch kernel=p2_kernel grid=({NB},1,1) block=(512,1,1) lds={P2_LDS}\n"
    out += """; Generated by gen/gen14.py (own generator).  Algorithm:
;      writes fixed 32-entry records T[bucket][chunk] (src | dst%49 | edge id); an extra wave builds the MFMA
"""
    out += '.amdgcn_target "amdgcn-amd-amdhsa--gfx950"\n.text\n'
    out += ".globl p1_kernel\n.p2align 8\n.type p1_kernel,@function\n" + gen_p1()
    out += ".globl p2_kernel\n.p2align 8\n.type p2_kernel,@function\n" + gen_p2()
    out += '.section .rodata,"a"\n.p2align 6\n' + kd("p1_kernel", 96, 100) + ".p2align 6\n" + kd("p2_kernel", 256, 100)
    open(sys.argv[1], "w").write(out)


main()
```
